```python
import torch

def _softmax(x, axis=-1):
    return torch.softmax(x, dim=axis)
def _gelu(x):
    return torch.nn.functional.gelu(x, approximate="tanh")
def _silu(x):
    return torch.nn.functional.silu(x)
def _sigmoid(x):
    return torch.sigmoid(x)
def _layernorm(x, axis=-1, eps=1e-5):
    m = x.mean(dim=axis, keepdim=True)
    v = x.var(dim=axis, keepdim=True, unbiased=False)
    return (x - m) / torch.sqrt(v + eps)
def _scatter_add(tgt, idx, src, axis=0):
    return tgt.clone().index_add_(axis, idx, src)
def _segment_sum(src, seg, n):
    out = torch.zeros((n,) + src.shape[1:], dtype=src.dtype)
    return out.index_add_(0, seg, src)
def _pad(x, pw):
    flat = tuple(v for pair in reversed(pw) for v in pair)
    return torch.nn.functional.pad(x, flat)

kernel_name = 'standalone__sliding_block_cached__sampling'

def setup_inputs():

    _w = (lambda a: (lambda t: t.to(torch.bfloat16) if t.is_floating_point() else t)(torch.as_tensor(a)))
    B, Sq, D = 8, 32, 576
    Hq, Hkv, Sk, Dh = 32, 16, 8192, 128
    assert Hq % Hkv == 0, (Hq, Hkv)
    return {
        "x": _w((lambda *s: torch.randn(*s, dtype=torch.bfloat16) * 0.8)(B, Sq, D)),
        "k_cache": _w((lambda *s: torch.randn(*s, dtype=torch.bfloat16) * 0.8)(B, Hkv, Sk, Dh)),
        "v_cache": _w((lambda *s: torch.randn(*s, dtype=torch.bfloat16) * 0.05)(B, Hkv, Sk, Dh)),
        "wq": _w((lambda *s: torch.randn(*s, dtype=torch.bfloat16) * 0.8)(D, Hq * Dh) * (D ** -0.5)),
        "wo": _w((lambda *s: torch.randn(*s, dtype=torch.bfloat16) * 0.05)(Hq * Dh, D) * ((Hq * Dh) ** -0.5)),
    }

def reference(x, k_cache, v_cache, wq, wo):
    B, Sq, D = x.shape
    Hq, Dh = 32, 128
    Hkv, Sk = k_cache.shape[1], k_cache.shape[2]
    W = min(4096, max(256, Sk // 4))
    rep = Hq // Hkv
    q = (lambda x, *d: x.permute(*d))((x @ wq).reshape(B, Sq, Hq, Dh), 0, 2, 1, 3)
    k = (lambda x, n, axis: torch.repeat_interleave(x, n, dim=axis))(k_cache[:, :, Sk - W:, :], rep, axis=1)
    v = (lambda x, n, axis: torch.repeat_interleave(x, n, dim=axis))(v_cache[:, :, Sk - W:, :], rep, axis=1)
    scores = torch.einsum("bhqd,bhkd->bhqk", q, k) * (Dh ** -0.5)
    p = _softmax(scores, axis=-1)
    o = torch.einsum("bhqk,bhkd->bhqd", p, v)
    return (lambda x, *d: x.permute(*d))(o, 0, 2, 1, 3).reshape(B, Sq, Hq * Dh) @ wo
```

```python
class Asm:
    def __init__(self):
        self.lines = []
        self.vm = []
        self.max_out = 0
        self.retired = 0

    def __call__(self, s):
        for ln in s.strip("\n").split("\n"):
            self.lines.append("  " + ln.strip() if not ln.strip().endswith(":") else ln.strip())

    def label(self, name):
        self.lines.append(name + ":")

    def comment(self, s):
        self.lines.append("  ; " + s)

    def vmem(self, s, tag):
        self(s)
        self.vm.append(tag)
        out = len(self.vm) - self.retired
        self.max_out = max(self.max_out, out)
        assert out <= 63, f"too many outstanding vmem ops: {out}"

    def wait_vm(self, tag, extra=""):
        idx = max(i for i, t in enumerate(self.vm) if t == tag)
        n = len(self.vm) - 1 - idx
        self.retired = max(self.retired, idx + 1)
        self(f"s_waitcnt vmcnt({n}){extra}")
        return n

    def wait_vm_all(self):
        self.retired = len(self.vm)
        self("s_waitcnt vmcnt(0)")

    def nop(self, n):
        while n > 0:
            k = min(n, 16)
            self(f"s_nop {k-1}")
            n -= k

    def text(self):
        return "\n".join(self.lines) + "\n"


def v(i, n=1):
    return f"v{i}" if n == 1 else f"v[{i}:{i+n-1}]"

def a(i, n=1):
    return f"a{i}" if n == 1 else f"a[{i}:{i+n-1}]"

def s(i, n=1):
    return f"s{i}" if n == 1 else f"s[{i}:{i+n-1}]"


class Alloc:
    def __init__(self, start, end):
        self.p = start
        self.end = end
        self.hi = start
    def get(self, n=1, align=1):
        self.p = (self.p + align - 1) // align * align
        r = self.p
        self.p += n
        assert self.p <= self.end, f"out of registers: {self.p} > {self.end}"
        self.hi = max(self.hi, self.p)
        return r
    def mark(self):
        return self.p
    def release(self, m):
        self.p = m


def kernel_desc(name, vgpr_total, accum_offset, sgpr=96):
    return f""".amdhsa_kernel {name}
  .amdhsa_next_free_vgpr {vgpr_total}
  .amdhsa_next_free_sgpr {sgpr}
  .amdhsa_accum_offset {accum_offset}
  .amdhsa_group_segment_fixed_size 0
  .amdhsa_kernarg_size 64
  .amdhsa_user_sgpr_count 2
  .amdhsa_user_sgpr_kernarg_segment_ptr 1
  .amdhsa_system_sgpr_workgroup_id_x 1
.end_amdhsa_kernel
"""

def kernel_head(name):
    return f""".globl {name}
.p2align 8
.type {name},@function
{name}:
"""
```

```python
import sys, struct
from asmlib import *

NAME = "standalone__sliding_block_cached__sampling"
STAMPS = len(sys.argv) > 2 and sys.argv[2] == "stamps"

def f32bits(x):
    return struct.unpack("<I", struct.pack("<f", x))[0]

SCALE_C = (128 ** -0.5) * 1.4426950408889634
PO_STRIDE = 9216
PY_BASE = 16 << 20
STAMP_BASE = 64 << 20
NST = 16
NSLOT = 5

def srd(A, d, lo, hi, nbytes):
    A(f"s_mov_b32 s{d}, s{lo}")
    A(f"s_and_b32 s{d+1}, s{hi}, 0xffff")
    A(f"s_mov_b32 s{d+2}, {nbytes:#x}")
    A(f"s_mov_b32 s{d+3}, 0x20000")

def decode_pair(A, kvh, b):
    A(f"s_and_b32 s{kvh}, s2, 7")
    A(f"s_lshl_b32 s{kvh}, s{kvh}, 1")
    A(f"s_bfe_u32 s{b}, s2, 0x10003")
    A(f"s_add_u32 s{kvh}, s{kvh}, s{b}")
    A(f"s_bfe_u32 s{b}, s2, 0x30004")

def xlane(A, op, x, t):
    A(f"v_mov_b32 {v(t)}, {v(x)}")
    A.nop(2)
    A(f"v_permlane16_swap_b32 {v(x)}, {v(t)}")
    A.nop(1)
    A(f"{op} {v(x)}, {v(x)}, {v(t)}")
    A(f"v_mov_b32 {v(t)}, {v(x)}")
    A.nop(2)
    A(f"v_permlane32_swap_b32 {v(x)}, {v(t)}")
    A.nop(1)
    A(f"{op} {v(x)}, {v(x)}, {v(t)}")

def gen_k1():
    A = Asm()
    nstamp = [0]
    def stamp():
        if STAMPS:
            i = nstamp[0]; nstamp[0] += 1
            A(f"s_memrealtime s[{64+2*i}:{65+2*i}]")
            A("s_waitcnt lgkmcnt(0)")
    SK, SV, SX, SWQ, SWS = 4, 8, 12, 16, 20
    sW, sKVH, sB, sHALF, sKOFF, sM0, sDST, sIT, sC, sSELL, sSELH, sT0, sT1, sLIM, sDELTA, sQOFF, sXOFF, sM0B = range(24, 42)
    A("s_cmp_ge_u32 s2, 256")
    A("s_cbranch_scc1 L1_end")
    A("s_load_dwordx8 s[48:55], s[0:1], 0")
    A("s_load_dwordx2 s[56:57], s[0:1], 56")
    R = Alloc(1, 256)
    vLane, vG, vN = R.get(), R.get(), R.get()
    vKoff = R.get(4); vVoff = R.get(2)
    vT = R.get(4)
    A(f"v_lshrrev_b32 {v(vT)}, 6, v0")
    A(f"v_and_b32 {v(vLane)}, 63, v0")
    A(f"v_readfirstlane_b32 s{sW}, {v(vT)}")
    A(f"v_lshrrev_b32 {v(vG)}, 4, {v(vLane)}")
    A(f"v_and_b32 {v(vN)}, 15, {v(vLane)}")
    decode_pair(A, sKVH, sB)
    A(f"s_lshr_b32 s{sHALF}, s2, 7")
    A(f"s_lshl_b32 s{sKOFF}, s{sB}, 25")
    A(f"s_lshl_b32 s{sT0}, s{sKVH}, 21")
    A(f"s_add_u32 s{sKOFF}, s{sKOFF}, s{sT0}")
    A(f"s_lshl_b32 s{sT0}, s{sHALF}, 18")
    A(f"s_add_u32 s{sKOFF}, s{sKOFF}, s{sT0}")
    A(f"s_lshl_b32 s{sM0B}, s{sW}, 12")
    A(f"s_add_u32 s{sKOFF}, s{sKOFF}, s{sM0B}")
    A(f"s_add_u32 s{sKOFF}, s{sKOFF}, {6144*256}")
    A(f"s_mov_b32 s{sM0}, s{sM0B}")
    A(f"s_add_u32 s{sLIM}, s{sM0B}, {NSLOT*32768}")
    A(f"s_mov_b32 s{sDST}, 0")
    for p in range(4):
        hp = (4 * p) ^ (((4 * p) & 4) << 1)
        A(f"v_or_b32 {v(vT)}, {hp}, {v(vG)}")
        A(f"v_xor_b32 {v(vT)}, {v(vT)}, {v(vN)}")
        A(f"v_lshlrev_b32 {v(vT)}, 4, {v(vT)}")
        A(f"v_lshl_add_u32 {v(vKoff+p)}, {v(vG)}, 8, {v(vT)}")
    for pp in range(2):
        A(f"v_or_b32 {v(vT)}, {4*pp}, {v(vG)}")
        A(f"v_lshlrev_b32 {v(vT)}, 1, {v(vT)}")
        A(f"v_xor_b32 {v(vT)}, {v(vT)}, {v(vN)}")
        A(f"v_lshlrev_b32 {v(vT)}, 4, {v(vT)}")
        A(f"v_lshl_add_u32 {v(vVoff+pp)}, {v(vG)}, 8, {v(vT)}")
    A("s_waitcnt lgkmcnt(0)")
    srd(A, SK, 50, 51, 1 << 28)
    srd(A, SV, 52, 53, 1 << 28)

    def dma(tag, tracked=True):
        A(f"s_cmp_lt_u32 s{sDST}, {NST}")
        A(f"s_cselect_b32 s{sT0}, s{sKOFF}, 0x10000000")
        A(f"s_mov_b32 m0, s{sM0}")
        A(f"s_add_u32 s{sT1}, s{sM0}, 16384")
        for p in range(4):
            ln = f"buffer_load_dwordx4 {v(vKoff+p)}, s[{SK}:{SK+3}], s{sT0} offen offset:{p*1024} nt lds"
            A.vmem(ln, tag) if tracked else A(ln)
        A(f"s_mov_b32 m0, s{sT1}")
        A(f"s_add_u32 s{sKOFF}, s{sKOFF}, 16384")
        for p in range(4):
            ln = f"buffer_load_dwordx4 {v(vVoff+(p&1))}, s[{SV}:{SV+3}], s{sT0} offen offset:{p*1024} nt lds"
            A.vmem(ln, tag) if tracked else A(ln)
        A(f"s_add_u32 s{sM0}, s{sM0}, 32768")
        A(f"s_cmp_ge_u32 s{sM0}, s{sLIM}")
        A(f"s_cselect_b32 s{sM0}, s{sM0B}, s{sM0}")
        A(f"s_add_u32 s{sDST}, s{sDST}, 1")

    dma("S0")
    stamp()
    srd(A, SX, 48, 49, 8 * 32 * 576 * 2)
    srd(A, SWQ, 54, 55, 576 * 4096 * 2)
    srd(A, SWS, 56, 57, 1 << 30)
    A(f"s_mov_b32 s{sC}, {f32bits(SCALE_C):#x}")
    A(f"s_mov_b32 s{sSELL}, 0x05040100")
    A(f"s_mov_b32 s{sSELH}, 0x07060302")
    vQf = R.get(16, 4)
    vKa = R.get(4); vVa = R.get(8)
    vM, vL = R.get(), R.get()
    mark = R.mark()
    vWoff = R.get(8); vXoff = R.get(2)
    NB = 4
    vRaw = [R.get(40, 4) for _ in range(NB)]
    vFr = R.get(32, 4)
    A(f"v_lshlrev_b32 {v(vT)}, 16, {v(vG)}")
    A(f"v_lshl_add_u32 {v(vT)}, {v(vN)}, 4, {v(vT)}")
    for r in range(8):
        A(f"v_add_u32 {v(vWoff+r)}, {r*8192}, {v(vT)}")
    A(f"s_and_b32 s{sT0}, s{sW}, 1")
    A(f"s_mul_i32 s{sQOFF}, s{sT0}, {288*8192}")
    A(f"s_lshl_b32 s{sT1}, s{sKVH}, 9")
    A(f"s_add_u32 s{sQOFF}, s{sQOFF}, s{sT1}")
    A(f"s_lshr_b32 s{sT1}, s{sW}, 1")
    A(f"s_lshl_b32 s{sT1}, s{sT1}, 8")
    A(f"s_add_u32 s{sQOFF}, s{sQOFF}, s{sT1}")
    A(f"s_mul_i32 s{sXOFF}, s{sB}, 36864")
    A(f"s_mul_i32 s{sT1}, s{sT0}, 576")
    A(f"s_add_u32 s{sXOFF}, s{sXOFF}, s{sT1}")
    A(f"s_mul_i32 s{sT1}, s{sT0}, {16*1152}")
    A(f"v_mul_u32_u24 {v(vT)}, 1152, {v(vN)}")
    A(f"v_lshl_add_u32 {v(vT)}, {v(vG)}, 4, {v(vT)}")
    A(f"v_add_u32 {v(vXoff)}, s{sT1}, {v(vT)}")
    A(f"s_sub_u32 s{sT1}, {16*1152}, s{sT1}")
    A(f"v_add_u32 {v(vXoff+1)}, s{sT1}, {v(vT)}")

    def qload(step):
        rb = vRaw[step % NB]
        for r in range(8):
            A.vmem(f"buffer_load_dwordx4 {v(rb+4*r,4)}, {v(vWoff+r)}, s[{SWQ}:{SWQ+3}], s{sQOFF} offen", f"q{step}")
        for u in range(2):
            A.vmem(f"buffer_load_dwordx4 {v(rb+32+4*u,4)}, {v(vXoff+u)}, s[{SX}:{SX+3}], s{sXOFF} offen offset:{step*64}", f"q{step}")
        A(f"s_add_u32 s{sQOFF}, s{sQOFF}, {32*8192}")

    for st in range(NB):
        qload(st)
    dma("S1")
    A(f"v_and_b32 {v(vT)}, 4, {v(vN)}")
    A(f"v_lshlrev_b32 {v(vT)}, 1, {v(vT)}")
    A(f"v_xor_b32 {v(vT)}, {v(vT)}, {v(vN)}")
    A(f"v_lshlrev_b32 {v(vT+1)}, 2, {v(vG)}")
    A(f"v_xor_b32 {v(vT)}, {v(vT)}, {v(vT+1)}")
    for s_ in range(4):
        A(f"v_xor_b32 {v(vT+2)}, {s_}, {v(vT)}")
        A(f"v_lshlrev_b32 {v(vT+2)}, 4, {v(vT+2)}")
        A(f"v_lshl_add_u32 {v(vKa+s_)}, {v(vN)}, 8, {v(vT+2)}")
    A(f"v_lshrrev_b32 {v(vT)}, 2, {v(vN)}")
    A(f"v_add_u32 {v(vT)}, {v(vT)}, {v(vT+1)}")
    A(f"v_and_b32 {v(vT+2)}, 3, {v(vN)}")
    A(f"v_lshlrev_b32 {v(vT+2)}, 3, {v(vT+2)}")
    A(f"v_lshl_add_u32 {v(vT+2)}, {v(vT)}, 8, {v(vT+2)}")
    A(f"v_add_u32 {v(vT+2)}, 16384, {v(vT+2)}")
    A(f"v_and_b32 {v(vT)}, 7, {v(vT)}")
    for dt in range(8):
        A(f"v_xor_b32 {v(vT+3)}, {dt}, {v(vT)}")
        A(f"v_lshl_add_u32 {v(vVa+dt)}, {v(vT+3)}, 5, {v(vT+2)}")
    for step in range(9):
        rb = vRaw[step % NB]
        A.wait_vm(f"q{step}")
        for j in range(8):
            for t in range(4):
                sel = sSELH if (j & 1) else sSELL
                A(f"v_perm_b32 {v(vFr+4*j+t)}, {v(rb+4*(2*t+1)+j//2)}, {v(rb+4*(2*t)+j//2)}, s{sel}")
        A.nop(2)
        for j in range(8):
            for u in range(2):
                acc = a((u * 8 + j) * 4, 4)
                c_ = acc if step > 0 else "0"
                A(f"v_mfma_f32_16x16x32_bf16 {acc}, {v(vFr+4*j,4)}, {v(rb+32+4*u,4)}, {c_}")
        if step + NB < 9:
            qload(step + NB)
        if step == 1:
            dma("S2")
        if step == 4:
            dma("S3")
    stamp()
    A(f"s_xor_b32 s{sT0}, s{sW}, 1")
    A(f"s_lshl_b32 s{sT0}, s{sT0}, 13")
    A(f"s_add_u32 s{sT0}, s{sT0}, {4*32768}")
    A(f"v_lshlrev_b32 {v(vT)}, 4, {v(vLane)}")
    A(f"v_add_u32 {v(vT+1)}, s{sT0}, {v(vT)}")
    A(f"s_lshl_b32 s{sT0}, s{sW}, 13")
    A(f"s_add_u32 s{sT0}, s{sT0}, {4*32768}")
    A(f"v_add_u32 {v(vT+2)}, s{sT0}, {v(vT)}")
    A.nop(8)
    for j in range(8):
        A(f"ds_write_b128 {v(vT+1)}, {a((8+j)*4,4)} offset:{j*1024}")
    A("s_waitcnt lgkmcnt(0)")
    A("s_barrier")
    for j in range(8):
        A(f"ds_read_b128 {v(vFr+4*j,4)}, {v(vT+2)} offset:{j*1024}")
    vD = vRaw[0]
    for k in range(32):
        A(f"v_accvgpr_read_b32 {v(vD+k)}, {a(k)}")
    A("s_waitcnt lgkmcnt(0)")
    for k in range(32):
        A(f"v_add_f32 {v(vD+k)}, {v(vD+k)}, {v(vFr+k)}")
    for s_ in range(4):
        for t in range(4):
            A(f"v_cvt_pk_bf16_f32 {v(vQf+4*s_+t)}, {v(vD+4*(2*t)+s_)}, {v(vD+4*(2*t+1)+s_)}")
    R.release(mark)
    vO = R.get(32, 4)
    vKf = R.get(64, 4)
    vVf = R.get(64, 4)
    vS = R.get(16, 4)
    vP = R.get(8, 4)
    vMx, vAl, vMc, vSum = R.get(), R.get(), R.get(), R.get()
    for k in range(32):
        A(f"v_mov_b32 {v(vO+k)}, 0")
    A(f"v_mov_b32 {v(vM)}, 0xff800000")
    A(f"v_mov_b32 {v(vL)}, 0")
    A(f"s_mov_b32 s{sIT}, 0")
    A(f"s_mov_b32 s{sXOFF}, 0")
    A(f"s_mov_b32 s{sQOFF}, 32768")
    stamp()
    A.label("L1_loop")
    A("s_waitcnt vmcnt(24)")
    A("s_barrier")
    dma("loop", tracked=False)
    for T in range(4):
        for s_ in range(4):
            A(f"ds_read_b128 {v(vKf+16*T+4*s_,4)}, {v(vKa+s_)} offset:{T*4096}")
        if T == 1:
            A("s_waitcnt lgkmcnt(0)")
    A("s_waitcnt lgkmcnt(0)")
    for T in range(4):
        for s_ in range(4):
            c_ = v(vS+4*T, 4) if s_ > 0 else "0"
            A(f"v_mfma_f32_16x16x32_bf16 {v(vS+4*T,4)}, {v(vKf+16*T+4*s_,4)}, {v(vQf+4*s_,4)}, {c_}")
    cnt = 0
    for G in range(2):
        for dt in range(8):
            for u in range(2):
                A(f"ds_read_b64_tr_b16 {v(vVf+32*G+4*dt+2*u,2)}, {v(vVa+dt)} offset:{(32*G+16*u)*256}")
                cnt += 1
                if cnt % 12 == 0:
                    A("s_waitcnt lgkmcnt(0)")
    A(f"v_max3_f32 {v(vMx)}, {v(vS)}, {v(vS+1)}, {v(vS+2)}")
    for k in range(3, 15, 2):
        A(f"v_max3_f32 {v(vMx)}, {v(vMx)}, {v(vS+k)}, {v(vS+k+1)}")
    A(f"v_max_f32 {v(vMx)}, {v(vMx)}, {v(vS+15)}")
    xlane(A, "v_max_f32", vMx, vT)
    A(f"v_max_f32 {v(vMx)}, {v(vMx)}, {v(vM)}")
    A(f"v_mul_f32 {v(vMc)}, s{sC}, {v(vMx)}")
    A(f"v_fma_f32 {v(vAl)}, {v(vM)}, s{sC}, -{v(vMc)}")
    A(f"v_exp_f32 {v(vAl)}, {v(vAl)}")
    A(f"v_mov_b32 {v(vM)}, {v(vMx)}")
    for k in range(16):
        A(f"v_fma_f32 {v(vS+k)}, {v(vS+k)}, s{sC}, -{v(vMc)}")
    for k in range(16):
        A(f"v_exp_f32 {v(vS+k)}, {v(vS+k)}")
    A(f"v_mul_f32 {v(vL)}, {v(vL)}, {v(vAl)}")
    for k in range(16):
        A(f"v_add_f32 {v(vL)}, {v(vL)}, {v(vS+k)}")
    for k in range(8):
        A(f"v_cvt_pk_bf16_f32 {v(vP+k)}, {v(vS+2*k)}, {v(vS+2*k+1)}")
    for k in range(32):
        A(f"v_mul_f32 {v(vO+k)}, {v(vO+k)}, {v(vAl)}")
    A("s_waitcnt lgkmcnt(0)")
    A.nop(2)
    for G in range(2):
        for dt in range(8):
            A(f"v_mfma_f32_16x16x32_bf16 {v(vO+4*dt,4)}, {v(vVf+32*G+4*dt,4)}, {v(vP+4*G,4)}, {v(vO+4*dt,4)}")
    A(f"s_add_u32 s{sXOFF}, s{sXOFF}, 1")
    A(f"s_cmp_ge_u32 s{sXOFF}, {NSLOT}")
    A(f"s_cselect_b32 s{sDELTA}, {(-(NSLOT-1)*32768) & 0xffffffff:#x}, s{sQOFF}")
    A(f"s_cselect_b32 s{sXOFF}, 0, s{sXOFF}")
    for k in range(4):
        A(f"v_add_u32 {v(vKa+k)}, s{sDELTA}, {v(vKa+k)}")
    for k in range(8):
        A(f"v_add_u32 {v(vVa+k)}, s{sDELTA}, {v(vVa+k)}")
    A(f"s_add_u32 s{sIT}, s{sIT}, 1")
    A(f"s_cmp_lt_u32 s{sIT}, {NST}")
    A("s_cbranch_scc1 L1_loop")
    stamp()
    xlane(A, "v_add_f32", vL, vT)
    A(f"s_lshl_b32 s{sT0}, s2, 2")
    A(f"s_add_u32 s{sT0}, s{sT0}, s{sW}")
    A(f"s_mul_i32 s{sT0}, s{sT0}, {PO_STRIDE}")
    A(f"v_lshlrev_b32 {v(vT)}, 4, {v(vLane)}")
    A(f"v_lshlrev_b32 {v(vT+1)}, 3, {v(vLane)}")
    A(f"s_add_u32 s{sT1}, s{sT0}, 4096")
    A.nop(4)
    for dt in range(8):
        so = sT0 if dt < 4 else sT1
        A(f"buffer_store_dwordx4 {v(vO+4*dt,4)}, {v(vT)}, s[{SWS}:{SWS+3}], s{so} offen offset:{(dt%4)*1024}")
    A(f"s_add_u32 s{sT1}, s{sT0}, 8192")
    assert vL == vM + 1 and vM % 2 == 0, (vM, vL)
    A(f"buffer_store_dwordx2 {v(vM,2)}, {v(vT+1)}, s[{SWS}:{SWS+3}], s{sT1} offen")
    if STAMPS:
        A("s_waitcnt vmcnt(0)")
        stamp()
        n = nstamp[0]
        A(f"s_lshl_b32 s{sT0}, s2, 2")
        A(f"s_add_u32 s{sT0}, s{sT0}, s{sW}")
        A(f"s_lshl_b32 s{sT0}, s{sT0}, 7")
        A(f"s_add_u32 s{sT0}, s{sT0}, {STAMP_BASE}")
        A(f"v_mov_b32 {v(vT)}, 0")
        A(f"v_cmp_eq_u32 vcc, 0, {v(vLane)}")
        A("s_and_saveexec_b64 s[62:63], vcc")
        for i in range(n):
            A(f"v_mov_b32 {v(vT+2)}, s{64+2*i}")
            A(f"v_mov_b32 {v(vT+3)}, s{65+2*i}")
            A(f"buffer_store_dwordx2 {v(vT+2,2)}, {v(vT)}, s[{SWS}:{SWS+3}], s{sT0} offen offset:{8*i}")
            A.nop(2)
    A("s_waitcnt vmcnt(0)")
    A.label("L1_end")
    A("s_endpgm")
    return A.text(), R.hi

def gen_k2():
    A = Asm()
    SWO, SWS = 4, 8
    sW, sKVH, sB, sC, sSELL, sSELH, sT0, sT1, sWOFF = range(24, 33)
    A("s_cmp_ge_u32 s2, 128")
    A("s_cbranch_scc1 L2_end")
    A("s_load_dwordx2 s[48:49], s[0:1], 32")
    A("s_load_dwordx2 s[50:51], s[0:1], 56")
    R = Alloc(1, 256)
    vLane, vG, vN = R.get(), R.get(), R.get()
    vT = R.get(4)
    A(f"v_lshrrev_b32 {v(vT)}, 6, v0")
    A(f"v_and_b32 {v(vLane)}, 63, v0")
    A(f"v_readfirstlane_b32 s{sW}, {v(vT)}")
    A(f"v_lshrrev_b32 {v(vG)}, 4, {v(vLane)}")
    A(f"v_and_b32 {v(vN)}, 15, {v(vLane)}")
    decode_pair(A, sKVH, sB)
    A(f"s_mov_b32 s{sC}, {f32bits(SCALE_C):#x}")
    A(f"s_mov_b32 s{sSELL}, 0x05040100")
    A(f"s_mov_b32 s{sSELH}, 0x07060302")
    A("s_waitcnt lgkmcnt(0)")
    srd(A, SWO, 48, 49, 4096 * 576 * 2)
    srd(A, SWS, 50, 51, 1 << 30)
    vOA = R.get(32, 4); vOB = R.get(32, 4); vML = R.get(4, 2)
    A(f"v_lshlrev_b32 {v(vT)}, 4, {v(vLane)}")
    A(f"v_lshlrev_b32 {v(vT+1)}, 3, {v(vLane)}")
    for h, vO in enumerate((vOA, vOB)):
        A(f"s_add_u32 s{sT0}, s2, {128*h}")
        A(f"s_lshl_b32 s{sT0}, s{sT0}, 2")
        A(f"s_add_u32 s{sT0}, s{sT0}, s{sW}")
        A(f"s_mul_i32 s{sT0}, s{sT0}, {PO_STRIDE}")
        A(f"s_add_u32 s{sT1}, s{sT0}, 4096")
        for dt in range(8):
            so = sT0 if dt < 4 else sT1
            A.vmem(f"buffer_load_dwordx4 {v(vO+4*dt,4)}, {v(vT)}, s[{SWS}:{SWS+3}], s{so} offen offset:{(dt%4)*1024}", "po")
        A(f"s_add_u32 s{sT1}, s{sT0}, 8192")
        A.vmem(f"buffer_load_dwordx2 {v(vML+2*h,2)}, {v(vT+1)}, s[{SWS}:{SWS+3}], s{sT1} offen", "po")
    vWm = R.get(2); vW8 = R.get(2)
    A(f"v_mul_u32_u24 {v(vT+2)}, {4*1152}, {v(vG)}")
    A(f"s_lshl_b32 s{sT0}, s{sW}, 8")
    A(f"v_lshl_add_u32 {v(vWm)}, {v(vN)}, 4, {v(vT+2)}")
    A(f"v_add_u32 {v(vWm)}, s{sT0}, {v(vWm)}")
    A(f"v_add_u32 {v(vWm+1)}, {16*1152}, {v(vWm)}")
    A(f"v_lshl_add_u32 {v(vW8)}, {v(vN)}, 3, {v(vT+2)}")
    A(f"v_add_u32 {v(vW8)}, 1024, {v(vW8)}")
    A(f"v_add_u32 {v(vW8+1)}, {16*1152}, {v(vW8)}")
    A(f"s_mul_i32 s{sWOFF}, s{sKVH}, {256*1152}")
    sSEL8, sW1 = 33, 34
    A(f"s_and_b32 s{sT0}, s{sW}, 1")
    A(f"s_cmp_eq_u32 s{sT0}, 1")
    A(f"s_cselect_b32 s{sSEL8}, s{sSELH}, s{sSELL}")
    A(f"s_lshr_b32 s{sT0}, s{sW}, 1")
    A(f"s_lshl_b32 s{sT0}, s{sT0}, 2")
    A(f"v_add_u32 {v(vW8)}, s{sT0}, {v(vW8)}")
    A(f"v_add_u32 {v(vW8+1)}, s{sT0}, {v(vW8+1)}")
    vRaw = [R.get(40, 4) for _ in range(2)]
    vFr = R.get(36, 4)
    def wload(ks):
        rb = vRaw[ks % 2]
        for e in range(8):
            A.vmem(f"buffer_load_dwordx4 {v(rb+4*e,4)}, {v(vWm+(e>>2))}, s[{SWO}:{SWO+3}], s{sWOFF} offen offset:{(e&3)*1152}", f"w{ks}")
        for e in range(8):
            A.vmem(f"buffer_load_dword {v(rb+32+e)}, {v(vW8+(e>>2))}, s[{SWO}:{SWO+3}], s{sWOFF} offen offset:{(e&3)*1152}", f"w{ks}")
        A(f"s_add_u32 s{sWOFF}, s{sWOFF}, {32*1152}")
    wload(0); wload(1)
    A.wait_vm("po")
    mA, lA, mB, lB = vML, vML + 1, vML + 2, vML + 3
    A(f"v_max_f32 {v(vT)}, {v(mA)}, {v(mB)}")
    A(f"v_mul_f32 {v(vT)}, s{sC}, {v(vT)}")
    A(f"v_fma_f32 {v(mA)}, {v(mA)}, s{sC}, -{v(vT)}")
    A(f"v_fma_f32 {v(mB)}, {v(mB)}, s{sC}, -{v(vT)}")
    A(f"v_exp_f32 {v(mA)}, {v(mA)}")
    A(f"v_exp_f32 {v(mB)}, {v(mB)}")
    A.nop(1)
    A(f"v_mul_f32 {v(vT)}, {v(mA)}, {v(lA)}")
    A(f"v_fma_f32 {v(vT)}, {v(mB)}, {v(lB)}, {v(vT)}")
    A(f"v_rcp_f32 {v(vT)}, {v(vT)}")
    A.nop(1)
    A(f"v_mul_f32 {v(mA)}, {v(mA)}, {v(vT)}")
    A(f"v_mul_f32 {v(mB)}, {v(mB)}, {v(vT)}")
    for k in range(32):
        A(f"v_mul_f32 {v(vOA+k)}, {v(vOA+k)}, {v(mA)}")
        A(f"v_fma_f32 {v(vOA+k)}, {v(vOB+k)}, {v(mB)}, {v(vOA+k)}")
    for k in range(16):
        A(f"v_cvt_pk_bf16_f32 {v(vOB+k)}, {v(vOA+2*k)}, {v(vOA+2*k+1)}")
    A(f"s_lshl_b32 s{sT0}, s{sW}, 12")
    A(f"v_lshlrev_b32 {v(vT)}, 4, {v(vLane)}")
    A(f"v_add_u32 {v(vT+1)}, s{sT0}, {v(vT)}")
    for t in range(4):
        A(f"ds_write_b128 {v(vT+1)}, {v(vOB+4*t,4)} offset:{t*1024}")
    A("s_waitcnt lgkmcnt(0)")
    A("s_barrier")
    for f in range(16):
        A(f"ds_read_b128 {a(72+4*f,4)}, {v(vT)} offset:{f*1024}")
        if f == 7:
            A("s_waitcnt lgkmcnt(0)")
    A("s_waitcnt lgkmcnt(0)")
    for ks in range(8):
        rb = vRaw[ks % 2]
        hh, t = ks // 4, ks % 4
        A.wait_vm(f"w{ks}")
        for j in range(8):
            for tt in range(4):
                sel = sSELH if (j & 1) else sSELL
                A(f"v_perm_b32 {v(vFr+4*j+tt)}, {v(rb+4*(2*tt+1)+j//2)}, {v(rb+4*(2*tt)+j//2)}, s{sel}")
        for tt in range(4):
            A(f"v_perm_b32 {v(vFr+32+tt)}, {v(rb+32+2*tt+1)}, {v(rb+32+2*tt)}, s{sSEL8}")
        A.nop(2)
        for j in range(9):
            for rh in range(2):
                acc = a((rh * 9 + j) * 4, 4)
                c_ = acc if ks > 0 else "0"
                A(f"v_mfma_f32_16x16x32_bf16 {acc}, {a(72+4*((hh*2+rh)*4+t),4)}, {v(vFr+4*j,4)}, {c_}")
        if ks + 2 < 8:
            wload(ks + 2)
    A(f"s_mul_i32 s{sT0}, s2, {72*1024}")
    A(f"s_mul_i32 s{sT1}, s{sW}, {18*1024}")
    A(f"s_add_u32 s{sT0}, s{sT0}, s{sT1}")
    A(f"s_add_u32 s{sT0}, s{sT0}, {PY_BASE}")
    A.nop(8)
    for u in range(18):
        A(f"buffer_store_dwordx4 {a(4*u,4)}, {v(vT)}, s[{SWS}:{SWS+3}], s{sT0} offen offset:{(u%4)*1024}")
        if u % 4 == 3:
            A(f"s_add_u32 s{sT0}, s{sT0}, 4096")
    A("s_waitcnt vmcnt(0)")
    A.label("L2_end")
    A("s_endpgm")
    return A.text(), R.hi

def gen_k3():
    A = Asm()
    SO, SWS = 4, 8
    sW, sU, sB, sT0, sT1, sJ, sRH, sWW = range(24, 32)
    A("s_cmp_ge_u32 s2, 144")
    A("s_cbranch_scc1 L3_end")
    A("s_load_dwordx2 s[48:49], s[0:1], 40")
    A("s_load_dwordx2 s[50:51], s[0:1], 56")
    R = Alloc(1, 128)
    vLane, vG, vN = R.get(), R.get(), R.get()
    vT = R.get(4)
    vX = R.get(64, 4)
    A(f"v_lshrrev_b32 {v(vT)}, 6, v0")
    A(f"v_and_b32 {v(vLane)}, 63, v0")
    A(f"v_readfirstlane_b32 s{sW}, {v(vT)}")
    A(f"v_lshrrev_b32 {v(vG)}, 4, {v(vLane)}")
    A(f"v_and_b32 {v(vN)}, 15, {v(vLane)}")
    A(f"s_lshl_b32 s{sT0}, s2, 2")
    A(f"s_add_u32 s{sT0}, s{sT0}, s{sW}")
    A(f"s_mul_i32 s{sB}, s{sT0}, 911")
    A(f"s_lshr_b32 s{sB}, s{sB}, 16")
    A(f"s_mul_i32 s{sT1}, s{sB}, 72")
    A(f"s_sub_u32 s{sU}, s{sT0}, s{sT1}")
    A("s_waitcnt lgkmcnt(0)")
    srd(A, SO, 48, 49, 8 * 32 * 576 * 2)
    srd(A, SWS, 50, 51, 1 << 30)
    A(f"s_mul_i32 s{sT0}, s{sB}, {16*72*1024}")
    A(f"s_lshl_b32 s{sT1}, s{sU}, 10")
    A(f"s_add_u32 s{sT0}, s{sT0}, s{sT1}")
    A(f"s_add_u32 s{sT0}, s{sT0}, {PY_BASE}")
    A(f"v_lshlrev_b32 {v(vT)}, 4, {v(vLane)}")
    for p in range(16):
        A(f"buffer_load_dwordx4 {v(vX+4*p,4)}, {v(vT)}, s[{SWS}:{SWS+3}], s{sT0} offen")
        A(f"s_add_u32 s{sT0}, s{sT0}, {72*1024}")
    A(f"s_mul_i32 s{sT1}, s{sU}, 57")
    A(f"s_lshr_b32 s{sT1}, s{sT1}, 9")
    A(f"s_mul_i32 s{sJ}, s{sT1}, 9")
    A(f"s_sub_u32 s{sJ}, s{sU}, s{sJ}")
    A(f"s_and_b32 s{sRH}, s{sT1}, 1")
    A(f"s_lshr_b32 s{sWW}, s{sT1}, 1")
    A(f"s_lshl_b32 s{sT0}, s{sWW}, 7")
    A(f"s_add_u32 s{sT0}, s{sT0}, s{sJ}")
    A(f"s_add_u32 s{sT1}, s{sWW}, 512")
    A(f"s_cmp_lt_u32 s{sJ}, 8")
    A(f"s_cselect_b32 s{sT0}, s{sT0}, s{sT1}")
    A(f"s_cselect_b32 s{sT1}, 3, 2")
    A(f"v_lshlrev_b32 {v(vT+1)}, s{sT1}, {v(vN)}")
    A(f"v_add_u32 {v(vT+1)}, s{sT0}, {v(vT+1)}")
    A(f"v_mul_u32_u24 {v(vT+2)}, {4*1152}, {v(vG)}")
    A(f"v_lshl_add_u32 {v(vT+1)}, {v(vT+1)}, 1, {v(vT+2)}")
    A(f"s_mul_i32 s{sT0}, s{sB}, 36864")
    A(f"s_mul_i32 s{sT1}, s{sRH}, {16*1152}")
    A(f"s_add_u32 s{sT0}, s{sT0}, s{sT1}")
    A("s_waitcnt vmcnt(0)")
    for stride in (8, 4, 2, 1):
        for p in range(stride):
            for i in range(4):
                A(f"v_add_f32 {v(vX+4*p+i)}, {v(vX+4*p+i)}, {v(vX+4*(p+stride)+i)}")
    A(f"v_cvt_pk_bf16_f32 {v(vX+4)}, {v(vX)}, {v(vX+1)}")
    A(f"v_cvt_pk_bf16_f32 {v(vX+5)}, {v(vX+2)}, {v(vX+3)}")
    A(f"buffer_store_short {v(vX+4)}, {v(vT+1)}, s[{SO}:{SO+3}], s{sT0} offen")
    A(f"buffer_store_short_d16_hi {v(vX+4)}, {v(vT+1)}, s[{SO}:{SO+3}], s{sT0} offen offset:1152")
    A(f"buffer_store_short {v(vX+5)}, {v(vT+1)}, s[{SO}:{SO+3}], s{sT0} offen offset:2304")
    A(f"buffer_store_short_d16_hi {v(vX+5)}, {v(vT+1)}, s[{SO}:{SO+3}], s{sT0} offen offset:3456")
    A("s_waitcnt vmcnt(0)")
    A.label("L3_end")
    A("s_endpgm")
    return A.text(), R.hi

def main():
    k1, h1 = gen_k1()
    k2, h2 = gen_k2()
    k3, h3 = gen_k3()
    al4 = lambda x: (x + 3) // 4 * 4
    out = f"""; generated by gen1.py
; @launch kernel=attn_kernel grid=(256,1,1) block=(256,1,1) lds=163840
; @launch kernel=oproj_kernel grid=(128,1,1) block=(256,1,1) lds=16384
; @launch kernel=reduce_kernel grid=(144,1,1) block=(256,1,1) lds=0
.amdgcn_target "amdgcn-amd-amdhsa--gfx950"
.text
"""
    out += kernel_head("attn_kernel") + k1
    out += kernel_head("oproj_kernel") + k2
    out += kernel_head("reduce_kernel") + k3
    out += '.section .rodata,"a"\n.p2align 6\n'
    out += kernel_desc("attn_kernel", al4(h1) + 64, al4(h1))
    out += '.p2align 6\n' + kernel_desc("oproj_kernel", al4(h2) + 136, al4(h2))
    out += '.p2align 6\n' + kernel_desc("reduce_kernel", al4(h3), al4(h3))
    open(sys.argv[1], "w").write(out)
    print("vgpr hi:", h1, h2, h3)

main()
```

```python
import sys, struct
from asmlib import *

NAME = "standalone__sliding_block_cached__sampling_kernel"
OPTS = set(sys.argv[2:])
STAMPS = "stamps" in OPTS
def opt(name, default):
    for o in OPTS:
        if o.startswith(name + "="):
            return int(o.split("=")[1])
    return default
N1 = opt("n1", 20)
N2 = 32 - N1
SLEEP = opt("sleep", 2)
SLEEPY = opt("sleepy", 2)
PROF = opt("prof", 0)
THR = 8.0
NOB8 = opt("nob8", 0)
NOTR = opt("notr", 0)
FSTART = opt("fstart", 0)
CODEWARM = opt("codewarm", 1)
POLK = " nt" if opt("polk", 1) else ""
POLV = " nt" if opt("polv", 1) else ""

def f32bits(x):
    return struct.unpack("<I", struct.pack("<f", x))[0]

SCALE_C = (128 ** -0.5) * 1.4426950408889634
QB = 0
OB = 4 << 20
FQ = 12 << 20
FO = (12 << 20) + (1 << 18)
FY = 13 << 20
PY = 16 << 20
STAMP_BASE = 64 << 20
SPIN_MAX = 1 << 20
VRING = 81920
OOB = 0x7ff00000
DELTA = 32 << 20
POLA = {0: " nt", 1: " sc1", 2: ""}[opt("pola", 0)]
NOBQ = opt("nobq", 0)
ASC1 = " sc1" if opt("asc1", 0) else ""
G1DELAY = opt("g1delay", 0)
XSWAP = opt("xswap", 0)
M32 = "v_mfma_f32_32x32x16_bf16"
M16 = "v_mfma_f32_16x16x32_bf16"

def srd(A, d, lo, hi, nbytes):
    A(f"s_mov_b32 s{d}, s{lo}")
    A(f"s_and_b32 s{d+1}, s{hi}, 0xffff")
    A(f"s_mov_b32 s{d+2}, {nbytes:#x}")
    A(f"s_mov_b32 s{d+3}, 0x20000")

def weave(main, fill, per):
    out = []; fill = list(fill)
    for m in main:
        out.append(m)
        for _ in range(per):
            if fill:
                out.append(fill.pop(0))
    return out + fill

def spread(main, fill):
    out = []; n, k = len(main), len(fill); fi = 0
    for i, m in enumerate(main):
        out.append(m)
        while fi < k and (fi + 1) * n <= (i + 1) * k:
            out.append(fill[fi]); fi += 1
    return out + list(fill[fi:])

def gen():
    A = Asm()
    def emit(lst):
        for x in lst:
            if isinstance(x, tuple):
                A.vmem(x[0], x[1])
            else:
                A(x)
    def stamp(i, mode=0):
        if STAMPS and mode == PROF:
            assert i < 12
            A(f"s_memrealtime s[{56+2*i}:{57+2*i}]")
            A("s_waitcnt lgkmcnt(0)")
    SK, SV, SX, SWT, SWS = 4, 8, 12, 16, 20
    sWIN = 24
    sNON = 28
    sTIM = 30
    (sW, sKVH, sB, sPR, sOFF, sOFFc, sRK, sMK, sMV, sC, sSELL, sSELH, sT0, sT1, sT2, sLIM, sDK,
     sQOFF, sXOFF, sM0B, sST, sN, sIT, sSLOT) = range(32, 56)
    sMRG, sFOFF, sTHR, sK16, sDV, sKH = 96, 97, 98, 99, 100, 101
    KA = 80
    vL16, vVoff, vM = 1, 2, 3
    vKoff, vT, vKa, vVa = 4, 8, 12, 20
    vMc, vMx, vF = 24, 25, 26
    vSel, vLa, vQf, vD, vDml, vAl, vBe = 28, 32, 36, 68, 84, 86, 87
    vO, vSo, vSn, vKV, vWA = 88, 152, 168, 184, 216
    vLane, vG, vN = 252, 253, 254
    vP = vSo

    A("s_cmp_ge_u32 s2, 256")
    A("s_cbranch_scc1 L_end")
    A(f"s_load_dwordx16 s[{KA}:{KA+15}], s[0:1], 0")
    if XSWAP:
        A("s_lshr_b32 s3, s2, 7")
        A("s_xor_b32 s2, s2, s3")
    A(f"s_memrealtime s[{sTIM}:{sTIM+1}]")
    A(f"v_lshrrev_b32 {v(vT)}, 6, v0")
    A(f"v_and_b32 {v(vLane)}, 63, v0")
    A(f"v_readfirstlane_b32 s{sW}, {v(vT)}")
    A(f"v_lshrrev_b32 {v(vG)}, 4, {v(vLane)}")
    A(f"v_and_b32 {v(vN)}, 15, {v(vLane)}")
    A(f"s_and_b32 s{sKVH}, s2, 7")
    A(f"s_lshl_b32 s{sKVH}, s{sKVH}, 1")
    A(f"s_bfe_u32 s{sB}, s2, 0x10003")
    A(f"s_add_u32 s{sKVH}, s{sKVH}, s{sB}")
    A(f"s_bfe_u32 s{sB}, s2, 0x30004")
    A(f"s_and_b32 s{sPR}, s2, 127")
    A(f"s_lshl_b32 s{sT0}, s{sB}, 25")
    A(f"s_lshl_b32 s{sT1}, s{sKVH}, 21")
    A(f"s_add_u32 s{sT0}, s{sT0}, s{sT1}")
    A(f"s_add_u32 s{sT0}, s{sT0}, {6144*256}")
    A(f"s_add_u32 s{sT1}, s{sT0}, {N1*16384}")
    A(f"s_cmp_ge_u32 s2, 128")
    A(f"s_cselect_b32 s{sT2}, s{sT0}, s{sT1}")
    A(f"s_cselect_b32 s{sN}, {N1}, {N2}")
    A(f"s_lshl_b32 s{sM0B}, s{sW}, 12")
    A(f"s_add_u32 s{sLIM}, s{sM0B}, {VRING}")
    A(f"s_and_b32 s{sKH}, s{sW}, 1")
    A(f"v_lshlrev_b32 {v(vL16)}, 4, {v(vLane)}")

    def kv_setup():
        L = []
        for p in range(4):
            L += [f"v_or_b32 {v(vT)}, {4*p}, {v(vG)}",
                  f"v_xor_b32 {v(vT)}, {v(vT)}, {v(vN)}",
                  f"v_lshlrev_b32 {v(vT)}, 4, {v(vT)}",
                  f"v_lshl_add_u32 {v(vKoff+p)}, {v(vG)}, 8, {v(vT)}"]
        L += [f"v_lshlrev_b32 {v(vT)}, 2, {v(vG)}",
              f"v_xor_b32 {v(vT)}, {v(vT)}, {v(vN)}",
              f"v_lshlrev_b32 {v(vT)}, 4, {v(vT)}",
              f"v_lshl_add_u32 {v(vVoff)}, {v(vG)}, 8, {v(vT)}"]
        return L
    def kv_srds():
        L = [f"s_add_u32 s{SK}, s{KA+2}, s{sT2}", f"s_addc_u32 s{SK+1}, s{KA+3}, 0", f"s_and_b32 s{SK+1}, s{SK+1}, 0xffff",
             f"s_lshl_b32 s{SK+2}, s{sN}, 14", f"s_mov_b32 s{SK+3}, 0x20000",
             f"s_sub_u32 s{sT2}, s{sT2}, 16384",
             f"s_add_u32 s{SV}, s{KA+4}, s{sT2}", f"s_addc_u32 s{SV+1}, s{KA+5}, 0", f"s_and_b32 s{SV+1}, s{SV+1}, 0xffff",
             f"s_add_u32 s{SV+2}, s{SK+2}, 16384", f"s_mov_b32 s{SV+3}, 0x20000",
             f"s_mov_b32 s{sOFF}, s{sM0B}", f"s_mov_b32 s{sOFFc}, s{sM0B}", f"s_mov_b32 s{sRK}, s{sM0B}", f"s_mov_b32 s{sMK}, s{sM0B}",
             f"s_add_u32 s{sMV}, s{sM0B}, {VRING + 4*16384}"]
        return L

    def dma_list(tag=None, first=False):
        L = [f"s_mov_b32 m0, s{sMK}", f"s_add_u32 s{sOFF}, s{sOFF}, 16384"]
        for p in range(4):
            ln = f"buffer_load_dwordx4 {v(vKoff+p)}, s[{SK}:{SK+3}], s{sOFFc} offen offset:{p*1024}{POLK} lds"
            L.append((ln, tag) if tag else ln)
        L.append(f"s_mov_b32 m0, s{sMV}")
        L.append(f"s_add_u32 s{sMV}, s{sRK}, {VRING}")
        for p in range(0 if first else 4):
            ln = f"buffer_load_dwordx4 {v(vVoff)}, s[{SV}:{SV+3}], s{sOFFc} offen offset:{p*1024}{POLV} lds"
            L.append((ln, tag) if tag else ln)
        L += [f"s_mov_b32 s{sOFFc}, s{sOFF}",
              f"s_add_u32 s{sRK}, s{sRK}, 16384",
              f"s_cmp_ge_u32 s{sRK}, s{sLIM}",
              f"s_cselect_b32 s{sRK}, s{sM0B}, s{sRK}",
              f"s_mov_b32 s{sMK}, s{sRK}"]
        return L

    def window_check(vx, tmp):
        A(f"v_mov_b32 {v(tmp+1)}, s{sTIM+1}")
        A(f"v_subrev_co_u32 {v(tmp)}, vcc, s{sTIM}, {v(vx)}")
        A(f"v_subb_co_u32 {v(tmp+1)}, vcc, {v(vx+1)}, {v(tmp+1)}, vcc")
        A(f"v_cmp_gt_u64 vcc, s[{sWIN}:{sWIN+1}], {v(tmp,2)}")

    def common_setup():
        L = [f"s_mov_b32 s{sC}, {f32bits(SCALE_C):#x}",
             f"s_mov_b32 s{sTHR}, {f32bits(THR / SCALE_C):#x}",
             f"s_mov_b32 s{sSELL}, 0x05040100",
             f"s_mov_b32 s{sSELH}, 0x07060302",
             f"s_mov_b32 s{sK16}, 16384",
             f"s_mov_b32 s{sWIN}, 0x1000000",
             f"s_mov_b32 s{sWIN+1}, 0"]
        L += [f"v_and_b32 {v(vT)}, 31, {v(vLane)}",
              f"v_lshlrev_b32 {v(vT)}, 8, {v(vT)}",
              f"v_mov_b32 {v(vT+1)}, s{sKH}",
              f"v_lshl_add_u32 {v(vT)}, {v(vT+1)}, 13, {v(vT)}",
              f"v_lshrrev_b32 {v(vT+2)}, 5, {v(vLane)}",
              f"v_xor_b32 {v(vT+2)}, {v(vT+2)}, {v(vN)}"]
        for s_ in range(8):
            L += [f"v_xor_b32 {v(vT+3)}, {2*s_}, {v(vT+2)}",
                  f"v_lshl_add_u32 {v(vKa+s_)}, {v(vT+3)}, 4, {v(vT)}"]
        L += [f"v_lshrrev_b32 {v(vT+2)}, 2, {v(vN)}",
              f"v_lshrrev_b32 {v(vT)}, 5, {v(vLane)}",
              f"v_lshl_add_u32 {v(vT)}, {v(vT)}, 2, {v(vT+2)}",
              f"v_lshlrev_b32 {v(vT)}, 8, {v(vT)}",
              f"v_lshl_add_u32 {v(vT)}, {v(vT+1)}, 13, {v(vT)}",
              f"v_and_b32 {v(vT+3)}, 3, {v(vN)}",
              f"v_lshl_add_u32 {v(vT)}, {v(vT+3)}, 3, {v(vT)}",
              f"v_and_b32 {v(vT+3)}, 1, {v(vG)}",
              f"v_lshl_add_u32 {v(vT)}, {v(vT+3)}, 5, {v(vT)}",
              f"v_add_u32 {v(vT)}, {VRING + 4*16384}, {v(vT)}",
              f"v_lshlrev_b32 {v(vT+1)}, 1, {v(vT+1)}",
              f"v_xor_b32 {v(vT+2)}, {v(vT+2)}, {v(vT+1)}"]
        for D in range(4):
            L += [f"v_xor_b32 {v(vT+3)}, {D}, {v(vT+2)}",
                  f"v_lshl_add_u32 {v(vVa+D)}, {v(vT+3)}, 6, {v(vT)}"]
        L += [f"v_lshrrev_b32 {v(vT)}, 2, {v(vN)}",
              f"v_xor_b32 {v(vT)}, {v(vT)}, {v(vG)}",
              f"v_and_b32 {v(vT)}, 1, {v(vT)}",
              f"v_add_u32 {v(vT)}, -1, {v(vT)}",
              f"v_and_b32 {v(vSel)}, 0x3f803f80, {v(vT)}",
              f"v_mov_b32 {v(vSel+1)}, {v(vSel)}", f"v_mov_b32 {v(vSel+2)}, {v(vSel)}", f"v_mov_b32 {v(vSel+3)}, {v(vSel)}"]
        return L

    def loop_init_list():
        L = [f"v_mov_b32 {v(vO+k)}, 0" for k in range(64)]
        L += [f"v_mov_b32 {v(vSn+k)}, 0xff800000" for k in range(16)]
        L += [f"v_mov_b32 {v(vLa+k)}, 0" for k in range(4)]
        L += [f"v_mov_b32 {v(vM)}, 0xff800000", f"v_mov_b32 {v(vMc)}, 0", f"v_mov_b32 {v(vF)}, 0", f"v_mov_b32 {v(vF+1)}, 0",
              f"s_mov_b32 s{sSLOT}, 0", f"s_mov_b32 s{sIT}, 0", f"s_mov_b32 s{sDV}, {(-4*16384) & 0xffffffff:#x}"]
        return L

    def wreg(blk, i, n=1):
        return a(32 * blk + i, n)
    QIMG = VRING + 4 * 16384
    def q_image(vC):
        A(f"v_lshlrev_b32 {v(vT+2)}, 4, {v(vN)}")
        A(f"v_lshl_add_u32 {v(vT+2)}, {v(vG)}, 11, {v(vT+2)}")
        A(f"s_lshr_b32 s{sT1}, s{sW}, 1")
        A(f"s_lshl_b32 s{sT1}, s{sT1}, 13")
        A(f"s_add_u32 s{sT1}, s{sT1}, {QIMG}")
        A(f"s_lshl_b32 s{sT2}, s{sKH}, 8")
        A(f"s_add_u32 s{sT2}, s{sT2}, s{sT1}")
        A(f"v_add_u32 {v(vT+2)}, s{sT2}, {v(vT+2)}")
        for i in range(4):
            A(f"ds_write_b128 {v(vT+2)}, {v(vC+4*i,4)} offset:{(i>>1)*1024 + (i&1)*512}")
        A(f"v_add_u32 {v(vT+3)}, s{sT1}, {v(vL16)}")
        A("s_waitcnt lgkmcnt(0)")
        A("s_barrier")
        for s_ in range(8):
            A(f"ds_read_b128 {v(vQf+4*s_,4)}, {v(vT+3)} offset:{s_*1024}")
    def code_warm():
        if not CODEWARM:
            return
        A(f"s_getpc_b64 s[{sT0}:{sT0+1}]")
        A.label(f"L_pc{len(A.lines)}")
        A(f"s_sub_u32 s{sT0}, s{sT0}, {A.lines[-1][:-1]}-{NAME}")
        A(f"s_subb_u32 s{sT1}, s{sT1}, 0")
        A(f"v_mov_b32 {v(vT+1)}, s{sW}")
        A(f"v_lshlrev_b32 {v(vT+1)}, 13, {v(vT+1)}")
        A(f"v_lshl_add_u32 {v(vT+1)}, {v(vLane)}, 7, {v(vT+1)}")
        A(f"v_min_u32 {v(vT+1)}, L_code_end-{NAME}-4, {v(vT+1)}")
        A.vmem(f"global_load_dword {v(vMx)}, {v(vT+1)}, s[{sT0}:{sT0+1}]", "cw")

    A(f"s_cmp_lt_u32 s2, 128")
    A("s_cbranch_scc1 L_g2")

    emit(kv_setup())
    A(f"s_mul_i32 s{sXOFF}, s{sKVH}, {256*1152}")
    A(f"s_mul_i32 s{sT0}, s{sB}, 36864")
    A(f"s_mul_i32 s{sT1}, s{sW}, 9216")
    A(f"s_add_u32 s{sT0}, s{sT0}, s{sT1}")
    A(f"s_add_u32 s{sT0}, s{sT0}, s{sXOFF}")
    A(f"v_lshlrev_b32 {v(vT)}, 7, {v(vLane)}")
    A("s_waitcnt lgkmcnt(0)")
    srd(A, SWT, KA+8, KA+9, 576 * 4096 * 2)
    A.vmem(f"buffer_load_dword {v(vLa)}, {v(vT)}, s[{SWT}:{SWT+3}], s{sT0} offen", "pw")
    A.vmem(f"buffer_load_dword {v(vLa+1)}, {v(vT)}, s[{SWT}:{SWT+3}], s{sT0} offen offset:1024", "pw")
    emit(kv_srds())
    emit(dma_list("G", first=True))
    emit(dma_list("G"))
    srd(A, SWS, KA+14, KA+15, 1 << 30)
    emit(common_setup())
    vWm, vTmp = 68, 72
    code_warm()
    A(f"v_lshrrev_b32 {v(vT)}, 1, {v(vG)}")
    A(f"v_lshlrev_b32 {v(vT)}, 2, {v(vT)}")
    A(f"v_and_b32 {v(vT+1)}, 1, {v(vG)}")
    A(f"v_add_u32 {v(vT)}, {v(vT)}, {v(vT+1)}")
    A(f"v_mul_u32_u24 {v(vT)}, {4*1152}, {v(vT)}")
    A(f"s_lshl_b32 s{sT0}, s{sW}, 8")
    A(f"v_lshl_add_u32 {v(vWm)}, {v(vN)}, 4, {v(vT)}")
    A(f"v_add_u32 {v(vWm)}, s{sT0}, {v(vWm)}")
    A(f"v_add_u32 {v(vWm+1)}, {8*1152}, {v(vWm)}")
    for g_ in range(2, 5):
        emit(dma_list("G"))
    A(f"s_add_u32 s{sMK}, s{sM0B}, {VRING + 4*16384}")
    A(f"s_mov_b32 s{sOFFc}, {OOB:#x}")
    A(f"s_sub_u32 s{sOFF}, s{sOFF}, 16384")
    A(f"s_add_u32 s{sRK}, s{sM0B}, {4*16384}")
    stamp(0)
    rawat = [88 + 32 * (k % 5) for k in range(8)]
    def wo_issue(k):
        T = rawat[k]
        L = [f"s_add_u32 s{sT2}, s{sXOFF}, {k*32*1152}"]
        for e in range(8):
            L.append((f"buffer_load_dwordx4 {v(T+4*e,4)}, {v(vWm+(e>>2))}, s[{SWT}:{SWT+3}], s{sT2} offen offset:{(e&3)*1152}", f"w{k}"))
        return L
    def wo_transpose(k):
        T = rawat[k]
        L = []; cnt = 0
        for j in range(8):
            for t in range(4):
                tmp = vTmp + (cnt % 8); cnt += 1
                L.append(f"v_perm_b32 {v(tmp)}, {v(T+4*(2*t+1)+j//2)}, {v(T+4*(2*t)+j//2)}, s{sSELH if (j & 1) else sSELL}")
                L.append(f"v_accvgpr_write_b32 {wreg(k,4*j+t)}, {v(tmp)}")
        return L
    A(f"s_lshl_b32 s{sT0}, s{sPR}, 2")
    A(f"s_add_u32 s{sT0}, s{sT0}, s{sW}")
    A(f"s_lshl_b32 s{sQOFF}, s{sT0}, 7")
    A(f"s_add_u32 s{sQOFF}, s{sQOFF}, {FQ}")
    A(f"s_lshl_b32 s{sST}, s{sT0}, 13")
    if STAMPS:
        A(f"s_mov_b64 s[74:75], s[{sTIM}:{sTIM+1}]")
    A(f"s_sub_u32 s{sTIM}, s{sTIM}, 1000")
    A(f"s_subb_u32 s{sTIM+1}, s{sTIM+1}, 0")
    vQL = 36
    def q_batch(pol=POLA):
        L = [(f"buffer_load_dwordx4 {v(vT,4)}, off, s[{SWS}:{SWS+3}], s{sQOFF}{pol}", "qb"), f"s_add_u32 s{sT0}, s{sST}, 4096"]
        for k in range(8):
            L.append((f"buffer_load_dwordx4 {v(vQL+4*k,4)}, {v(vL16)}, s[{SWS}:{SWS+3}], s{sST if k < 4 else sT0} offen offset:{(k%4)*1024}{pol}", "qb"))
        return L
    emit(wo_issue(0))
    emit(wo_issue(1))
    A("s_waitcnt vmcnt(40)"); A.retired = len(A.vm) - 40
    emit(wo_issue(2))
    emit(wo_issue(3))
    QK_AT = opt("qat", 6)
    for k in range(8):
        A.wait_vm(f"w{k}")
        stamp(k, 2)
        nx = wo_issue(k + 4) if k + 4 < 8 else (q_batch() if k == QK_AT else [])
        emit(spread(wo_transpose(k), nx))
    stamp(1)
    stamp(8, 2)
    stamp(0, 3)
    emit(loop_init_list())
    stamp(1, 3)
    A(f"s_mov_b32 s{sT2}, 0")
    A("s_branch L_pollq_chk")
    A.label("L_pollq")
    A(f"s_sleep {SLEEP}")
    A(f"s_and_b32 s{sT0}, s{sT2}, 3")
    A(f"s_cmp_ge_u32 s{sT0}, 2")
    A(f"s_cselect_b32 s{sT0}, {DELTA:#x}, 0")
    A(f"s_xor_b32 s{sQOFF}, s{sQOFF}, s{sT0}")
    A(f"s_xor_b32 s{sST}, s{sST}, s{sT0}")
    for x in q_batch(" sc1"):
        A(x[0] if isinstance(x, tuple) else x)
    A.label("L_pollq_chk")
    A("s_waitcnt vmcnt(0)")
    if STAMPS and PROF == 3:
        for tr in range(4):
            A(f"s_cmp_eq_u32 s{sT2}, {tr}")
            A(f"s_cbranch_scc0 L_ptr{tr}")
            stamp(2 + tr, 3)
            A.label(f"L_ptr{tr}")
    for k in range(16):
        A(f"v_xor_b32 {v(vQL+2*k+1)}, {v(vQL+2*k+1)}, {v(vT)}")
        A(f"v_mov_b32 {v(vKV+k)}, {v(vQL+2*k)}")
    for k in range(1, 15, 2):
        A(f"v_or3_b32 {v(vQL+1)}, {v(vQL+1)}, {v(vQL+2*k+1)}, {v(vQL+2*k+3)}")
    A(f"v_xor_b32 {v(vT+3)}, {v(vT+3)}, {v(vT)}")
    A(f"v_or3_b32 {v(vQL+1)}, {v(vQL+1)}, {v(vQL+31)}, {v(vT+3)}")
    window_check(vT, vQL + 2)
    A(f"v_cmp_eq_u32 s[{sMRG}:{sMRG+1}], 0, {v(vQL+1)}")
    A(f"s_add_u32 s{sT2}, s{sT2}, 1")
    A(f"s_and_b64 vcc, vcc, s[{sMRG}:{sMRG+1}]")
    A("s_cmp_eq_u64 vcc, -1")
    A("s_cbranch_scc1 L_pollq_done")
    A(f"s_cmp_lt_u32 s{sT2}, {SPIN_MAX}")
    A("s_cbranch_scc1 L_pollq")
    A.label("L_pollq_done")
    stamp(6, 3)
    if STAMPS and PROF == 3:
        A(f"s_mul_i32 s{sT2}, s{sT2}, 100")
        A(f"s_add_u32 s72, s74, s{sT2}")
        A(f"s_addc_u32 s73, s75, 0")
    A(f"v_readfirstlane_b32 s{sNON}, {v(vT)}")
    A(f"v_readfirstlane_b32 s{sNON+1}, {v(vT+1)}")
    A(f"v_readfirstlane_b32 s{sFOFF}, {v(vT+2)}")
    q_image(vKV)
    A(f"s_getreg_b32 s{sT0}, hwreg(HW_REG_XCC_ID)")
    A(f"s_cmp_eq_u32 s{sT0}, s{sFOFF}")
    A(f"s_cselect_b32 s{sT0}, 0, {OOB:#x}")
    A(f"s_and_b32 s{sQOFF}, s{sQOFF}, {DELTA-1:#x}")
    A(f"s_add_u32 s{sFOFF}, s{sQOFF}, {FO - FQ}")
    A(f"s_or_b32 s{sFOFF}, s{sFOFF}, s{sT0}")
    if FSTART:
        A(f"s_mov_b32 s{sQOFF}, s{sFOFF}")
        A(f"s_mov_b32 s{sFOFF}, {OOB:#x}")
    A(f"s_mov_b32 s{sMRG}, -1")
    A(f"s_mov_b32 s{sST}, {N1-5}")
    A("s_waitcnt lgkmcnt(0)")
    stamp(2)
    stamp(7, 3)
    for _ in range(G1DELAY):
        A("s_sleep 8")
    A("s_branch L_loop")

    A.label("L_g2")
    A.vm = []; A.retired = 0
    NB = 4
    big = 68
    vRaw = [big + 32 * i for i in range(NB)]
    vFr = big + 128
    vWoff = big + 160; vXoff = big + 168
    aXf = [64 + 8 * i for i in range(9)]
    XL = 32768
    A(f"v_lshlrev_b32 {v(vT)}, 16, {v(vG)}")
    A(f"v_lshl_add_u32 {v(vT)}, {v(vN)}, 4, {v(vT)}")
    for r in range(8):
        A(f"v_add_u32 {v(vWoff+r)}, {r*8192}, {v(vT)}")
    A(f"s_mov_b32 s{sST}, s{sB}")
    A(f"s_mul_i32 s{sQOFF}, s{sKH}, {288*8192}")
    A(f"s_lshl_b32 s{sT1}, s{sKVH}, 9")
    A(f"s_add_u32 s{sQOFF}, s{sQOFF}, s{sT1}")
    A(f"s_lshr_b32 s{sT1}, s{sW}, 1")
    A(f"s_lshl_b32 s{sT1}, s{sT1}, 8")
    A(f"s_add_u32 s{sQOFF}, s{sQOFF}, s{sT1}")
    A(f"s_mul_i32 s{sXOFF}, s{sB}, 36864")
    A(f"s_mul_i32 s{sT1}, s{sW}, 9216")
    A(f"s_add_u32 s{sXOFF}, s{sXOFF}, s{sT1}")
    A(f"s_add_u32 s{sT1}, s{sT1}, {XL}")
    A("s_waitcnt lgkmcnt(0)")
    srd(A, SX, KA+0, KA+1, 8 * 32 * 576 * 2)
    srd(A, SWT, KA+6, KA+7, 576 * 4096 * 2)
    for k in range(9):
        if k % 4 == 0:
            A(f"s_mov_b32 m0, s{sT1}")
            A(f"s_add_u32 s{sT1}, s{sT1}, 4096")
        A.vmem(f"buffer_load_dwordx4 {v(vL16)}, s[{SX}:{SX+3}], s{sXOFF} offen offset:{(k%4)*1024} lds", "x")
        if k % 4 == 3:
            A(f"s_add_u32 s{sXOFF}, s{sXOFF}, 4096")
    def qload(step):
        rb = vRaw[step % NB]
        L = [f"s_lshl_b32 s{sT0}, s{sST}, 18", f"s_add_u32 s{sT0}, s{sT0}, s{sQOFF}"]
        for r in range(8):
            L.append((f"buffer_load_dwordx4 {v(rb+4*r,4)}, {v(vWoff+r)}, s[{SWT}:{SWT+3}], s{sT0} offen", f"q{step}"))
        L += [f"s_add_u32 s{sST}, s{sST}, 1", f"s_cmp_eq_u32 s{sST}, 9", f"s_cselect_b32 s{sST}, 0, s{sST}"]
        return L
    emit(qload(0))
    emit(kv_srds())
    srd(A, SWS, KA+14, KA+15, 1 << 30)
    A(f"s_mul_i32 s{sXOFF}, s{sKH}, 576")
    A(f"s_add_u32 s{sXOFF}, s{sXOFF}, {XL}")
    A(f"s_mul_i32 s{sT1}, s{sKH}, {16*1152}")
    A(f"v_mul_u32_u24 {v(vT)}, 1152, {v(vN)}")
    A(f"v_lshl_add_u32 {v(vT)}, {v(vG)}, 4, {v(vT)}")
    A(f"v_add_u32 {v(vXoff)}, s{sT1}, {v(vT)}")
    A(f"s_sub_u32 s{sT1}, {16*1152}, s{sT1}")
    A(f"v_add_u32 {v(vXoff+1)}, s{sT1}, {v(vT)}")
    stamp(0)
    emit(spread(kv_setup() + common_setup(), qload(1) + qload(2)))
    code_warm()
    A.wait_vm("x")
    A("s_barrier")
    A(f"s_mov_b32 s{sT1}, s{sB}")
    for step in range(9):
        A(f"s_lshl_b32 s{sT2}, s{sT1}, 6"); A(f"s_add_u32 s{sT2}, s{sT2}, s{sXOFF}")
        for u in range(2):
            A(f"v_add_u32 {v(vT+u)}, s{sT2}, {v(vXoff+u)}")
            A(f"ds_read_b128 {a(aXf[step]+4*u,4)}, {v(vT+u)}")
        A(f"s_add_u32 s{sT1}, s{sT1}, 1"); A(f"s_cmp_eq_u32 s{sT1}, 9"); A(f"s_cselect_b32 s{sT1}, 0, s{sT1}")
        if step == 5:
            A("s_waitcnt lgkmcnt(4)")
    A("s_waitcnt lgkmcnt(0)")
    A("s_barrier")
    for step in range(9):
        rb = vRaw[step % NB]
        A.wait_vm(f"q{step}")
        stamp(step, 2)
        comp = []
        for j in range(8):
            for t in range(4):
                sel = sSELH if (j & 1) else sSELL
                comp.append(f"v_perm_b32 {v(vFr+4*j+t)}, {v(rb+4*(2*t+1)+j//2)}, {v(rb+4*(2*t)+j//2)}, s{sel}")
        comp.append("s_nop 1")
        for j in range(8):
            for u in range(2):
                acc = a((u * 8 + j) * 4, 4)
                c_ = acc if step > 0 else "0"
                comp.append(f"{M16} {acc}, {v(vFr+4*j,4)}, {a(aXf[step]+4*u,4)}, {c_}")
        if step + 3 < 9:
            nx = qload(step + 3)
        elif step == 6:
            nx = dma_list("G0", first=True)
        elif step == 7:
            nx = dma_list("G1")
        else:
            nx = []
        emit(spread(comp, nx))
    A(f"s_memrealtime s[{sNON}:{sNON+1}]")
    stamp(1)
    stamp(0, 3)
    A(f"s_lshr_b32 s{sT1}, s{sW}, 1")
    A(f"s_mul_i32 s{sT1}, s{sT1}, {VRING + 3*16384 - 4*16384}")
    A(f"s_add_u32 s{sT1}, s{sT1}, {4*16384}")
    A(f"s_lshl_b32 s{sT0}, s{sKH}, 13")
    A(f"s_add_u32 s{sT2}, s{sT1}, s{sT0}")
    A(f"s_xor_b32 s{sT0}, s{sT0}, 8192")
    A(f"s_add_u32 s{sT0}, s{sT1}, s{sT0}")
    A(f"v_add_u32 {v(vT+1)}, s{sT0}, {v(vL16)}")
    A(f"v_add_u32 {v(vT+2)}, s{sT2}, {v(vL16)}")
    for j in range(8):
        A(f"ds_write_b128 {v(vT+1)}, {a((8+j)*4,4)} offset:{j*1024}")
    vDq = vRaw[1]; vG8 = vRaw[2]
    for k in range(32):
        A(f"v_accvgpr_read_b32 {v(vDq+k)}, {a(k)}")
    A("s_waitcnt lgkmcnt(0)")
    A("s_barrier")
    stamp(1, 3)
    for j in range(8):
        A(f"ds_read_b128 {v(vFr+4*j,4)}, {v(vT+2)} offset:{j*1024}")
    A(f"s_lshl_b32 s{sT0}, s{sPR}, 2")
    A(f"s_add_u32 s{sT0}, s{sT0}, s{sW}")
    A(f"s_lshl_b32 s{sQOFF}, s{sT0}, 7")
    A(f"s_add_u32 s{sQOFF}, s{sQOFF}, {FQ}")
    A(f"s_lshl_b32 s{sT0}, s{sT0}, 13")
    A(f"s_add_u32 s{sT1}, s{sT0}, 4096")
    vFR = 240
    A(f"s_getreg_b32 s{sT2}, hwreg(HW_REG_XCC_ID)")
    A(f"v_mov_b32 {v(vFR)}, s{sNON}")
    A(f"v_mov_b32 {v(vFR+1)}, s{sNON+1}")
    A(f"v_mov_b32 {v(vFR+2)}, s{sT2}")
    A(f"v_mov_b32 {v(vFR+3)}, s{sNON}")
    for k in range(16):
        A(f"v_mov_b32 {v(vG8+2*k+1)}, s{sNON}")
    A("s_waitcnt lgkmcnt(0)")
    vC = vRaw[3]
    stamp(2, 3)
    for i in range(4):
        for t in range(4):
            for jj in (2 * t, 2 * t + 1):
                A(f"v_add_f32 {v(vDq+4*jj+i)}, {v(vDq+4*jj+i)}, {v(vFr+4*jj+i)}")
            A(f"v_cvt_pk_bf16_f32 {v(vG8+2*(4*i+t))}, {v(vDq+4*(2*t)+i)}, {v(vDq+4*(2*t+1)+i)}")
            if t % 2 == 1:
                k = 2 * i + t // 2
                A.vmem(f"buffer_store_dwordx4 {v(vG8+4*k,4)}, {v(vL16)}, s[{SWS}:{SWS+3}], s{sT0 if k < 4 else sT1} offen offset:{(k%4)*1024}{ASC1}", "qs")
    A("s_mov_b64 exec, 0xff")
    A.vmem(f"buffer_store_dwordx4 {v(vFR,4)}, {v(vL16)}, s[{SWS}:{SWS+3}], s{sQOFF} offen{ASC1}", "qf")
    A("s_mov_b64 exec, -1")
    A(f"s_add_u32 s{sXOFF}, s{sT0}, {DELTA:#x}")
    stamp(3, 3)
    for k in range(16):
        A(f"v_mov_b32 {v(vC+k)}, {v(vG8+2*k)}")
    q_image(vC)
    stamp(4, 3)
    emit(dma_list("G2"))
    stamp(5, 3)
    A(f"s_add_u32 s{sT1}, s{sXOFF}, 4096")
    A(f"s_add_u32 s{sQOFF}, s{sQOFF}, {DELTA:#x}")
    for k in range(0 if NOBQ else 8):
        A.vmem(f"buffer_store_dwordx4 {v(vG8+4*k,4)}, {v(vL16)}, s[{SWS}:{SWS+3}], s{sXOFF if k < 4 else sT1} offen offset:{(k%4)*1024} sc1", "qs")
    A("s_mov_b64 exec, 0xff")
    A.vmem(f"buffer_store_dwordx4 {v(vFR,4)}, {v(vL16)}, s[{SWS}:{SWS+3}], s{sQOFF} offen sc1", "qf")
    A("s_mov_b64 exec, -1")
    stamp(6, 3)
    emit(spread(loop_init_list(), dma_list("G3")))
    stamp(7, 3)
    A.vmem(f"buffer_load_dwordx2 {v(vT,2)}, off, s[{SWS}:{SWS+3}], s{sLIM}", "pad")
    A(f"s_mov_b32 s{sMRG}, -2")
    A(f"s_mov_b32 s{sFOFF}, {OOB:#x}")
    A(f"s_mov_b32 s{sQOFF}, {OOB:#x}")
    A(f"s_mov_b32 s{sST}, 1000")
    srd(A, SX, KA+10, KA+11, 8 * 32 * 576 * 2)
    A("s_waitcnt lgkmcnt(0)")
    stamp(2)

    fmas = [f"v_fma_f32 {v(vSo+k)}, {v(vSn+k)}, s{sC}, -{v(vMc)}" for k in range(16)]
    def expcvt():
        L = []
        for k in range(16):
            L.append(f"v_exp_f32 {v(vSo+k)}, {v(vSo+k)}")
            if k >= 3 and k % 2 == 1:
                q = (k - 3) // 2
                L.append(f"v_cvt_pk_bf16_f32 {v(vP+q)}, {v(vSo+2*q)}, {v(vSo+2*q+1)}")
        L.append("s_nop 0")
        L.append(f"v_cvt_pk_bf16_f32 {v(vP+7)}, {v(vSo+14)}, {v(vSo+15)}")
        return L
    pvo = [(2, 0), (3, 0), (2, 1), (3, 1), (0, 0), (1, 0), (0, 1), (1, 1)]
    def vread(f):
        D, t = pvo[f]
        return [f"ds_read_b64_tr_b16 {v(vKV+4*f+2*u,2)}, {v(vVa+D)} offset:{(16*t+8*u)*256}" for u in range(2)]
    def pvm(f):
        D, t = pvo[f]
        return f"{M32} {v(vO+16*D,16)}, {v(vKV+4*f,4)}, {v(vP+4*t,4)}, {v(vO+16*D,16)}"
    def lm(t):
        return f"{M16} {v(vLa,4)}, {v(vSel,4)}, {v(vP+4*t,4)}, {v(vLa,4)}"

    A.label("L_loop")
    A("s_waitcnt vmcnt(27)")
    A("s_barrier")
    if STAMPS and PROF == 0:
        A("s_memrealtime s[26:27]")
        A("s_waitcnt lgkmcnt(0)")
        A(f"s_mov_b32 m0, s{sIT}")
        A("s_nop 0")
        A(f"v_writelane_b32 v255, s26, m0")
    kreads = [f"ds_read_b128 {v(vKV+4*s_,4)}, {v(vKa+s_)}" for s_ in range(8)]
    emit(kreads)
    A(f"s_cmp_eq_u32 s{sMRG}, s{sIT}")
    A("s_cbranch_scc1 L_merge")
    A.label("L_merge_ret")
    dl = dma_list()
    fl = f"buffer_load_dwordx2 {v(vF,2)}, off, s[{SWS}:{SWS+3}], s{sFOFF}{POLA if POLA else ' nt'}"
    emit(dl[:3])
    emit(fmas)
    A(f"s_add_u32 s{sSLOT}, s{sSLOT}, 1")
    A(f"s_cmp_ge_u32 s{sSLOT}, 5")
    A(f"s_cselect_b32 s{sDK}, {(-4*16384) & 0xffffffff:#x}, s{sK16}")
    A(f"s_cselect_b32 s{sSLOT}, 0, s{sSLOT}")
    ec = expcvt()
    per = [3, 3, 3, 3, 3, 3, 4, 3]
    assert sum(per) == len(ec), len(ec)
    for s_ in range(8):
        A(f"s_waitcnt lgkmcnt({min(15, 7 - s_ + 2 * s_)})")
        A(f"{M32} {v(vSn,16)}, {v(vKV+4*s_,4)}, {v(vQf+4*s_,4)}, {v(vSn,16) if s_ else 0}")
        emit(vread(s_) if s_ < 7 else [])
        for _ in range(per[s_]):
            A(ec.pop(0))
        if s_ == 3:
            emit([dl[3]])
    A("s_waitcnt lgkmcnt(12)")
    emit(vread(7))
    kadds = [f"v_add_u32 {v(vKa+k)}, s{sDK}, {v(vKa+k)}" for k in range(8)]
    vadds = [f"v_add_u32 {v(vVa+k)}, s{sDV}, {v(vVa+k)}" for k in range(4)]
    mx = [f"v_max3_f32 {v(vMx)}, {v(vSn)}, {v(vSn+1)}, {v(vSn+2)}", f"v_max3_f32 {v(vT)}, {v(vSn+3)}, {v(vSn+4)}, {v(vSn+5)}",
          f"v_max3_f32 {v(vMx)}, {v(vMx)}, {v(vSn+6)}, {v(vSn+7)}", f"v_max3_f32 {v(vT)}, {v(vT)}, {v(vSn+8)}, {v(vSn+9)}",
          f"v_max3_f32 {v(vMx)}, {v(vMx)}, {v(vSn+10)}, {v(vSn+11)}", f"v_max3_f32 {v(vT)}, {v(vT)}, {v(vSn+12)}, {v(vSn+13)}",
          f"v_max3_f32 {v(vMx)}, {v(vMx)}, {v(vSn+14)}, {v(vSn+15)}", f"v_max_f32 {v(vMx)}, {v(vMx)}, {v(vT)}"]
    gaps = [
        [dl[4]] + kadds[:3],
        kadds[3:8],
        [dl[5], dl[6], dl[7]] + vadds[:2],
        vadds[2:] + mx[:3],
        [dl[8]] + mx[3:6],
        mx[6:] + [f"v_mov_b32 {v(vT)}, {v(vMx)}", dl[9], f"s_mov_b32 s{sDV}, s{sDK}"],
        [f"v_permlane32_swap_b32 {v(vMx)}, {v(vT)}", dl[10], f"v_max_f32 {v(vMx)}, {v(vMx)}, {v(vT)}", f"v_sub_f32 {v(vT)}, {v(vMx)}, {v(vM)}"],
        [dl[11], f"v_cmp_lt_f32 vcc, s{sTHR}, {v(vT)}", f"v_cmp_eq_u64 s[{sT0}:{sT0+1}], s[{sNON}:{sNON+1}], {v(vF,2)}"],
    ]
    assert sT0 % 2 == 0 and sT1 == sT0 + 1
    for f in range(8):
        if f in (1, 3, 5, 7):
            A(f"s_waitcnt lgkmcnt({max(0, 16 - 2 * (f + 2))})")
        A(pvm(f))
        emit(gaps[f])
    A(lm(0)); A(fl); A(lm(1))
    emit(dl[12:])
    A("s_cbranch_vccnz L_rescale")
    A.label("L_rescale_ret")
    A(f"s_cmp_lg_u64 s[{sT0}:{sT0+1}], 0")
    A("s_cbranch_scc1 L_dissue")
    A.label("L_dissue_ret")
    A(f"s_cmp_ge_u32 s{sIT}, s{sST}")
    A("s_cbranch_scc1 L_special")
    A.label("L_special_ret")
    A(f"s_add_u32 s{sIT}, s{sIT}, 1")
    if FSTART:
        A(f"s_cmp_eq_u32 s{sIT}, {FSTART}")
        A(f"s_cselect_b32 s{sFOFF}, s{sQOFF}, s{sFOFF}")
    A(f"s_cmp_lt_u32 s{sIT}, s{sN}")
    A("s_cbranch_scc1 L_loop")

    A(f"s_cmp_eq_u32 s{sMRG}, -2")
    A("s_cbranch_scc0 L_late_merge")
    A.label("L_late_merge_ret")
    emit(fmas)
    emit(expcvt())
    A.nop(1)
    A(lm(0)); A(lm(1))
    A("s_waitcnt vmcnt(0)")
    A("s_barrier")
    stamp(3)
    ak = [((N1 + 2 + k) % 5) * 16384 for k in range(3)]
    OF = ak[2]
    MLA = VRING + 16384 * [k for k in range(5) if k not in ((N1 - 1) % 5, (N2 - 1) % 5)][0]
    XA = 0
    for f in range(6):
        emit(vread(f))
    A(f"v_mov_b32 {v(vT)}, {v(vM)}")
    A(f"v_mov_b32 {v(vT+1)}, {v(vLa)}")
    A(f"s_lshl_b32 s{sT0}, s{sW}, 9")
    A(f"s_add_u32 s{sT0}, s{sT0}, {MLA}")
    A(f"v_lshrrev_b32 {v(vT+2)}, 1, {v(vL16)}")
    A(f"v_add_u32 {v(vT+2)}, s{sT0}, {v(vT+2)}")
    A(f"ds_write_b64 {v(vT+2)}, {v(vT,2)}")
    A(f"s_cmp_lt_u32 s{sW}, 2")
    A(f"s_mov_b32 s{sT1}, {ak[1]}")
    A(f"s_cselect_b32 s{sT1}, {ak[0]}, s{sT1}")
    A(f"s_lshl_b32 s{sT2}, s{sKH}, 13")
    A(f"s_add_u32 s{sT1}, s{sT1}, s{sT2}")
    A(f"s_xor_b32 s{sT2}, s{sT1}, 8192")
    A(f"v_add_u32 {v(vT+3)}, s{sT2}, {v(vL16)}")
    A(f"v_xor_b32 {v(vT+2)}, 512, {v(vT+2)}")
    A("s_waitcnt lgkmcnt(9)")
    A(pvm(0)); A(pvm(1))
    emit(vread(6)); emit(vread(7))
    A("s_waitcnt lgkmcnt(9)")
    A(pvm(2)); A(pvm(3))
    A("s_waitcnt lgkmcnt(4)")
    A(pvm(4)); A(pvm(5))
    A("s_waitcnt lgkmcnt(0)")
    A(pvm(6)); A(pvm(7))
    A.nop(6)
    for k in range(8):
        A(f"ds_write_b128 {v(vT+3)}, {v(vO+32+4*k,4)} offset:{XA + k*1024}")
    A(f"v_add_u32 {v(vT+3)}, s{sT1}, {v(vL16)}")
    A("s_waitcnt lgkmcnt(0)")
    A("s_barrier")
    A(f"ds_read_b64 {v(vT,2)}, {v(vT+2)}")
    for k in range(8):
        A(f"ds_read_b128 {v(vO+32+4*k,4)}, {v(vT+3)} offset:{XA + k*1024}")
    A("s_waitcnt lgkmcnt(8)")
    A(f"v_max_f32 {v(vMx)}, {v(vM)}, {v(vT)}")
    A(f"v_mul_f32 {v(vMc)}, s{sC}, {v(vMx)}")
    A(f"v_fma_f32 {v(vAl)}, {v(vM)}, s{sC}, -{v(vMc)}")
    A(f"v_fma_f32 {v(vBe)}, {v(vT)}, s{sC}, -{v(vMc)}")
    A(f"v_exp_f32 {v(vAl)}, {v(vAl)}")
    A(f"v_exp_f32 {v(vBe)}, {v(vBe)}")
    A(f"v_mov_b32 {v(vDml)}, {v(vMx)}")
    A(f"v_mul_f32 {v(vDml+1)}, {v(vAl)}, {v(vLa)}")
    A(f"v_fma_f32 {v(vDml+1)}, {v(vBe)}, {v(vT+1)}, {v(vDml+1)}")
    A(f"v_rcp_f32 {v(vT)}, {v(vDml+1)}")
    A(f"v_and_b32 {v(vT+2)}, 1, {v(vG)}")
    A(f"v_mul_f32 {v(vAl)}, {v(vAl)}, {v(vT)}")
    A(f"v_mul_f32 {v(vBe)}, {v(vBe)}, {v(vT)}")
    A(f"v_lshlrev_b32 {v(vT+2)}, 12, {v(vT+2)}")
    A(f"v_lshrrev_b32 {v(vT+3)}, 1, {v(vG)}")
    A(f"v_lshl_add_u32 {v(vT+2)}, {v(vT+3)}, 8, {v(vT+2)}")
    A(f"v_lshl_add_u32 {v(vT+2)}, {v(vN)}, 4, {v(vT+2)}")
    A(f"s_lshr_b32 s{sT0}, s{sW}, 1")
    A(f"s_lshl_b32 s{sT0}, s{sT0}, 13")
    A(f"s_lshl_b32 s{sT1}, s{sKH}, 11")
    A(f"s_add_u32 s{sT0}, s{sT0}, s{sT1}")
    A(f"s_add_u32 s{sT0}, s{sT0}, {OF}")
    A(f"v_add_u32 {v(vT+2)}, s{sT0}, {v(vT+2)}")
    for k in range(32):
        A(f"v_mul_f32 {v(vO+k)}, {v(vO+k)}, {v(vAl)}")
    A("s_waitcnt lgkmcnt(0)")
    A(f"s_cmp_lt_u32 s2, 128")
    for c in range(4):
        for k in range(8):
            A(f"v_fma_f32 {v(vO+8*c+k)}, {v(vO+32+8*c+k)}, {v(vBe)}, {v(vO+8*c+k)}")
        for k in range(4):
            A(f"v_cvt_pk_bf16_f32 {v(vD+4*c+k)}, {v(vO+8*c+2*k)}, {v(vO+8*c+2*k+1)}")
        A(f"ds_write_b128 {v(vT+2)}, {v(vD+4*c,4)} offset:{(c>>1)*1024 + (c&1)*512}")
    A("s_cbranch_scc1 L_g2_tail")

    A(f"v_add_u32 {v(vT+2)}, {OF}, {v(vL16)}")
    A(f"s_and_b32 s{sT2}, s2, 15")
    A(f"s_lshl_b32 s{sT0}, s{sB}, 4")
    A(f"s_add_u32 s{sT0}, s{sT0}, s{sT2}")
    A(f"s_mul_i32 s{sT0}, s{sT0}, 36864")
    A(f"s_mul_i32 s{sT1}, s{sW}, 9216")
    A(f"s_add_u32 s{sT0}, s{sT0}, s{sT1}")
    A(f"s_add_u32 s{sT0}, s{sT0}, {PY}")
    vB8 = 216
    A(f"v_lshrrev_b32 {v(vT)}, 1, {v(vG)}")
    A(f"v_lshlrev_b32 {v(vT)}, 2, {v(vT)}")
    A(f"v_and_b32 {v(vT+1)}, 1, {v(vG)}")
    A(f"v_add_u32 {v(vT)}, {v(vT)}, {v(vT+1)}")
    A(f"v_lshrrev_b32 {v(vT+1)}, 2, {v(vN)}")
    A(f"v_lshl_add_u32 {v(vT)}, {v(vT)}, 2, {v(vT+1)}")
    A(f"v_and_b32 {v(vT+1)}, 3, {v(vN)}")
    A(f"v_lshlrev_b32 {v(vT+1)}, 3, {v(vT+1)}")
    A(f"v_lshl_add_u32 {v(vT)}, {v(vT)}, 7, {v(vT+1)}")
    A(f"s_lshl_b32 s{sT1}, s{sW}, 5")
    A(f"s_add_u32 s{sT1}, s{sT1}, {(N1 % 5) * 16384}")
    A(f"v_add_u32 {v(vT)}, s{sT1}, {v(vT)}")
    A(f"v_add_u32 {v(vT+1)}, {((((N1 + 1) % 5) - (N1 % 5)) * 16384) & 0xffffffff:#x}, {v(vT)}")
    A("s_waitcnt lgkmcnt(0)")
    for ks in range(8):
        for u in range(2):
            A(f"ds_read_b64_tr_b16 {v(vB8+4*ks+2*u,2)}, {v(vT+(ks>>2))} offset:{(32*(ks&3)+8*u)*128}")
        if ks == 6:
            A("s_waitcnt lgkmcnt(4)")
    A("s_waitcnt lgkmcnt(0)")
    A("s_barrier")
    stamp(4)
    def wfr(ks, j):
        return wreg(ks, 4 * j, 4) if j < 8 else v(vB8 + 4 * ks, 4)
    def acc(rh, j):
        return 144 + 4 * (rh * 9 + j)
    def ofr(rh, ks):
        return v(vQf + 4 * ks, 4) if rh == 0 else v(vO + 4 * ks, 4)
    vPk = 120
    for ks in range(8):
        A(f"ds_read_b128 {ofr(0,ks)}, {v(vT+2)} offset:{(((ks>>2)*2+0)*4+(ks&3))*1024}")
    rd1 = [f"ds_read_b128 {ofr(1,ks)}, {v(vT+2)} offset:{(((ks>>2)*2+1)*4+(ks&3))*1024}" for ks in range(8)]
    for ks in range(8):
        A(f"s_waitcnt lgkmcnt(7)")
        for j in range(9):
            d = v(acc(0, j), 4)
            A(f"{M16} {d}, {ofr(0,ks)}, {wfr(ks,j)}, {d if ks else 0}")
            if j == 0:
                A(rd1[ks])
    A("s_waitcnt lgkmcnt(0)")
    def pack_store(rh):
        L = []
        for i in range(4):
            d = vPk + 4 * i
            for q in range(4):
                L.append(f"v_cvt_pk_bf16_f32 {v(d+q)}, {v(acc(rh,2*q)+i)}, {v(acc(rh,2*q+1)+i)}")
            L.append(f"buffer_store_dwordx4 {v(d,4)}, {v(vL16)}, s[{SWS}:{SWS+3}], s{sT0} offen offset:{i*1024} sc1")
        L.append(f"s_add_u32 s{sT0}, s{sT0}, 4096")
        for q in range(2):
            L.append(f"v_cvt_pk_bf16_f32 {v(136+2*rh+q)}, {v(acc(rh,8)+2*q)}, {v(acc(rh,8)+2*q+1)}")
        return L
    m1 = []
    for ks in range(8):
        for j in range(9):
            d = v(acc(1, j), 4)
            m1.append(f"{M16} {d}, {ofr(1,ks)}, {wfr(ks,j)}, {d if ks else 0}")
    misc = [f"s_lshl_b32 s{sT1}, s{sB}, 13",
            f"s_lshl_b32 s{sQOFF}, s{sW}, 7",
            f"s_add_u32 s{sT1}, s{sT1}, s{sQOFF}",
            f"s_lshl_b32 s{sQOFF}, s{sT2}, 3",
            f"s_add_u32 s{sT1}, s{sT1}, s{sQOFF}",
            f"s_add_u32 s{sT1}, s{sT1}, {FY}",
            f"v_lshlrev_b32 {v(vT)}, 9, {v(vN)}",
            f"s_memrealtime s[{sNON}:{sNON+1}]"]
    emit(m1[:10])
    emit(weave(m1[10:], pack_store(0) + misc, 1))
    stamp(5)
    A.nop(8)
    emit(pack_store(1))
    A(f"buffer_store_dwordx4 {v(136,4)}, {v(vL16)}, s[{SWS}:{SWS+3}], s{sT0} offen sc1")
    stamp(7)
    A("s_waitcnt lgkmcnt(0)")
    A(f"v_mov_b32 {v(vT+2)}, s{sNON}")
    A(f"v_mov_b32 {v(vT+3)}, s{sNON+1}")
    A("s_waitcnt vmcnt(0)")
    A("s_mov_b64 exec, 0xffff")
    A(f"buffer_store_dwordx2 {v(vT+2,2)}, {v(vT)}, s[{SWS}:{SWS+3}], s{sT1} offen sc1")
    A("s_mov_b64 exec, -1")
    stamp(8)
    A("s_branch L_fin")

    A.label("L_g2_tail")
    A(f"s_lshl_b32 s{sT0}, s{sPR}, 2")
    A(f"s_add_u32 s{sT0}, s{sT0}, s{sW}")
    A(f"s_lshl_b32 s{sQOFF}, s{sT0}, 7")
    A(f"s_add_u32 s{sQOFF}, s{sQOFF}, {FO}")
    A(f"s_mul_i32 s{sT0}, s{sT0}, 5120")
    A(f"s_add_u32 s{sT0}, s{sT0}, {OB}")
    A(f"s_add_u32 s{sT1}, s{sT0}, 4096")
    A(f"v_lshrrev_b32 {v(vT)}, 1, {v(vL16)}")
    A(f"v_mov_b32 {v(vF)}, s{sNON}")
    A(f"v_mov_b32 {v(vF+1)}, s{sNON+1}")
    for cp, pol in ((0, ""), (1, " sc1")):
        for c in range(4):
            A(f"buffer_store_dwordx4 {v(vD+4*c,4)}, {v(vL16)}, s[{SWS}:{SWS+3}], s{sT0} offen offset:{c*1024}{pol}")
        A(f"buffer_store_dwordx2 {v(vDml,2)}, {v(vT)}, s[{SWS}:{SWS+3}], s{sT1} offen{pol}")
        if cp == 0:
            stamp(4)
        A("s_waitcnt vmcnt(0)")
        A("s_mov_b64 exec, 0xffff")
        A(f"buffer_store_dwordx2 {v(vF,2)}, {v(vT)}, s[{SWS}:{SWS+3}], s{sQOFF} offen{pol}")
        A("s_mov_b64 exec, -1")
        if cp == 0:
            stamp(5)
            for r in (sT0, sT1, sQOFF):
                A(f"s_add_u32 s{r}, s{r}, {DELTA:#x}")
    sJ = sST
    A(f"s_and_b32 s{sJ}, s2, 15")
    vSA = vQf
    A(f"v_and_b32 {v(vT)}, 1, {v(vN)}")
    A(f"v_lshlrev_b32 {v(vT)}, 4, {v(vT)}")
    A(f"v_mov_b32 {v(vT+1)}, 0x3f80")
    A(f"v_lshlrev_b32 {v(vT+1)}, {v(vT)}, {v(vT+1)}")
    A(f"v_lshrrev_b32 {v(vT)}, 1, {v(vN)}")
    for t in range(4):
        A(f"v_cmp_eq_u32 vcc, {t}, {v(vT)}")
        A.nop(2)
        A(f"v_cndmask_b32 {v(vSA+t)}, 0, {v(vT+1)}, vcc")
    A(f"s_lshl_b32 s{sT0}, s{sB}, 4")
    A(f"s_add_u32 s{sT0}, s{sT0}, s{sJ}")
    A(f"s_lshl_b32 s{sT0}, s{sT0}, 2")
    A(f"s_add_u32 s{sT0}, s{sT0}, s{sW}")
    A(f"s_lshl_b32 s{sT0}, s{sT0}, 7")
    A(f"s_add_u32 s{sQOFF}, s{sT0}, {FY}")
    A(f"v_lshlrev_b32 {v(vT+1)}, 3, {v(vN)}")
    A(f"v_mul_u32_u24 {v(vT)}, 36864, {v(vG)}")
    A(f"v_lshl_add_u32 {v(vT)}, {v(vN)}, 4, {v(vT)}")
    A(f"s_mul_i32 s{sT0}, s{sB}, {16*36864}")
    A(f"s_mul_i32 s{sT1}, s{sW}, 9216")
    A(f"s_add_u32 s{sT0}, s{sT0}, s{sT1}")
    A(f"s_add_u32 s{sT0}, s{sT0}, {PY}")
    A(f"s_lshl_b32 s{sT1}, s{sJ}, 8")
    A(f"s_add_u32 s{sXOFF}, s{sT0}, s{sT1}")
    A(f"s_add_u32 s{sXOFF}, s{sXOFF}, 8192")
    A(f"s_lshl_b32 s{sT1}, s{sJ}, 9")
    A(f"s_add_u32 s{sT0}, s{sT0}, s{sT1}")
    A(f"s_lshr_b32 s{sT1}, s{sJ}, 3")
    A(f"s_lshl_b32 s{sT1}, s{sT1}, 4")
    A(f"s_and_b32 s{sT2}, s{sJ}, 1")
    A(f"s_lshl_b32 s{sT2}, s{sT2}, 3")
    A(f"s_add_u32 s{sT1}, s{sT1}, s{sT2}")
    A(f"s_bfe_u32 s{sT2}, s{sJ}, 0x20001")
    A(f"s_add_u32 s{sT1}, s{sT1}, s{sT2}")
    A(f"s_lshl_b32 s{sT2}, s{sB}, 5")
    A(f"s_add_u32 s{sT1}, s{sT1}, s{sT2}")
    A(f"s_mul_i32 s{sT1}, s{sT1}, 1152")
    A(f"s_lshl_b32 s{sT2}, s{sW}, 8")
    A(f"s_add_u32 s{sT1}, s{sT1}, s{sT2}")
    A(f"s_add_u32 s{sOFF}, s{sT1}, {4*1152}")
    A(f"v_lshlrev_b32 {v(vMx)}, 4, {v(vN)}")
    A(f"v_lshl_add_u32 {v(vMx)}, {v(vG)}, 3, {v(vMx)}")
    A(f"s_mov_b32 s{sT2}, 0")
    A("s_branch L_polly_ld")
    A.label("L_polly")
    A(f"s_sleep {SLEEPY}")
    A.label("L_polly_ld")
    A(f"buffer_load_dwordx2 {v(vT+2,2)}, {v(vT+1)}, s[{SWS}:{SWS+3}], s{sQOFF} offen sc1")
    A("s_waitcnt vmcnt(0)")
    window_check(vT + 2, vF)
    A(f"s_add_u32 s{sT2}, s{sT2}, 1")
    A("s_cmp_eq_u64 vcc, -1")
    A("s_cbranch_scc1 L_polly_done")
    A(f"s_cmp_lt_u32 s{sT2}, {SPIN_MAX}")
    A("s_cbranch_scc1 L_polly")
    A.label("L_polly_done")
    stamp(9)
    vR = vO
    for k in range(4):
        A(f"buffer_load_dwordx4 {v(vR+4*k,4)}, {v(vT)}, s[{SWS}:{SWS+3}], s{sT0} offen sc1")
        A(f"buffer_load_dwordx4 {v(vR+16+4*k,4)}, {v(vT)}, s[{SWS}:{SWS+3}], s{sT0} offen offset:256 sc1")
        A(f"s_add_u32 s{sT0}, s{sT0}, {4*36864}")
    A(f"s_cmp_lt_u32 s{sJ}, 4")
    A("s_cbranch_scc0 L_no_extra_ld")
    for k in range(4):
        A(f"buffer_load_dwordx4 {v(vR+32+4*k,4)}, {v(vT)}, s[{SWS}:{SWS+3}], s{sXOFF} offen sc1")
        A(f"s_add_u32 s{sXOFF}, s{sXOFF}, {4*36864}")
    A.label("L_no_extra_ld")
    A("s_waitcnt vmcnt(0)")
    vS = vSo
    for k in range(4):
        for u in range(2):
            A(f"{M16} {v(vS+4*u,4)}, {v(vSA,4)}, {v(vR+16*u+4*k,4)}, {v(vS+4*u,4) if k else 0}")
    A.nop(8)
    for u in range(2):
        A(f"v_cvt_pk_bf16_f32 {v(vSn+2*u)}, {v(vS+4*u)}, {v(vS+4*u+1)}")
        A(f"v_cvt_pk_bf16_f32 {v(vSn+2*u+1)}, {v(vS+4*u+2)}, {v(vS+4*u+3)}")
    A("s_mov_b32 exec_hi, 0")
    A(f"buffer_store_dwordx2 {v(vSn,2)}, {v(vMx)}, s[{SX}:{SX+3}], s{sT1} offen")
    A(f"buffer_store_dwordx2 {v(vSn+2,2)}, {v(vMx)}, s[{SX}:{SX+3}], s{sOFF} offen")
    A(f"s_mov_b64 exec, -1")
    A(f"s_cmp_lt_u32 s{sJ}, 4")
    A("s_cbranch_scc0 L_fin")
    for k in range(4):
        A(f"{M16} {v(vS+8,4)}, {v(vSA,4)}, {v(vR+32+4*k,4)}, {v(vS+8,4) if k else 0}")
    A(f"s_lshl_b32 s{sT0}, s{sJ}, 2")
    A(f"s_lshl_b32 s{sT1}, s{sB}, 5")
    A(f"s_add_u32 s{sT0}, s{sT0}, s{sT1}")
    A(f"s_mul_i32 s{sT0}, s{sT0}, 1152")
    A(f"s_lshl_b32 s{sT1}, s{sW}, 5")
    A(f"s_add_u32 s{sT0}, s{sT0}, s{sT1}")
    A(f"s_add_u32 s{sT0}, s{sT0}, 1024")
    A(f"v_lshlrev_b32 {v(vT)}, 1, {v(vN)}")
    A.nop(3)
    A(f"v_mul_u32_u24 {v(vT+1)}, {16*1152}, {v(vG)}")
    A(f"v_add_u32 {v(vT)}, {v(vT)}, {v(vT+1)}")
    A.nop(4)
    A(f"v_cvt_pk_bf16_f32 {v(vS+12)}, {v(vS+8)}, {v(vS+9)}")
    A(f"v_cvt_pk_bf16_f32 {v(vS+13)}, {v(vS+10)}, {v(vS+11)}")
    A("s_mov_b32 exec_hi, 0")
    A(f"buffer_store_short {v(vS+12)}, {v(vT)}, s[{SX}:{SX+3}], s{sT0} offen")
    A(f"buffer_store_short_d16_hi {v(vS+12)}, {v(vT)}, s[{SX}:{SX+3}], s{sT0} offen offset:1152")
    A(f"buffer_store_short {v(vS+13)}, {v(vT)}, s[{SX}:{SX+3}], s{sT0} offen offset:2304")
    A(f"buffer_store_short_d16_hi {v(vS+13)}, {v(vT)}, s[{SX}:{SX+3}], s{sT0} offen offset:3456")
    A(f"s_mov_b64 exec, -1")
    A.label("L_fin")
    if STAMPS:
        A("s_waitcnt vmcnt(0)")
        stamp(10)
        A(f"s_lshl_b32 s{sT0}, s2, 2")
        A(f"s_add_u32 s{sT0}, s{sT0}, s{sW}")
        A(f"s_lshl_b32 s{sT1}, s{sT0}, 8")
        A(f"s_lshl_b32 s{sT0}, s{sT0}, 7")
        A(f"s_add_u32 s{sT0}, s{sT0}, {STAMP_BASE}")
        A(f"s_add_u32 s{sT1}, s{sT1}, {STAMP_BASE + (1 << 20)}")
        A(f"v_lshlrev_b32 {v(vT)}, 2, {v(vLane)}")
        A(f"buffer_store_dword v255, {v(vT)}, s[{SWS}:{SWS+3}], s{sT1} offen")
        A.nop(2)
        A(f"v_mov_b32 {v(vT)}, 0")
        A("s_mov_b64 exec, 1")
        for i in range(13):
            src = 56 + 2 * i if i < 12 else sTIM
            A(f"v_mov_b32 {v(vT+2)}, s{src}")
            A(f"v_mov_b32 {v(vT+3)}, s{src+1}")
            A(f"buffer_store_dwordx2 {v(vT+2,2)}, {v(vT)}, s[{SWS}:{SWS+3}], s{sT0} offen offset:{8*i}")
            A.nop(2)
    A.label("L_end")
    A("s_endpgm")

    A.label("L_rescale")
    A(f"v_max_f32 {v(vMx)}, {v(vMx)}, {v(vM)}")
    A(f"v_mul_f32 {v(vMc)}, s{sC}, {v(vMx)}")
    A(f"v_fma_f32 {v(vAl)}, {v(vM)}, s{sC}, -{v(vMc)}")
    A(f"v_exp_f32 {v(vAl)}, {v(vAl)}")
    A(f"v_mov_b32 {v(vM)}, {v(vMx)}")
    A.nop(8)
    for k in list(range(32, 64)) + list(range(32)):
        A(f"v_mul_f32 {v(vO+k)}, {v(vO+k)}, {v(vAl)}")
    for k in range(4):
        A(f"v_mul_f32 {v(vLa+k)}, {v(vLa+k)}, {v(vAl)}")
    A("s_branch L_rescale_ret")

    def d_loads(base, pol):
        A(f"s_lshl_b32 s{sT0}, s{sPR}, 2")
        A(f"s_add_u32 s{sT0}, s{sT0}, s{sW}")
        A(f"s_mul_i32 s{sT0}, s{sT0}, 5120")
        A(f"s_add_u32 s{sT0}, s{sT0}, {base:#x}")
        A(f"s_add_u32 s{sT1}, s{sT0}, 4096")
        A(f"v_lshrrev_b32 {v(vT)}, 1, {v(vL16)}")
        for c in range(4):
            A(f"buffer_load_dwordx4 {v(vD+4*c,4)}, {v(vL16)}, s[{SWS}:{SWS+3}], s{sT0} offen offset:{c*1024}{pol}")
        A(f"buffer_load_dwordx2 {v(vDml,2)}, {v(vT)}, s[{SWS}:{SWS+3}], s{sT1} offen{pol}")
    def merge_code():
        A(f"v_max_f32 {v(vMx)}, {v(vM)}, {v(vDml)}")
        A(f"v_mul_f32 {v(vMc)}, s{sC}, {v(vMx)}")
        A(f"v_fma_f32 {v(vAl)}, {v(vM)}, s{sC}, -{v(vMc)}")
        A(f"v_fma_f32 {v(vBe)}, {v(vDml)}, s{sC}, -{v(vMc)}")
        A(f"v_exp_f32 {v(vAl)}, {v(vAl)}")
        A(f"v_exp_f32 {v(vBe)}, {v(vBe)}")
        A(f"v_mov_b32 {v(vM)}, {v(vMx)}")
        A(f"s_cmp_eq_u32 s{sKH}, 0")
        A(f"s_cselect_b32 s{sT2}, 1.0, 0")
        A(f"v_mul_f32 {v(vBe)}, {v(vBe)}, {v(vDml+1)}")
        A.nop(4)
        A(f"v_mul_f32 {v(vT+1)}, s{sT2}, {v(vBe)}")
        for k in range(32, 64):
            A(f"v_mul_f32 {v(vO+k)}, {v(vO+k)}, {v(vAl)}")
        for k in range(4):
            A(f"v_fma_f32 {v(vLa+k)}, {v(vLa+k)}, {v(vAl)}, {v(vT+1)}")
        for k in range(16):
            A(f"v_lshlrev_b32 {v(vT+2)}, 16, {v(vD+k)}")
            A(f"v_and_b32 {v(vT+3)}, 0xffff0000, {v(vD+k)}")
            A(f"v_mul_f32 {v(vO+2*k)}, {v(vO+2*k)}, {v(vAl)}")
            A(f"v_mul_f32 {v(vO+2*k+1)}, {v(vO+2*k+1)}, {v(vAl)}")
            A(f"v_fma_f32 {v(vO+2*k)}, {v(vT+2)}, {v(vBe)}, {v(vO+2*k)}")
            A(f"v_fma_f32 {v(vO+2*k+1)}, {v(vT+3)}, {v(vBe)}, {v(vO+2*k+1)}")
        A(f"s_mov_b32 s{sMRG}, -2")

    A.label("L_special")
    A(f"s_cmp_eq_u32 s{sIT}, {N1-5}")
    A("s_cbranch_scc0 L_special2")
    A(f"s_add_u32 s{sT0}, s{sXOFF}, 1024")
    A(f"s_add_u32 s{SK}, s{KA+8}, s{sT0}")
    A(f"s_addc_u32 s{SK+1}, s{KA+9}, 0")
    A(f"s_sub_u32 s{SK}, s{SK}, {N1*16384}")
    A(f"s_subb_u32 s{SK+1}, s{SK+1}, 0")
    A(f"s_and_b32 s{SK+1}, s{SK+1}, 0xffff")
    A(f"s_mov_b32 s{SK+2}, {N1*16384 + 256*1152 - 1024}")
    A(f"v_lshrrev_b32 {v(vT)}, 3, {v(vLane)}")
    A(f"v_mul_u32_u24 {v(vT)}, 1152, {v(vT)}")
    A(f"v_and_b32 {v(vT+1)}, 7, {v(vLane)}")
    A(f"v_lshl_add_u32 {v(vT)}, {v(vT+1)}, 4, {v(vT)}")
    A(f"s_mul_i32 s{sT0}, s{sW}, {36864 - 4096}")
    for p in range(4):
        A(f"v_add_u32 {v(vKoff+p)}, s{sT0}, {v(vT)}")
        A(f"s_add_u32 s{sT0}, s{sT0}, {9216 - 1024}")
    A("s_branch L_special_ret")
    A.label("L_special2")
    A(f"s_cmp_eq_u32 s{sIT}, {N1-4}")
    A("s_cbranch_scc0 L_special3")
    for p in range(4):
        A(f"v_add_u32 {v(vKoff+p)}, {128*1152 - 16384}, {v(vKoff+p)}")
    A("s_branch L_special_ret")
    A.label("L_special3")
    A(f"s_mov_b32 s{SK+2}, 0")
    A(f"s_mov_b32 s{sST}, 1000")
    A("s_branch L_special_ret")

    A.label("L_dissue")
    A(f"s_cmp_eq_u32 s{sMRG}, -1")
    A("s_cbranch_scc0 L_dissue_ret")
    d_loads(OB, POLA)
    A(f"s_add_u32 s{sMRG}, s{sIT}, 4")
    A(f"s_mov_b32 s{sFOFF}, {OOB:#x}")
    stamp(6)
    A("s_branch L_dissue_ret")

    A.label("L_merge")
    merge_code()
    stamp(11)
    A("s_branch L_merge_ret")

    A.label("L_late_merge")
    A(f"s_cmp_eq_u32 s{sMRG}, -1")
    A("s_cbranch_scc0 L_late_wait")
    A(f"s_mov_b32 s{sT2}, 0")
    A(f"s_lshl_b32 s{sFOFF}, s{sPR}, 2")
    A(f"s_add_u32 s{sFOFF}, s{sFOFF}, s{sW}")
    A(f"s_lshl_b32 s{sFOFF}, s{sFOFF}, 7")
    A(f"s_add_u32 s{sFOFF}, s{sFOFF}, {FO + DELTA:#x}")
    A.label("L_pollo")
    A(f"buffer_load_dwordx2 {v(vF,2)}, off, s[{SWS}:{SWS+3}], s{sFOFF} sc1")
    A("s_waitcnt vmcnt(0)")
    A(f"v_cmp_eq_u64 vcc, s[{sNON}:{sNON+1}], {v(vF,2)}")
    A(f"s_add_u32 s{sT2}, s{sT2}, 1")
    A("s_cbranch_vccnz L_pollo_done")
    A(f"s_sleep {SLEEP}")
    A(f"s_cmp_lt_u32 s{sT2}, {SPIN_MAX}")
    A("s_cbranch_scc1 L_pollo")
    A.label("L_pollo_done")
    d_loads(OB + DELTA, " sc1")
    stamp(6)
    A.label("L_late_wait")
    A("s_waitcnt vmcnt(0)")
    merge_code()
    stamp(11)
    A("s_branch L_late_merge_ret")
    A.label("L_code_end")
    return A.text()

def main():
    k = gen()
    out = f"""; generated by gen7.py
; @launch grid=(256,1,1) block=(256,1,1) lds=163840
.amdgcn_target "amdgcn-amd-amdhsa--gfx950"
.text
"""
    out += kernel_head(NAME) + k
    out += '.section .rodata,"a"\n.p2align 6\n'
    out += kernel_desc(NAME, 512, 256, 102)
    open(sys.argv[1], "w").write(out)

main()
```

```python
import sys, struct
from asmlib import *

NAME = "standalone__sliding_block_cached__sampling_kernel"
OPTS = set(sys.argv[2:])
STAMPS = "stamps" in OPTS
def opt(name, default):
    for o in OPTS:
        if o.startswith(name + "="):
            return int(o.split("=")[1])
    return default
N1 = opt("n1", 17)
N2 = 32 - N1
SLEEP = opt("sleep", 2)
SLEEPY = opt("sleepy", 2)
PROF = opt("prof", 0)
THR = 8.0
POLK = " nt" if opt("polk", 1) else ""
POLV = " nt" if opt("polv", 1) else ""
XSWAP = opt("xswap", 1)
CODEWARM = opt("codewarm", 1)
QAT = opt("qat", 8)
SK_IT = opt("skip", 6)
NGB = opt("ngb", 2)
RAT = opt("rat", 2)

ND = 2 if SK_IT else 3

def f32bits(x):
    return struct.unpack("<I", struct.pack("<f", x))[0]

SCALE_C = (128 ** -0.5) * 1.4426950408889634
QB = 0
OB = 4 << 20
FQ = 12 << 20
FY = 13 << 20
PY = 16 << 20
STAMP_BASE = 64 << 20
SPIN_MAX = 1 << 20
VRING = 81920
OOB = 0x7ff00000
M32 = "v_mfma_f32_32x32x16_bf16"
M16 = "v_mfma_f32_16x16x32_bf16"

def srd(A, d, lo, hi, nbytes):
    A(f"s_mov_b32 s{d}, s{lo}")
    A(f"s_and_b32 s{d+1}, s{hi}, 0xffff")
    A(f"s_mov_b32 s{d+2}, {nbytes:#x}")
    A(f"s_mov_b32 s{d+3}, 0x20000")

def weave(main, fill, per):
    out = []; fill = list(fill)
    for m in main:
        out.append(m)
        for _ in range(per):
            if fill:
                out.append(fill.pop(0))
    return out + fill

def spread(main, fill):
    out = []; n, k = len(main), len(fill); fi = 0
    for i, m in enumerate(main):
        out.append(m)
        while fi < k and (fi + 1) * n <= (i + 1) * k:
            out.append(fill[fi]); fi += 1
    return out + list(fill[fi:])

def gen():
    A = Asm()
    def emit(lst):
        for x in lst:
            if isinstance(x, tuple):
                A.vmem(x[0], x[1])
            else:
                A(x)
    def stamp(i, mode=0):
        if STAMPS and mode == PROF:
            assert i < 12
            A(f"s_memrealtime s[{56+2*i}:{57+2*i}]")
            A("s_waitcnt lgkmcnt(0)")
    SK, SV, SX, SWT, SWS = 4, 8, 12, 16, 20
    sWIN = 24
    sA0, sA1 = 26, 27
    sNON = 28
    sTIM = 30
    (sW, sKVH, sB, sPR, sOFF, sOFFc, sRK, sMK, sMV, sC, sSELL, sSELH, sT0, sT1, sT2, sLIM, sDK,
     sQOFF, sXOFF, sM0B, sST, sN, sIT, sSLOT) = range(32, 56)
    sM64, sTHR, sK16, sDV, sKH = 96, 98, 99, 100, 101
    KA = 80
    vL16, vVoff, vM = 1, 2, 3
    vKoff, vT, vKa, vVa = 4, 8, 12, 20
    vMc, vMx, vAl, vBe = 24, 25, 26, 27
    vSel, vLa, vQf = 28, 32, 36
    vX = 68
    vO, vSo, vSn, vKV = 88, 152, 168, 184
    vR = 216
    vLane, vG, vN = 252, 253, 254
    vP = vSo
    XL = 65536
    QIMG = VRING + 16384

    A("s_cmp_ge_u32 s2, 256")
    A("s_cbranch_scc1 L_end")
    A(f"s_load_dwordx16 s[{KA}:{KA+15}], s[0:1], 0")
    A(f"s_memrealtime s[{sTIM}:{sTIM+1}]")
    if XSWAP:
        A("s_lshr_b32 s3, s2, 7")
        A("s_xor_b32 s2, s2, s3")
    A(f"v_lshrrev_b32 {v(vT)}, 6, v0")
    A(f"v_and_b32 {v(vLane)}, 63, v0")
    A(f"v_readfirstlane_b32 s{sW}, {v(vT)}")
    A(f"v_lshrrev_b32 {v(vG)}, 4, {v(vLane)}")
    A(f"v_and_b32 {v(vN)}, 15, {v(vLane)}")
    A(f"s_and_b32 s{sKVH}, s2, 7")
    A(f"s_lshl_b32 s{sKVH}, s{sKVH}, 1")
    A(f"s_bfe_u32 s{sB}, s2, 0x10003")
    A(f"s_add_u32 s{sKVH}, s{sKVH}, s{sB}")
    A(f"s_bfe_u32 s{sB}, s2, 0x30004")
    A(f"s_and_b32 s{sPR}, s2, 127")
    A(f"s_lshl_b32 s{sT0}, s{sB}, 25")
    A(f"s_lshl_b32 s{sT1}, s{sKVH}, 21")
    A(f"s_add_u32 s{sT0}, s{sT0}, s{sT1}")
    A(f"s_add_u32 s{sT0}, s{sT0}, {6144*256}")
    A(f"s_add_u32 s{sT1}, s{sT0}, {N1*16384}")
    A(f"s_cmp_ge_u32 s2, 128")
    A(f"s_cselect_b32 s{sT2}, s{sT0}, s{sT1}")
    A(f"s_cselect_b32 s{sN}, {N1}, {N2}")
    A(f"s_lshl_b32 s{sM0B}, s{sW}, 12")
    A(f"s_add_u32 s{sLIM}, s{sM0B}, {VRING}")
    A(f"s_and_b32 s{sKH}, s{sW}, 1")
    A(f"v_lshlrev_b32 {v(vL16)}, 4, {v(vLane)}")

    def kv_setup():
        L = []
        for p in range(4):
            L += [f"v_or_b32 {v(vT)}, {4*p}, {v(vG)}", f"v_xor_b32 {v(vT)}, {v(vT)}, {v(vN)}",
                  f"v_lshlrev_b32 {v(vT)}, 4, {v(vT)}", f"v_lshl_add_u32 {v(vKoff+p)}, {v(vG)}, 8, {v(vT)}"]
        L += [f"v_lshlrev_b32 {v(vT)}, 2, {v(vG)}", f"v_xor_b32 {v(vT)}, {v(vT)}, {v(vN)}",
              f"v_lshlrev_b32 {v(vT)}, 4, {v(vT)}", f"v_lshl_add_u32 {v(vVoff)}, {v(vG)}, 8, {v(vT)}"]
        return L
    def kv_srds():
        return [f"s_add_u32 s{SK}, s{KA+2}, s{sT2}", f"s_addc_u32 s{SK+1}, s{KA+3}, 0", f"s_and_b32 s{SK+1}, s{SK+1}, 0xffff",
                f"s_lshl_b32 s{SK+2}, s{sN}, 14", f"s_mov_b32 s{SK+3}, 0x20000",
                f"s_sub_u32 s{sT2}, s{sT2}, 16384",
                f"s_add_u32 s{SV}, s{KA+4}, s{sT2}", f"s_addc_u32 s{SV+1}, s{KA+5}, 0", f"s_and_b32 s{SV+1}, s{SV+1}, 0xffff",
                f"s_add_u32 s{SV+2}, s{SK+2}, 16384", f"s_mov_b32 s{SV+3}, 0x20000",
                f"s_mov_b32 s{sOFF}, s{sM0B}", f"s_mov_b32 s{sRK}, s{sM0B}"]
    def dma_list(tag=None, first=False):
        L = [f"s_mov_b32 m0, s{sRK}", f"s_add_u32 s{sMK}, s{sRK}, 16384"]
        for p in range(4):
            ln = f"buffer_load_dwordx4 {v(vKoff+p)}, s[{SK}:{SK+3}], s{sOFF} offen offset:{p*1024}{POLK} lds"
            L.append((ln, tag) if tag else ln)
        L += [f"s_cmp_ge_u32 s{sMK}, s{sLIM}", f"s_cselect_b32 s{sRK}, s{sM0B}, s{sMK}", f"s_add_u32 m0, s{sRK}, {VRING}", "s_nop 0"]
        for p in range(0 if first else 4):
            ln = f"buffer_load_dwordx4 {v(vVoff)}, s[{SV}:{SV+3}], s{sOFF} offen offset:{p*1024}{POLV} lds"
            L.append((ln, tag) if tag else ln)
        L += [f"s_add_u32 s{sOFF}, s{sOFF}, 16384"]
        return L
    def common_setup():
        L = [f"s_mov_b32 s{sC}, {f32bits(SCALE_C):#x}", f"s_mov_b32 s{sTHR}, {f32bits(THR / SCALE_C):#x}",
             f"s_mov_b32 s{sSELL}, 0x05040100", f"s_mov_b32 s{sSELH}, 0x07060302", f"s_mov_b32 s{sK16}, 16384",
             f"s_mov_b32 s{sWIN}, 0x1000000", f"s_mov_b32 s{sWIN+1}, 0"]
        L += [f"v_and_b32 {v(vT)}, 31, {v(vLane)}",
              f"v_lshlrev_b32 {v(vT)}, 8, {v(vT)}",
              f"v_mov_b32 {v(vT+1)}, s{sKH}",
              f"v_lshl_add_u32 {v(vT)}, {v(vT+1)}, 13, {v(vT)}",
              f"v_lshrrev_b32 {v(vT+2)}, 5, {v(vLane)}",
              f"v_xor_b32 {v(vT+2)}, {v(vT+2)}, {v(vN)}"]
        for s_ in range(8):
            L += [f"v_xor_b32 {v(vT+3)}, {2*s_}, {v(vT+2)}",
                  f"v_lshl_add_u32 {v(vKa+s_)}, {v(vT+3)}, 4, {v(vT)}"]
        L += [f"v_lshrrev_b32 {v(vT+2)}, 2, {v(vN)}",
              f"v_lshrrev_b32 {v(vT)}, 5, {v(vLane)}",
              f"v_lshl_add_u32 {v(vT)}, {v(vT)}, 2, {v(vT+2)}",
              f"v_lshlrev_b32 {v(vT)}, 8, {v(vT)}",
              f"v_lshl_add_u32 {v(vT)}, {v(vT+1)}, 13, {v(vT)}",
              f"v_and_b32 {v(vT+3)}, 3, {v(vN)}",
              f"v_lshl_add_u32 {v(vT)}, {v(vT+3)}, 3, {v(vT)}",
              f"v_and_b32 {v(vT+3)}, 1, {v(vG)}",
              f"v_lshl_add_u32 {v(vT)}, {v(vT+3)}, 5, {v(vT)}",
              f"v_add_u32 {v(vT)}, {QIMG}, {v(vT)}",
              f"v_lshlrev_b32 {v(vT+1)}, 1, {v(vT+1)}",
              f"v_xor_b32 {v(vT+2)}, {v(vT+2)}, {v(vT+1)}"]
        for D in range(4):
            L += [f"v_xor_b32 {v(vT+3)}, {D}, {v(vT+2)}",
                  f"v_lshl_add_u32 {v(vVa+D)}, {v(vT+3)}, 6, {v(vT)}"]
        L += [f"v_lshrrev_b32 {v(vT)}, 2, {v(vN)}",
              f"v_xor_b32 {v(vT)}, {v(vT)}, {v(vG)}",
              f"v_and_b32 {v(vT)}, 1, {v(vT)}",
              f"v_add_u32 {v(vT)}, -1, {v(vT)}",
              f"v_and_b32 {v(vSel)}, 0x3f803f80, {v(vT)}",
              f"v_mov_b32 {v(vSel+1)}, {v(vSel)}", f"v_mov_b32 {v(vSel+2)}, {v(vSel)}", f"v_mov_b32 {v(vSel+3)}, {v(vSel)}"]
        return L
    def init_list():
        L = [f"v_mov_b32 {v(vO+k)}, 0" for k in range(64)] + [f"v_mov_b32 {v(vLa+k)}, 0" for k in range(4)]
        L += [f"v_mov_b32 {v(vM)}, 0xff800000", f"v_mov_b32 {v(vMc)}, 0"] + [f"v_mov_b32 {v(vSn+k)}, 0xff800000" for k in range(16)]
        L += [f"s_mov_b32 s{sSLOT}, 1", f"s_mov_b32 s{sIT}, 0", f"s_mov_b32 s{sDK}, 16384"]
        return L
    def q_image(vC, mid=()):
        A(f"v_lshlrev_b32 {v(vT+2)}, 4, {v(vN)}")
        A(f"v_lshl_add_u32 {v(vT+2)}, {v(vG)}, 11, {v(vT+2)}")
        A(f"s_lshr_b32 s{sT1}, s{sW}, 1")
        A(f"s_lshl_b32 s{sT1}, s{sT1}, 13")
        A(f"s_add_u32 s{sT1}, s{sT1}, {QIMG}")
        A(f"s_lshl_b32 s{sT2}, s{sKH}, 8")
        A(f"s_add_u32 s{sT2}, s{sT2}, s{sT1}")
        A(f"v_add_u32 {v(vT+2)}, s{sT2}, {v(vT+2)}")
        for i in range(4):
            A(f"ds_write_b128 {v(vT+2)}, {v(vC+4*i,4)} offset:{(i>>1)*1024 + (i&1)*512}")
        A(f"v_add_u32 {v(vT+3)}, s{sT1}, {v(vL16)}")
        emit(mid)
        A("s_waitcnt lgkmcnt(0)")
        A("s_barrier")
        for s_ in range(8):
            A(f"ds_read_b128 {v(vQf+4*s_,4)}, {v(vT+3)} offset:{s_*1024}")

    fmas = [f"v_fma_f32 {v(vSo+k)}, {v(vSn+k)}, s{sC}, -{v(vMc)}" for k in range(16)]
    def expcvt():
        L = []
        for k in range(16):
            L.append(f"v_exp_f32 {v(vSo+k)}, {v(vSo+k)}")
            if k >= 3 and k % 2 == 1:
                q = (k - 3) // 2
                L.append(f"v_cvt_pk_bf16_f32 {v(vP+q)}, {v(vSo+2*q)}, {v(vSo+2*q+1)}")
        L.append("s_nop 0")
        L.append(f"v_cvt_pk_bf16_f32 {v(vP+7)}, {v(vSo+14)}, {v(vSo+15)}")
        return L
    pvo = [(2, 0), (3, 0), (2, 1), (3, 1), (0, 0), (1, 0), (0, 1), (1, 1)]
    def vread(f):
        D, t = pvo[f]
        return [f"ds_read_b64_tr_b16 {v(vKV+4*f+2*u,2)}, {v(vVa+D)} offset:{(16*t+8*u)*256}" for u in range(2)]
    def pvm(f):
        D, t = pvo[f]
        return f"{M32} {v(vO+16*D,16)}, {v(vKV+4*f,4)}, {v(vP+4*t,4)}, {v(vO+16*D,16)}"
    def lm(t):
        return f"{M16} {v(vLa,4)}, {v(vSel,4)}, {v(vP+4*t,4)}, {v(vLa,4)}"
    def body(mem, tail_salu, lab):
        if STAMPS and PROF == 0:
            A("s_memrealtime s[96:97]")
            A("s_waitcnt lgkmcnt(0)")
            A(f"s_mov_b32 m0, s{sIT}")
            A("s_nop 0")
            A(f"v_writelane_b32 v255, s96, m0")
        emit([f"ds_read_b128 {v(vKV+4*s_,4)}, {v(vKa+s_)}" for s_ in range(8)])
        emit(mem[0])
        emit(fmas)
        A(f"s_add_u32 s{sSLOT}, s{sSLOT}, 1")
        A(f"s_cmp_ge_u32 s{sSLOT}, 5")
        A(f"s_cselect_b32 s{sDV}, {(-4*16384) & 0xffffffff:#x}, s{sK16}")
        A(f"s_cselect_b32 s{sSLOT}, 0, s{sSLOT}")
        ec = expcvt()
        per = [3, 3, 3, 3, 3, 3, 4, 3]
        for s_ in range(8):
            A(f"s_waitcnt lgkmcnt({7 + s_})")
            A(f"{M32} {v(vSn,16)}, {v(vKV+4*s_,4)}, {v(vQf+4*s_,4)}, {v(vSn,16) if s_ else 0}")
            emit(vread(s_) if s_ < 7 else [])
            for _ in range(per[s_]):
                A(ec.pop(0))
            if s_ == 3:
                emit(mem[1])
        A("s_waitcnt lgkmcnt(12)")
        emit(vread(7))
        kadds = [f"v_add_u32 {v(vKa+k)}, s{sDK}, {v(vKa+k)}" for k in range(8)]
        vadds = [f"v_add_u32 {v(vVa+k)}, s{sDV}, {v(vVa+k)}" for k in range(4)]
        mx = [f"v_max3_f32 {v(vMx)}, {v(vSn)}, {v(vSn+1)}, {v(vSn+2)}", f"v_max3_f32 {v(vT)}, {v(vSn+3)}, {v(vSn+4)}, {v(vSn+5)}",
              f"v_max3_f32 {v(vMx)}, {v(vMx)}, {v(vSn+6)}, {v(vSn+7)}", f"v_max3_f32 {v(vT)}, {v(vT)}, {v(vSn+8)}, {v(vSn+9)}",
              f"v_max3_f32 {v(vMx)}, {v(vMx)}, {v(vSn+10)}, {v(vSn+11)}", f"v_max3_f32 {v(vT)}, {v(vT)}, {v(vSn+12)}, {v(vSn+13)}",
              f"v_max3_f32 {v(vMx)}, {v(vMx)}, {v(vSn+14)}, {v(vSn+15)}", f"v_max_f32 {v(vMx)}, {v(vMx)}, {v(vT)}"]
        gaps = [
            mem[2] + kadds[:3],
            kadds[3:8],
            mem[3] + vadds[:2],
            vadds[2:] + mx[:3],
            mem[4] + mx[3:6],
            mx[6:] + [f"v_mov_b32 {v(vT)}, {v(vMx)}"] + mem[5] + [f"s_mov_b32 s{sDK}, s{sDV}"],
            [f"v_permlane32_swap_b32 {v(vMx)}, {v(vT)}"] + mem[6] + ["s_nop 0", f"v_max_f32 {v(vMx)}, {v(vMx)}, {v(vT)}", f"v_sub_f32 {v(vT)}, {v(vMx)}, {v(vM)}"],
            mem[7] + [f"v_cmp_lt_f32 vcc, s{sTHR}, {v(vT)}"],
        ]
        for f in range(8):
            if f in (1, 3, 5, 7):
                A(f"s_waitcnt lgkmcnt({max(0, 16 - 2 * (f + 2))})")
            A(pvm(f))
            emit(gaps[f])
        A(lm(0)); A(lm(1))
        emit(tail_salu)
        A(f"s_cbranch_vccz L_nors{lab}")
        A(f"s_call_b64 s[{sM64}:{sM64+1}], L_rescale")
        A.label(f"L_nors{lab}")

    A(f"s_cmp_lt_u32 s2, 128")
    A("s_cbranch_scc1 L_g2")

    emit(kv_setup())
    A(f"s_mul_i32 s{sXOFF}, s{sKVH}, {256*1152}")
    A(f"s_mul_i32 s{sT0}, s{sB}, 36864")
    A(f"s_mul_i32 s{sT1}, s{sW}, 9216")
    A(f"s_add_u32 s{sT0}, s{sT0}, s{sT1}")
    A(f"s_add_u32 s{sT0}, s{sT0}, s{sXOFF}")
    A(f"v_lshlrev_b32 {v(vT)}, 7, {v(vLane)}")
    A("s_waitcnt lgkmcnt(0)")
    srd(A, SWT, KA+8, KA+9, 576 * 4096 * 2)
    A.vmem(f"buffer_load_dword {v(vAl)}, {v(vT)}, s[{SWT}:{SWT+3}], s{sT0} offen", "pw")
    A.vmem(f"buffer_load_dword {v(vBe)}, {v(vT)}, s[{SWT}:{SWT+3}], s{sT0} offen offset:1024", "pw")
    emit(kv_srds())
    emit(dma_list("G", first=True))
    emit(dma_list("G"))
    srd(A, SWS, KA+14, KA+15, 1 << 30)
    emit(common_setup())
    if CODEWARM:
        A(f"s_cmp_eq_u32 s{sB}, 0")
        A("s_cbranch_scc0 L_nocw")
        for x in [f"s_getpc_b64 s[{sT0}:{sT0+1}]", "L_pc:", f"s_sub_u32 s{sT0}, s{sT0}, L_pc-{NAME}", f"s_subb_u32 s{sT1}, s{sT1}, 0",
                  f"v_mov_b32 {v(vT+1)}, s{sW}", f"v_lshlrev_b32 {v(vT+1)}, 13, {v(vT+1)}", f"v_lshl_add_u32 {v(vT+1)}, {v(vLane)}, 7, {v(vT+1)}",
                  f"v_min_u32 {v(vT+1)}, L_code_end-{NAME}-4, {v(vT+1)}",
                  f"global_load_dword {v(vMx)}, {v(vT+1)}, s[{sT0}:{sT0+1}]"]:
            A(x)
        A.label("L_nocw")
    vWm, vTmp = 68, 72
    A(f"v_lshrrev_b32 {v(vT)}, 1, {v(vG)}")
    A(f"v_lshlrev_b32 {v(vT)}, 2, {v(vT)}")
    A(f"v_and_b32 {v(vT+1)}, 1, {v(vG)}")
    A(f"v_add_u32 {v(vT)}, {v(vT)}, {v(vT+1)}")
    A(f"v_mul_u32_u24 {v(vT)}, {4*1152}, {v(vT)}")
    A(f"s_lshl_b32 s{sT0}, s{sW}, 8")
    A(f"v_lshl_add_u32 {v(vWm)}, {v(vN)}, 4, {v(vT)}")
    A(f"v_add_u32 {v(vWm)}, s{sT0}, {v(vWm)}")
    A(f"v_add_u32 {v(vWm+1)}, {8*1152}, {v(vWm)}")
    for g_ in range(2, 5):
        emit(dma_list("G"))
    stamp(0)
    rawat = [88 + 32 * (k % 5) for k in range(8)]
    def wo_issue(k):
        T = rawat[k]
        L = [f"s_add_u32 s{sT2}, s{sXOFF}, {k*32*1152}"]
        for e in range(8):
            L.append((f"buffer_load_dwordx4 {v(T+4*e,4)}, {v(vWm+(e>>2))}, s[{SWT}:{SWT+3}], s{sT2} offen offset:{(e&3)*1152}", f"w{k}"))
        return L
    def wo_transpose(k):
        T = rawat[k]
        L = []; cnt = 0
        for j in range(8):
            for t in range(4):
                tmp = vTmp + (cnt % 8); cnt += 1
                L.append(f"v_perm_b32 {v(tmp)}, {v(T+4*(2*t+1)+j//2)}, {v(T+4*(2*t)+j//2)}, s{sSELH if (j & 1) else sSELL}")
                L.append(f"v_accvgpr_write_b32 {a(32*k+4*j+t)}, {v(tmp)}")
        return L
    A(f"s_lshl_b32 s{sT0}, s{sPR}, 2")
    A(f"s_add_u32 s{sT0}, s{sT0}, s{sW}")
    A(f"s_lshl_b32 s{sQOFF}, s{sT0}, 7")
    A(f"s_add_u32 s{sQOFF}, s{sQOFF}, {FQ}")
    A(f"s_lshl_b32 s{sST}, s{sT0}, 13")
    A(f"s_sub_u32 s{sA0}, s{sTIM}, 1000")
    A(f"s_subb_u32 s{sA1}, s{sTIM+1}, 0")
    vQL = 36
    def q_batch():
        L = [(f"buffer_load_dwordx2 {v(vT,2)}, off, s[{SWS}:{SWS+3}], s{sQOFF} sc1", "qb"), f"s_add_u32 s{sT0}, s{sST}, 4096"]
        for k in range(8):
            L.append((f"buffer_load_dwordx4 {v(vQL+4*k,4)}, {v(vL16)}, s[{SWS}:{SWS+3}], s{sST if k < 4 else sT0} offen offset:{(k%4)*1024} sc1", "qb"))
        return L
    emit(wo_issue(0))
    emit(wo_issue(1))
    A("s_waitcnt vmcnt(40)"); A.retired = len(A.vm) - 40
    emit(wo_issue(2))
    emit(wo_issue(3))
    for k in range(8):
        A.wait_vm(f"w{k}")
        stamp(k, 2)
        nx = wo_issue(k + 4) if k + 4 < 8 else (q_batch() if k == QAT else [])
        emit(spread(wo_transpose(k), nx))
    stamp(1)
    if QAT == 8:
        emit(q_batch())
    emit(init_list())
    A(f"s_mov_b32 s{sT2}, 0")
    A("s_branch L_pollq_chk")
    A.label("L_pollq")
    A(f"s_sleep {SLEEP}")
    for x in q_batch():
        A(x[0] if isinstance(x, tuple) else x)
    A.label("L_pollq_chk")
    A(f"v_mov_b32 {v(vT+3)}, s{sA1}")
    A("s_waitcnt vmcnt(0)")
    for k in range(16):
        A(f"v_xor_b32 {v(vQL+2*k+1)}, {v(vQL+2*k+1)}, {v(vT)}")
        A(f"v_mov_b32 {v(vKV+k)}, {v(vQL+2*k)}")
    for k in range(1, 15, 2):
        A(f"v_or3_b32 {v(vQL+1)}, {v(vQL+1)}, {v(vQL+2*k+1)}, {v(vQL+2*k+3)}")
    A(f"v_subrev_co_u32 {v(vT+2)}, vcc, s{sA0}, {v(vT)}")
    A(f"v_subb_co_u32 {v(vT+3)}, vcc, {v(vT+1)}, {v(vT+3)}, vcc")
    A(f"v_or3_b32 {v(vT+3)}, {v(vT+3)}, {v(vQL+1)}, {v(vQL+31)}")
    A(f"v_cmp_le_u64 vcc, s[{sWIN}:{sWIN+1}], {v(vT+2,2)}")
    A(f"s_add_u32 s{sT2}, s{sT2}, 1")
    A("s_cbranch_vccz L_pollq_done")
    A(f"s_cmp_lt_u32 s{sT2}, {SPIN_MAX}")
    A("s_cbranch_scc1 L_pollq")
    A.label("L_pollq_done")
    A(f"v_readfirstlane_b32 s{sNON}, {v(vT)}")
    q_image(vKV)
    A(f"s_mov_b32 s{sST}, {N1-2-ND}")
    A("s_waitcnt lgkmcnt(0)")
    stamp(2)
    A.label("L_nodma")
    body([[] for _ in range(8)], [], "f")
    A("s_branch L_loop_end")

    A.label("L_g2")
    A.vm = []; A.retired = 0
    NB = 5
    vRaw = [88 + 32 * i for i in range(NB)]
    vFr = 36
    vWoff = 68; vXoff = 76
    aXf = [64 + 8 * i for i in range(9)]
    A(f"v_lshlrev_b32 {v(vT)}, 16, {v(vG)}")
    A(f"v_lshl_add_u32 {v(vT)}, {v(vN)}, 4, {v(vT)}")
    for r in range(8):
        A(f"v_add_u32 {v(vWoff+r)}, {r*8192}, {v(vT)}")
    A(f"s_mov_b32 s{sST}, s{sB}")
    A(f"s_mul_i32 s{sQOFF}, s{sKH}, {288*8192}")
    A(f"s_lshl_b32 s{sT1}, s{sKVH}, 9")
    A(f"s_add_u32 s{sQOFF}, s{sQOFF}, s{sT1}")
    A(f"s_lshr_b32 s{sT1}, s{sW}, 1")
    A(f"s_lshl_b32 s{sT1}, s{sT1}, 8")
    A(f"s_add_u32 s{sQOFF}, s{sQOFF}, s{sT1}")
    A(f"s_mul_i32 s{sXOFF}, s{sB}, 36864")
    A(f"s_mul_i32 s{sT1}, s{sW}, 9216")
    A(f"s_add_u32 s{sXOFF}, s{sXOFF}, s{sT1}")
    A(f"s_add_u32 s{sT1}, s{sT1}, {XL}")
    A("s_waitcnt lgkmcnt(0)")
    srd(A, SX, KA+0, KA+1, 8 * 32 * 576 * 2)
    for k in range(9):
        if k % 4 == 0:
            A(f"s_mov_b32 m0, s{sT1}")
            A(f"s_add_u32 s{sT1}, s{sT1}, 4096")
        A.vmem(f"buffer_load_dwordx4 {v(vL16)}, s[{SX}:{SX+3}], s{sXOFF} offen offset:{(k%4)*1024} lds", "x")
        if k % 4 == 3:
            A(f"s_add_u32 s{sXOFF}, s{sXOFF}, 4096")
    srd(A, SWT, KA+6, KA+7, 576 * 4096 * 2)
    def qload(step):
        rb = vRaw[step % NB]
        L = [f"s_lshl_b32 s{sT0}, s{sST}, 18", f"s_add_u32 s{sT0}, s{sT0}, s{sQOFF}"]
        for r in range(8):
            L.append((f"buffer_load_dwordx4 {v(rb+4*r,4)}, {v(vWoff+r)}, s[{SWT}:{SWT+3}], s{sT0} offen", f"q{step}"))
        L += [f"s_add_u32 s{sST}, s{sST}, 1", f"s_cmp_eq_u32 s{sST}, 9", f"s_cselect_b32 s{sST}, 0, s{sST}"]
        return L
    emit(qload(0))
    emit(kv_srds())
    srd(A, SWS, KA+14, KA+15, 1 << 30)
    stamp(0)
    xa = [f"v_mul_u32_u24 {v(vT)}, 1152, {v(vN)}",
          f"v_lshl_add_u32 {v(vT)}, {v(vG)}, 4, {v(vT)}",
          f"v_mov_b32 {v(vT+1)}, s{sKH}",
          f"v_mul_u32_u24 {v(vT+2)}, {16*1152 + 576}, {v(vT+1)}",
          f"v_add3_u32 {v(vXoff)}, {v(vT)}, {v(vT+2)}, s{sK16}",
          f"v_mul_u32_u24 {v(vT+2)}, {16*1152 - 576}, {v(vT+1)}",
          f"v_sub_u32 {v(vXoff+1)}, {v(vT)}, {v(vT+2)}",
          f"v_add_u32 {v(vXoff+1)}, {16*1152 + 16384}, {v(vXoff+1)}"]
    emit(spread(kv_setup() + common_setup() + xa, qload(1) + qload(2)))
    A.wait_vm("x")
    A("s_barrier")
    A(f"s_mov_b32 s{sT1}, s{sB}")
    for step in range(9):
        A(f"s_lshl_b32 s{sT2}, s{sT1}, 6")
        for u in range(2):
            A(f"v_add_u32 {v(vT+u)}, s{sT2}, {v(vXoff+u)}")
            A(f"ds_read_b128 {a(aXf[step]+4*u,4)}, {v(vT+u)} offset:{XL - 16384}")
        A(f"s_add_u32 s{sT1}, s{sT1}, 1"); A(f"s_cmp_eq_u32 s{sT1}, 9"); A(f"s_cselect_b32 s{sT1}, 0, s{sT1}")
        if step == 5:
            A("s_waitcnt lgkmcnt(4)")
    emit(qload(3))
    A("s_waitcnt lgkmcnt(0)")
    A("s_barrier")
    ng = 0
    for step in range(9):
        rb = vRaw[step % NB]
        A.wait_vm(f"q{step}")
        stamp(step, 2)
        comp = []
        for j in range(8):
            for t in range(4):
                sel = sSELH if (j & 1) else sSELL
                comp.append(f"v_perm_b32 {v(vFr+4*j+t)}, {v(rb+4*(2*t+1)+j//2)}, {v(rb+4*(2*t)+j//2)}, s{sel}")
        comp.append("s_nop 1")
        for j in range(8):
            for u in range(2):
                acc = a((u * 8 + j) * 4, 4)
                comp.append(f"{M16} {acc}, {v(vFr+4*j,4)}, {a(aXf[step]+4*u,4)}, {acc if step else 0}")
        nx = []
        if step + 4 < 9:
            nx = qload(step + 4)
        elif ng < NGB:
            nx = dma_list(f"G{ng}", first=(ng == 0)); ng += 1
        emit(spread(comp, nx))
    A(f"s_memrealtime s[{sNON}:{sNON+1}]")
    stamp(1)
    A(f"s_lshl_b32 s{sT2}, s{sW}, 13")
    A(f"s_add_u32 s{sT2}, s{sT2}, {XL}")
    A(f"s_xor_b32 s{sT0}, s{sT2}, 8192")
    A(f"v_add_u32 {v(vT+1)}, s{sT0}, {v(vL16)}")
    A(f"v_add_u32 {v(vT+2)}, s{sT2}, {v(vL16)}")
    A.nop(2)
    for j in range(8):
        A(f"ds_write_b128 {v(vT+1)}, {a((8+j)*4,4)} offset:{j*1024}")
    vDq = 184; vG8 = 216; vC = 152
    for k in range(32):
        A(f"v_accvgpr_read_b32 {v(vDq+k)}, {a(k)}")
    A("s_waitcnt lgkmcnt(0)")
    A("s_barrier")
    for j in range(8):
        A(f"ds_read_b128 {v(vFr+4*j,4)}, {v(vT+2)} offset:{j*1024}")
    A(f"s_lshl_b32 s{sT0}, s{sPR}, 2")
    A(f"s_add_u32 s{sT0}, s{sT0}, s{sW}")
    A(f"s_lshl_b32 s{sQOFF}, s{sT0}, 7")
    A(f"s_add_u32 s{sQOFF}, s{sQOFF}, {FQ}")
    A(f"s_lshl_b32 s{sT0}, s{sT0}, 13")
    A(f"s_add_u32 s{sT1}, s{sT0}, 4096")
    for k in range(16):
        A(f"v_mov_b32 {v(vG8+2*k+1)}, s{sNON}")
    for k in range(4):
        A(f"v_mov_b32 {v(vX+12+k)}, s{sNON+(k&1)}")
    A("s_mov_b64 exec, 0xff")
    A.vmem(f"buffer_store_dwordx4 {v(vX+12,4)}, {v(vL16)}, s[{SWS}:{SWS+3}], s{sQOFF} offen sc1", "qs")
    A("s_mov_b64 exec, -1")
    A("s_waitcnt lgkmcnt(0)")
    for k in range(0, 32, 2):
        A(f"v_pk_add_f32 {v(vDq+k,2)}, {v(vDq+k,2)}, {v(vFr+k,2)}")
    for i in range(4):
        for t in range(4):
            A(f"v_cvt_pk_bf16_f32 {v(vG8+2*(4*i+t))}, {v(vDq+4*(2*t)+i)}, {v(vDq+4*(2*t+1)+i)}")
            if t % 2 == 1:
                k = 2 * i + t // 2
                A.vmem(f"buffer_store_dwordx4 {v(vG8+4*k,4)}, {v(vL16)}, s[{SWS}:{SWS+3}], s{sT0 if k < 4 else sT1} offen offset:{(k%4)*1024} sc1", "qs")
    stamp(6)
    for k in range(16):
        A(f"v_mov_b32 {v(vC+k)}, {v(vG8+2*k)}")
    mid = []
    while ng < 3:
        mid += dma_list(f"G{ng}", first=(ng == 0)); ng += 1
    q_image(vC, mid)
    emit(spread(init_list(), dma_list("G3")))
    A(f"s_mov_b32 s{sST}, 1000")
    srd(A, SX, KA+10, KA+11, 8 * 32 * 576 * 2)
    A("s_waitcnt lgkmcnt(0)")
    stamp(2)

    A.label("L_loop")
    if SK_IT:
        A(f"s_cmp_gt_u32 s{sIT}, {SK_IT}")
        A("s_cbranch_scc0 L_w24")
        A("s_waitcnt vmcnt(16)")
        A.label("L_w24")
    A("s_waitcnt vmcnt(24)")
    A("s_barrier")
    if SK_IT:
        A(f"s_cmp_eq_u32 s{sIT}, {SK_IT}")
        A("s_cbranch_scc1 L_nodma")
    dl = dma_list()
    body([dl[0:3], [dl[3]], [dl[4]], dl[5:9], [dl[10]], [dl[11]], [dl[12]], [dl[13]]], dl[14:], "m")
    A.label("L_loop_end")
    A(f"s_cmp_eq_u32 s{sIT}, s{sST}")
    A("s_cbranch_scc1 L_special")
    A.label("L_special_ret")
    A(f"s_add_u32 s{sIT}, s{sIT}, 1")
    A(f"s_add_u32 s{sT0}, s{sIT}, {ND}")
    A(f"s_cmp_lt_u32 s{sT0}, s{sN}")
    A("s_cbranch_scc1 L_loop")

    for p in range(4):
        A(f"v_add_u32 {v(vKoff+p)}, {128*1152 - 16384}, {v(vKoff+p)}")
    A(f"s_lshl_b32 s{sQOFF}, s{sPR}, 2")
    A(f"s_add_u32 s{sQOFF}, s{sQOFF}, s{sW}")
    A(f"s_mul_i32 s{sQOFF}, s{sQOFF}, 9216")
    A(f"s_add_u32 s{sQOFF}, s{sQOFF}, {OB}")
    A(f"s_cmp_lt_u32 s2, 128")
    A(f"s_cselect_b32 s{sST}, {OOB:#x}, s{sQOFF}")
    A(f"s_add_u32 s{sMV}, s{sST}, 4096")
    A(f"s_add_u32 s{sOFFc}, s{sST}, 8192")
    def orec1(op, k, regs):
        return f"{op} {v(vR+4*k,4)}, {v(vL16)}, s[{SWS}:{SWS+3}], s{regs[k//4]} offen offset:{(k%4)*1024} sc1"
    RL = (sST, sMV, sOFFc)
    A.vm = [f"D{g_}" for g_ in range(3 - ND, 4) for _ in range(8)]; A.retired = 0
    for d in range(3 - ND, 3):
        A.wait_vm(f"D{d}")
        A("s_barrier")
        mem = [[] for _ in range(8)]
        if d == 3 - ND:
            b8 = dma_list("b8", first=True)
            mem[0] = b8[0:3]; mem[1] = [b8[3]]; mem[2] = [b8[4]]; mem[3] = [b8[5]]
        if d == RAT:
            for k in range(9):
                mem[min(7, k)].append((orec1("buffer_load_dwordx4", k, RL), "rec"))
        body(mem, [f"s_add_u32 s{sIT}, s{sIT}, 1"], f"d{d}")

    def slot_after(dst, src):
        A(f"s_add_u32 s{dst}, s{src}, 16384")
        A(f"s_cmp_ge_u32 s{dst}, {VRING}")
        A(f"s_cselect_b32 s{dst}, 0, s{dst}")
    A(f"s_sub_u32 s{sRK}, s{sRK}, s{sM0B}")
    slot_after(sA0, sRK)
    slot_after(sA1, sA0)
    slot_after(sMK, sA1)
    slot_after(sLIM, sMK)
    A(f"s_lshl_b32 s{sT0}, s{sW}, 9")
    A(f"s_add_u32 s{sT0}, s{sT0}, s{sMK}")
    A(f"s_add_u32 s{sT0}, s{sT0}, {VRING}")
    A(f"v_lshrrev_b32 {v(vT+2)}, 2, {v(vL16)}")
    A(f"v_add_u32 {v(vT+2)}, s{sT0}, {v(vT+2)}")
    A(f"ds_write_b32 {v(vT+2)}, {v(vM)}")
    A(f"v_xor_b32 {v(vT+1)}, 512, {v(vT+2)}")
    A("s_waitcnt lgkmcnt(0)")
    A("s_barrier")
    A(f"ds_read_b32 {v(vMx)}, {v(vT+1)}")
    A(f"s_cmp_lt_u32 s{sW}, 2")
    A(f"s_cselect_b32 s{sT1}, s{sA0}, s{sA1}")
    A(f"s_lshl_b32 s{sT2}, s{sKH}, 13")
    A(f"s_add_u32 s{sT1}, s{sT1}, s{sT2}")
    A(f"s_xor_b32 s{sT2}, s{sT1}, 8192")
    A(f"v_add_u32 {v(vT+3)}, s{sT2}, {v(vL16)}")
    A(f"v_add_u32 {v(vX+2)}, s{sT1}, {v(vL16)}")
    A(f"v_and_b32 {v(vX)}, 1, {v(vG)}")
    A(f"v_lshlrev_b32 {v(vX)}, 12, {v(vX)}")
    A(f"v_lshrrev_b32 {v(vX+1)}, 1, {v(vG)}")
    A(f"v_lshl_add_u32 {v(vX)}, {v(vX+1)}, 8, {v(vX)}")
    A(f"v_lshl_add_u32 {v(vX)}, {v(vN)}, 4, {v(vX)}")
    A(f"s_lshr_b32 s{sT0}, s{sW}, 1")
    A(f"s_lshl_b32 s{sT0}, s{sT0}, 13")
    A(f"s_lshl_b32 s{sT1}, s{sKH}, 11")
    A(f"s_add_u32 s{sT0}, s{sT0}, s{sT1}")
    A(f"s_add_u32 s{sT0}, s{sT0}, s{sMK}")
    A(f"v_add_u32 {v(vX)}, s{sT0}, {v(vX)}")
    A("s_waitcnt lgkmcnt(0)")
    A(f"s_call_b64 s[{sM64}:{sM64+1}], L_rescale")
    emit(fmas)
    emit(expcvt())
    A.nop(1)
    A(lm(0)); A(lm(1))
    if RAT == 3:
        for k in range(9):
            A.vmem(orec1("buffer_load_dwordx4", k, RL), "rec")
    A.nop(8)
    A(f"ds_write_b32 {v(vT+2)}, {v(vLa)} offset:256")
    A("s_waitcnt lgkmcnt(0)")
    A.wait_vm("b8")
    A("s_barrier")
    stamp(3)
    for f in range(7):
        emit(vread(f))
    A("s_waitcnt lgkmcnt(10)")
    A(pvm(0)); A(pvm(1))
    emit(vread(7))
    A(f"ds_read_b32 {v(vT)}, {v(vT+1)} offset:256")
    A("s_waitcnt lgkmcnt(9)")
    A(pvm(2)); A(pvm(3))
    A("s_waitcnt lgkmcnt(5)")
    A(pvm(4)); A(pvm(5))
    A("s_waitcnt lgkmcnt(0)")
    A(pvm(6)); A(pvm(7))
    vL1 = vX + 3
    A(f"v_add_f32 {v(vL1)}, {v(vLa)}, {v(vT)}")
    A.nop(5)
    for k in range(8):
        A(f"ds_write_b128 {v(vT+3)}, {v(vO+32+4*k,4)} offset:{k*1024}")
    A(f"s_cmp_lt_u32 s2, 128")
    A("s_cbranch_scc1 L_g2_tail")

    A(f"s_mov_b32 s{sT2}, 0")
    A("s_branch L_pollo_chk")
    A.label("L_pollo")
    A(f"s_sleep {SLEEP}")
    for k in range(9):
        A(orec1("buffer_load_dwordx4", k, RL))
    A.label("L_pollo_chk")
    A(f"v_mov_b32 {v(vT)}, s{sNON}")
    A("s_waitcnt vmcnt(0)")
    for k in range(18):
        A(f"v_xor_b32 {v(vR+2*k+1)}, {v(vR+2*k+1)}, {v(vT)}")
    for k in range(1, 17, 2):
        A(f"v_or3_b32 {v(vR+1)}, {v(vR+1)}, {v(vR+2*k+1)}, {v(vR+2*k+3)}")
    A(f"v_or_b32 {v(vR+1)}, {v(vR+1)}, {v(vR+35)}")
    A(f"v_cmp_ne_u32 vcc, 0, {v(vR+1)}")
    A(f"s_add_u32 s{sT2}, s{sT2}, 1")
    A("s_cbranch_vccz L_pollo_done")
    A(f"s_cmp_lt_u32 s{sT2}, {SPIN_MAX}")
    A("s_cbranch_scc1 L_pollo")
    A.label("L_pollo_done")
    A("s_waitcnt lgkmcnt(0)")
    A("s_barrier")
    stamp(11)
    for k in range(8):
        A(f"ds_read_b128 {v(vO+32+4*k,4)}, {v(vX+2)} offset:{k*1024}")
    A(f"v_max_f32 {v(vMx)}, {v(vM)}, {v(vR+32)}")
    A(f"v_mul_f32 {v(vMc)}, s{sC}, {v(vMx)}")
    A(f"v_fma_f32 {v(vAl)}, {v(vM)}, s{sC}, -{v(vMc)}")
    A(f"v_fma_f32 {v(vBe)}, {v(vR+32)}, s{sC}, -{v(vMc)}")
    A(f"v_exp_f32 {v(vAl)}, {v(vAl)}")
    A(f"v_exp_f32 {v(vBe)}, {v(vBe)}")
    A.nop(1)
    A(f"v_mul_f32 {v(vT)}, {v(vBe)}, {v(vR+34)}")
    A(f"v_fma_f32 {v(vT)}, {v(vAl)}, {v(vL1)}, {v(vT)}")
    A(f"v_rcp_f32 {v(vT)}, {v(vT)}")
    for k in range(16):
        A(f"v_and_b32 {v(vR+2*k+1)}, 0xffff0000, {v(vR+2*k)}")
        A(f"v_lshlrev_b32 {v(vR+2*k)}, 16, {v(vR+2*k)}")
    A(f"v_mul_f32 {v(vAl)}, {v(vAl)}, {v(vT)}")
    A(f"v_mul_f32 {v(vBe)}, {v(vBe)}, {v(vT)}")
    A("s_waitcnt lgkmcnt(0)")
    for c in range(4):
        for k in range(4 * c, 4 * c + 4):
            A(f"v_pk_add_f32 {v(vO+2*k,2)}, {v(vO+2*k,2)}, {v(vO+32+2*k,2)}")
            A(f"v_pk_mul_f32 {v(vR+2*k,2)}, {v(vR+2*k,2)}, {v(vAl,2)} op_sel:[0,1] op_sel_hi:[1,1]")
            A(f"v_pk_fma_f32 {v(vO+2*k,2)}, {v(vO+2*k,2)}, {v(vAl,2)}, {v(vR+2*k,2)} op_sel_hi:[1,0,1]")
            A(f"v_cvt_pk_bf16_f32 {v(vX+4+k)}, {v(vO+2*k)}, {v(vO+2*k+1)}")
        A(f"ds_write_b128 {v(vX)}, {v(vX+4+4*c,4)} offset:{(c>>1)*1024 + (c&1)*512}")
    vB8 = 216
    A(f"v_lshrrev_b32 {v(vT)}, 1, {v(vG)}")
    A(f"v_lshlrev_b32 {v(vT)}, 2, {v(vT)}")
    A(f"v_and_b32 {v(vT+1)}, 1, {v(vG)}")
    A(f"v_add_u32 {v(vT)}, {v(vT)}, {v(vT+1)}")
    A(f"v_lshrrev_b32 {v(vT+1)}, 2, {v(vN)}")
    A(f"v_lshl_add_u32 {v(vT)}, {v(vT)}, 2, {v(vT+1)}")
    A(f"v_and_b32 {v(vT+1)}, 3, {v(vN)}")
    A(f"v_lshlrev_b32 {v(vT+1)}, 3, {v(vT+1)}")
    A(f"v_lshl_add_u32 {v(vT)}, {v(vT)}, 7, {v(vT+1)}")
    A(f"s_lshl_b32 s{sT1}, s{sW}, 5")
    A(f"s_add_u32 s{sT2}, s{sT1}, s{sRK}")
    A(f"s_add_u32 s{sT1}, s{sT1}, s{sLIM}")
    A(f"v_add_u32 {v(vT+1)}, s{sT2}, {v(vT)}")
    A(f"v_add_u32 {v(vT)}, s{sT1}, {v(vT)}")
    A(f"v_add_u32 {v(vT+2)}, s{sMK}, {v(vL16)}")
    A(f"s_and_b32 s{sT2}, s2, 15")
    A(f"s_lshl_b32 s{sT0}, s{sB}, 4")
    A(f"s_add_u32 s{sT0}, s{sT0}, s{sT2}")
    A(f"s_mul_i32 s{sT0}, s{sT0}, 36864")
    A(f"s_mul_i32 s{sT1}, s{sW}, 9216")
    A(f"s_add_u32 s{sT0}, s{sT0}, s{sT1}")
    A(f"s_add_u32 s{sT0}, s{sT0}, {PY}")
    A("s_waitcnt lgkmcnt(0)")
    A("s_barrier")
    stamp(4)
    def wfr(ks, j):
        return a(32 * ks + 4 * j, 4) if j < 8 else v(vB8 + 4 * ks, 4)
    def acc(rh, j):
        return 144 + 4 * (rh * 9 + j)
    def ofr(rh, ks):
        return v(vQf + 4 * ks, 4) if rh == 0 else v(vO + 4 * ks, 4)
    vPk = 120
    b8r = [f"ds_read_b64_tr_b16 {v(vB8+4*ks+2*u,2)}, {v(vT+(ks>>2))} offset:{(32*(ks&3)+8*u)*128}" for ks in range(8) for u in range(2)]
    o0 = [f"ds_read_b128 {ofr(0,ks)}, {v(vT+2)} offset:{(((ks>>2)*2+0)*4+(ks&3))*1024}" for ks in range(8)]
    o1 = [f"ds_read_b128 {ofr(1,ks)}, {v(vT+2)} offset:{(((ks>>2)*2+1)*4+(ks&3))*1024}" for ks in range(8)]
    for ks in range(4):
        A(o0[ks]); A(b8r[2*ks]); A(b8r[2*ks+1])
    for ks in range(8):
        A(f"s_waitcnt lgkmcnt({9 if ks < 5 else 9})")
        nxt = [o0[ks+4], b8r[2*(ks+4)], b8r[2*(ks+4)+1]] if ks < 4 else [o1[2*(ks-4)], o1[2*(ks-4)+1], o1[2*(ks-4)+1]]
        for j in range(9):
            d = v(acc(0, j), 4)
            A(f"{M16} {d}, {ofr(0,ks)}, {wfr(ks,j)}, {d if ks else 0}")
            if j < 3:
                A(nxt[j])
    A("s_waitcnt lgkmcnt(0)")
    def pack_store(rh):
        L = []
        for i in range(4):
            d = vPk + 4 * i
            for q in range(4):
                L.append(f"v_cvt_pk_bf16_f32 {v(d+q)}, {v(acc(rh,2*q)+i)}, {v(acc(rh,2*q+1)+i)}")
            L.append(f"buffer_store_dwordx4 {v(d,4)}, {v(vL16)}, s[{SWS}:{SWS+3}], s{sT0} offen offset:{i*1024} sc1")
        L.append(f"s_add_u32 s{sT0}, s{sT0}, 4096")
        for q in range(2):
            L.append(f"v_cvt_pk_bf16_f32 {v(136+2*rh+q)}, {v(acc(rh,8)+2*q)}, {v(acc(rh,8)+2*q+1)}")
        return L
    m1 = []
    for ks in range(8):
        for j in range(9):
            d = v(acc(1, j), 4)
            m1.append(f"{M16} {d}, {ofr(1,ks)}, {wfr(ks,j)}, {d if ks else 0}")
    misc = [f"s_lshl_b32 s{sT1}, s{sB}, 13",
            f"s_lshl_b32 s{sQOFF}, s{sW}, 7",
            f"s_add_u32 s{sT1}, s{sT1}, s{sQOFF}",
            f"s_lshl_b32 s{sQOFF}, s{sT2}, 3",
            f"s_add_u32 s{sT1}, s{sT1}, s{sQOFF}",
            f"s_add_u32 s{sT1}, s{sT1}, {FY}",
            f"v_lshlrev_b32 {v(vT)}, 9, {v(vN)}",
            f"s_memrealtime s[{sNON}:{sNON+1}]"]
    emit(m1[:10])
    emit(weave(m1[10:], pack_store(0) + misc, 1))
    stamp(5)
    A.nop(8)
    emit(pack_store(1))
    A(f"buffer_store_dwordx4 {v(136,4)}, {v(vL16)}, s[{SWS}:{SWS+3}], s{sT0} offen sc1")
    stamp(7)
    A("s_waitcnt lgkmcnt(0)")
    A(f"v_mov_b32 {v(vT+2)}, s{sNON}")
    A(f"v_mov_b32 {v(vT+3)}, s{sNON+1}")
    A("s_waitcnt vmcnt(0)")
    A("s_mov_b64 exec, 0xffff")
    A(f"buffer_store_dwordx2 {v(vT+2,2)}, {v(vT)}, s[{SWS}:{SWS+3}], s{sT1} offen sc1")
    A("s_mov_b64 exec, -1")
    stamp(8)
    A("s_branch L_fin")

    A.label("L_g2_tail")
    A("s_waitcnt vmcnt(0)")
    for k in range(18):
        A(f"v_mov_b32 {v(vR+2*k+1)}, s{sNON}")
    A(f"v_mov_b32 {v(vR+32)}, {v(vM)}")
    A(f"v_mov_b32 {v(vR+34)}, {v(vL1)}")
    A(f"s_add_u32 s{sMV}, s{sQOFF}, 4096")
    A(f"s_add_u32 s{sOFFc}, s{sQOFF}, 8192")
    RS = (sQOFF, sMV, sOFFc)
    A("s_waitcnt lgkmcnt(0)")
    A("s_barrier")
    for k in range(8):
        A(f"ds_read_b128 {v(vO+32+4*k,4)}, {v(vX+2)} offset:{k*1024}")
    A(orec1("buffer_store_dwordx4", 8, RS))
    for k in range(8):
        A(f"s_waitcnt lgkmcnt({7-k})")
        for z in range(2):
            A(f"v_pk_add_f32 {v(vO+4*k+2*z,2)}, {v(vO+4*k+2*z,2)}, {v(vO+32+4*k+2*z,2)}")
        for z in range(2):
            A(f"v_cvt_pk_bf16_f32 {v(vR+4*k+2*z)}, {v(vO+4*k+2*z)}, {v(vO+4*k+2*z+1)}")
        A(orec1("buffer_store_dwordx4", k, RS))
    stamp(4)
    sJ = sST
    A(f"s_and_b32 s{sJ}, s2, 15")
    vSA = vQf
    A(f"v_and_b32 {v(vT)}, 1, {v(vN)}")
    A(f"v_lshlrev_b32 {v(vT)}, 4, {v(vT)}")
    A(f"v_mov_b32 {v(vT+1)}, 0x3f80")
    A(f"v_lshlrev_b32 {v(vT+1)}, {v(vT)}, {v(vT+1)}")
    A(f"v_lshrrev_b32 {v(vT)}, 1, {v(vN)}")
    for t in range(4):
        A(f"v_cmp_eq_u32 vcc, {t}, {v(vT)}")
        A.nop(2)
        A(f"v_cndmask_b32 {v(vSA+t)}, 0, {v(vT+1)}, vcc")
    A(f"s_lshl_b32 s{sT0}, s{sB}, 4")
    A(f"s_add_u32 s{sT0}, s{sT0}, s{sJ}")
    A(f"s_lshl_b32 s{sT0}, s{sT0}, 2")
    A(f"s_add_u32 s{sT0}, s{sT0}, s{sW}")
    A(f"s_lshl_b32 s{sT0}, s{sT0}, 7")
    A(f"s_add_u32 s{sQOFF}, s{sT0}, {FY}")
    A(f"v_lshlrev_b32 {v(vT+1)}, 3, {v(vN)}")
    A(f"v_mul_u32_u24 {v(vT)}, 36864, {v(vG)}")
    A(f"v_lshl_add_u32 {v(vT)}, {v(vN)}, 4, {v(vT)}")
    A(f"s_mul_i32 s{sT0}, s{sB}, {16*36864}")
    A(f"s_mul_i32 s{sT1}, s{sW}, 9216")
    A(f"s_add_u32 s{sT0}, s{sT0}, s{sT1}")
    A(f"s_add_u32 s{sT0}, s{sT0}, {PY}")
    A(f"s_lshl_b32 s{sT1}, s{sJ}, 8")
    A(f"s_add_u32 s{sXOFF}, s{sT0}, s{sT1}")
    A(f"s_add_u32 s{sXOFF}, s{sXOFF}, 8192")
    A(f"s_lshl_b32 s{sT1}, s{sJ}, 9")
    A(f"s_add_u32 s{sT0}, s{sT0}, s{sT1}")
    A(f"s_lshr_b32 s{sT1}, s{sJ}, 3")
    A(f"s_lshl_b32 s{sT1}, s{sT1}, 4")
    A(f"s_and_b32 s{sT2}, s{sJ}, 1")
    A(f"s_lshl_b32 s{sT2}, s{sT2}, 3")
    A(f"s_add_u32 s{sT1}, s{sT1}, s{sT2}")
    A(f"s_bfe_u32 s{sT2}, s{sJ}, 0x20001")
    A(f"s_add_u32 s{sT1}, s{sT1}, s{sT2}")
    A(f"s_lshl_b32 s{sT2}, s{sB}, 5")
    A(f"s_add_u32 s{sT1}, s{sT1}, s{sT2}")
    A(f"s_mul_i32 s{sT1}, s{sT1}, 1152")
    A(f"s_lshl_b32 s{sT2}, s{sW}, 8")
    A(f"s_add_u32 s{sT1}, s{sT1}, s{sT2}")
    A(f"s_add_u32 s{sOFF}, s{sT1}, {4*1152}")
    A(f"v_lshlrev_b32 {v(vMx)}, 4, {v(vN)}")
    A(f"v_lshl_add_u32 {v(vMx)}, {v(vG)}, 3, {v(vMx)}")
    A(f"s_mov_b32 s{sT2}, 0")
    A("s_branch L_polly_ld")
    A.label("L_polly")
    A(f"s_sleep {SLEEPY}")
    A.label("L_polly_ld")
    A(f"buffer_load_dwordx2 {v(vT+2,2)}, {v(vT+1)}, s[{SWS}:{SWS+3}], s{sQOFF} offen sc1")
    A(f"v_mov_b32 {v(vBe)}, s{sTIM+1}")
    A("s_waitcnt vmcnt(0)")
    A(f"v_subrev_co_u32 {v(vAl)}, vcc, s{sTIM}, {v(vT+2)}")
    A(f"v_subb_co_u32 {v(vBe)}, vcc, {v(vT+3)}, {v(vBe)}, vcc")
    A(f"v_cmp_le_u64 vcc, s[{sWIN}:{sWIN+1}], {v(vAl,2)}")
    A(f"s_add_u32 s{sT2}, s{sT2}, 1")
    A("s_cbranch_vccz L_polly_done")
    A(f"s_cmp_lt_u32 s{sT2}, {SPIN_MAX}")
    A("s_cbranch_scc1 L_polly")
    A.label("L_polly_done")
    stamp(9)
    vRR = vO
    for k in range(4):
        A(f"buffer_load_dwordx4 {v(vRR+4*k,4)}, {v(vT)}, s[{SWS}:{SWS+3}], s{sT0} offen sc1")
        A(f"buffer_load_dwordx4 {v(vRR+16+4*k,4)}, {v(vT)}, s[{SWS}:{SWS+3}], s{sT0} offen offset:256 sc1")
        A(f"s_add_u32 s{sT0}, s{sT0}, {4*36864}")
    A(f"s_cmp_lt_u32 s{sJ}, 4")
    A("s_cbranch_scc0 L_no_extra_ld")
    for k in range(4):
        A(f"buffer_load_dwordx4 {v(vRR+32+4*k,4)}, {v(vT)}, s[{SWS}:{SWS+3}], s{sXOFF} offen sc1")
        A(f"s_add_u32 s{sXOFF}, s{sXOFF}, {4*36864}")
    A.label("L_no_extra_ld")
    A("s_waitcnt vmcnt(0)")
    vS = vSo
    for k in range(4):
        for u in range(2):
            A(f"{M16} {v(vS+4*u,4)}, {v(vSA,4)}, {v(vRR+16*u+4*k,4)}, {v(vS+4*u,4) if k else 0}")
    A.nop(8)
    for u in range(2):
        A(f"v_cvt_pk_bf16_f32 {v(vSn+2*u)}, {v(vS+4*u)}, {v(vS+4*u+1)}")
        A(f"v_cvt_pk_bf16_f32 {v(vSn+2*u+1)}, {v(vS+4*u+2)}, {v(vS+4*u+3)}")
    A("s_mov_b32 exec_hi, 0")
    A(f"buffer_store_dwordx2 {v(vSn,2)}, {v(vMx)}, s[{SX}:{SX+3}], s{sT1} offen")
    A(f"buffer_store_dwordx2 {v(vSn+2,2)}, {v(vMx)}, s[{SX}:{SX+3}], s{sOFF} offen")
    A(f"s_mov_b64 exec, -1")
    A(f"s_cmp_lt_u32 s{sJ}, 4")
    A("s_cbranch_scc0 L_fin")
    for k in range(4):
        A(f"{M16} {v(vS+8,4)}, {v(vSA,4)}, {v(vRR+32+4*k,4)}, {v(vS+8,4) if k else 0}")
    A(f"s_lshl_b32 s{sT0}, s{sJ}, 2")
    A(f"s_lshl_b32 s{sT1}, s{sB}, 5")
    A(f"s_add_u32 s{sT0}, s{sT0}, s{sT1}")
    A(f"s_mul_i32 s{sT0}, s{sT0}, 1152")
    A(f"s_lshl_b32 s{sT1}, s{sW}, 5")
    A(f"s_add_u32 s{sT0}, s{sT0}, s{sT1}")
    A(f"s_add_u32 s{sT0}, s{sT0}, 1024")
    A(f"v_lshlrev_b32 {v(vT)}, 1, {v(vN)}")
    A(f"v_mul_u32_u24 {v(vT+1)}, {16*1152}, {v(vG)}")
    A(f"v_add_u32 {v(vT)}, {v(vT)}, {v(vT+1)}")
    A.nop(4)
    A(f"v_cvt_pk_bf16_f32 {v(vS+12)}, {v(vS+8)}, {v(vS+9)}")
    A(f"v_cvt_pk_bf16_f32 {v(vS+13)}, {v(vS+10)}, {v(vS+11)}")
    A("s_mov_b32 exec_hi, 0")
    A(f"buffer_store_short {v(vS+12)}, {v(vT)}, s[{SX}:{SX+3}], s{sT0} offen")
    A(f"buffer_store_short_d16_hi {v(vS+12)}, {v(vT)}, s[{SX}:{SX+3}], s{sT0} offen offset:1152")
    A(f"buffer_store_short {v(vS+13)}, {v(vT)}, s[{SX}:{SX+3}], s{sT0} offen offset:2304")
    A(f"buffer_store_short_d16_hi {v(vS+13)}, {v(vT)}, s[{SX}:{SX+3}], s{sT0} offen offset:3456")
    A(f"s_mov_b64 exec, -1")
    A.label("L_fin")
    if STAMPS:
        A("s_waitcnt vmcnt(0)")
        stamp(10)
        A(f"s_lshl_b32 s{sT0}, s2, 2")
        A(f"s_add_u32 s{sT0}, s{sT0}, s{sW}")
        A(f"s_lshl_b32 s{sT1}, s{sT0}, 8")
        A(f"s_lshl_b32 s{sT0}, s{sT0}, 7")
        A(f"s_add_u32 s{sT0}, s{sT0}, {STAMP_BASE}")
        A(f"s_add_u32 s{sT1}, s{sT1}, {STAMP_BASE + (1 << 20)}")
        A(f"v_lshlrev_b32 {v(vT)}, 2, {v(vLane)}")
        A(f"buffer_store_dword v255, {v(vT)}, s[{SWS}:{SWS+3}], s{sT1} offen")
        A.nop(2)
        A(f"v_mov_b32 {v(vT)}, 0")
        A("s_mov_b64 exec, 1")
        for i in range(13):
            src = 56 + 2 * i if i < 12 else sTIM
            A(f"v_mov_b32 {v(vT+2)}, s{src}")
            A(f"v_mov_b32 {v(vT+3)}, s{src+1}")
            A(f"buffer_store_dwordx2 {v(vT+2,2)}, {v(vT)}, s[{SWS}:{SWS+3}], s{sT0} offen offset:{8*i}")
            A.nop(2)
    A.label("L_end")
    A("s_endpgm")

    A.label("L_rescale")
    A(f"v_max_f32 {v(vMx)}, {v(vMx)}, {v(vM)}")
    A(f"v_mul_f32 {v(vMc)}, s{sC}, {v(vMx)}")
    A(f"v_fma_f32 {v(vAl)}, {v(vM)}, s{sC}, -{v(vMc)}")
    A(f"v_exp_f32 {v(vAl)}, {v(vAl)}")
    A(f"v_mov_b32 {v(vM)}, {v(vMx)}")
    A.nop(8)
    for k in list(range(32, 64, 2)) + list(range(0, 32, 2)):
        A(f"v_pk_mul_f32 {v(vO+k,2)}, {v(vO+k,2)}, {v(vAl,2)} op_sel_hi:[1,0]")
    for k in range(0, 4, 2):
        A(f"v_pk_mul_f32 {v(vLa+k,2)}, {v(vLa+k,2)}, {v(vAl,2)} op_sel_hi:[1,0]")
    A(f"s_setpc_b64 s[{sM64}:{sM64+1}]")

    A.label("L_special")
    A(f"s_add_u32 s{sT0}, s{sXOFF}, 1024")
    A(f"s_add_u32 s{SK}, s{KA+8}, s{sT0}")
    A(f"s_addc_u32 s{SK+1}, s{KA+9}, 0")
    A(f"s_sub_u32 s{SK}, s{SK}, {N1*16384}")
    A(f"s_subb_u32 s{SK+1}, s{SK+1}, 0")
    A(f"s_and_b32 s{SK+1}, s{SK+1}, 0xffff")
    A(f"s_mov_b32 s{SK+2}, {N1*16384 + 256*1152 - 1024}")
    A(f"v_lshrrev_b32 {v(vT)}, 3, {v(vLane)}")
    A(f"v_mul_u32_u24 {v(vT)}, 1152, {v(vT)}")
    A(f"v_and_b32 {v(vT+1)}, 7, {v(vLane)}")
    A(f"v_lshl_add_u32 {v(vT)}, {v(vT+1)}, 4, {v(vT)}")
    A(f"s_mul_i32 s{sT0}, s{sW}, {36864 - 4096}")
    for p in range(4):
        A(f"v_add_u32 {v(vKoff+p)}, s{sT0}, {v(vT)}")
        A(f"s_add_u32 s{sT0}, s{sT0}, {9216 - 1024}")
    A("s_branch L_special_ret")
    A.label("L_code_end")
    return A.text()

def main():
    k = gen()
    out = f"""; generated by gen13.py
; @launch grid=(256,1,1) block=(256,1,1) lds=163840
.amdgcn_target "amdgcn-amd-amdhsa--gfx950"
.text
"""
    out += kernel_head(NAME) + k
    out += '.section .rodata,"a"\n.p2align 6\n'
    out += kernel_desc(NAME, 512, 256, 102)
    open(sys.argv[1], "w").write(out)

main()
```

```python
import sys, struct
from asmlib import *

NAME = "standalone__sliding_block_cached__sampling_kernel"
OPTS = set(sys.argv[2:])
STAMPS = "stamps" in OPTS
def opt(name, default):
    for o in OPTS:
        if o.startswith(name + "="):
            return int(o.split("=")[1])
    return default
N1 = opt("n1", 17)
N2 = 32 - N1
SLEEP = opt("sleep", 2)
SLEEPY = opt("sleepy", 2)
PROF = opt("prof", 0)
THR = 8.0
POLK = " nt" if opt("polk", 1) else ""
POLV = " nt" if opt("polv", 1) else ""
XSWAP = opt("xswap", 1)
CODEWARM = opt("codewarm", 1)
QAT = opt("qat", 8)
PT = opt("pt", 0)
CWN = opt("cwn", 256)
SK_IT = opt("skip", 6)
NGB = opt("ngb", 2)
RAT = opt("rat", 2)

ND = 2 if SK_IT else 3

def f32bits(x):
    return struct.unpack("<I", struct.pack("<f", x))[0]

SCALE_C = (128 ** -0.5) * 1.4426950408889634
QB = 0
OB = 4 << 20
FQ = 12 << 20
FY = 13 << 20
PY = 16 << 20
STAMP_BASE = 64 << 20
SPIN_MAX = 1 << 20
VRING = 81920
OOB = 0x7ff00000
M32 = "v_mfma_f32_32x32x16_bf16"
M16 = "v_mfma_f32_16x16x32_bf16"

def srd(A, d, lo, hi, nbytes):
    A(f"s_mov_b32 s{d}, s{lo}")
    A(f"s_and_b32 s{d+1}, s{hi}, 0xffff")
    A(f"s_mov_b32 s{d+2}, {nbytes:#x}")
    A(f"s_mov_b32 s{d+3}, 0x20000")

def weave(main, fill, per):
    out = []; fill = list(fill)
    for m in main:
        out.append(m)
        for _ in range(per):
            if fill:
                out.append(fill.pop(0))
    return out + fill

def spread(main, fill):
    out = []; n, k = len(main), len(fill); fi = 0
    for i, m in enumerate(main):
        out.append(m)
        while fi < k and (fi + 1) * n <= (i + 1) * k:
            out.append(fill[fi]); fi += 1
    return out + list(fill[fi:])

def gen():
    A = Asm()
    def emit(lst):
        for x in lst:
            if isinstance(x, tuple):
                A.vmem(x[0], x[1])
            else:
                A(x)
    def stamp(i, mode=0):
        if STAMPS and mode == PROF:
            assert i < 12
            A(f"s_memrealtime s[{56+2*i}:{57+2*i}]")
            A("s_waitcnt lgkmcnt(0)")
    SK, SV, SX, SWT, SWS = 4, 8, 12, 16, 20
    sWIN = 24
    sA0, sA1 = 26, 27
    sNON = 28
    sTIM = 30
    (sW, sKVH, sB, sPR, sOFF, sOFFc, sRK, sMK, sMV, sC, sSELL, sSELH, sT0, sT1, sT2, sLIM, sDK,
     sQOFF, sXOFF, sM0B, sST, sN, sIT, sSLOT) = range(32, 56)
    sM64, sTHR, sK16, sDV, sKH = 96, 98, 99, 100, 101
    KA = 80
    vL16, vVoff, vM = 1, 2, 3
    vKoff, vT, vKa, vVa = 4, 8, 12, 20
    vMc, vMx, vAl, vBe = 24, 25, 26, 27
    vSel, vLa, vQf = 28, 32, 36
    vX = 68
    vO, vSo, vSn, vKV = 88, 152, 168, 184
    vR = 216
    vLane, vG, vN = 252, 253, 254
    vP = vSo
    XL = 65536
    QIMG = VRING + 16384

    A("s_cmp_ge_u32 s2, 256")
    A("s_cbranch_scc1 L_end")
    A(f"s_load_dwordx16 s[{KA}:{KA+15}], s[0:1], 0")
    A(f"s_memrealtime s[{sTIM}:{sTIM+1}]")
    if CODEWARM == 2:
        A(f"s_cmp_lt_u32 s2, {CWN}")
        A("s_cbranch_scc0 L_nocw")
        for x in [f"s_getpc_b64 s[{sT0}:{sT0+1}]", "L_pc:", f"s_sub_u32 s{sT0}, s{sT0}, L_pc-{NAME}", f"s_subb_u32 s{sT1}, s{sT1}, 0",
                  f"v_lshlrev_b32 {v(vT+1)}, 7, v0",
                  f"v_min_u32 {v(vT+1)}, L_code_end-{NAME}-4, {v(vT+1)}",
                  f"global_load_dword {v(vMx)}, {v(vT+1)}, s[{sT0}:{sT0+1}]"]:
            A(x)
        A.label("L_nocw")
    if XSWAP:
        A("s_lshr_b32 s3, s2, 7")
        A("s_xor_b32 s2, s2, s3")
    A(f"v_lshrrev_b32 {v(vT)}, 6, v0")
    A(f"v_and_b32 {v(vLane)}, 63, v0")
    A(f"v_readfirstlane_b32 s{sW}, {v(vT)}")
    A(f"v_lshrrev_b32 {v(vG)}, 4, {v(vLane)}")
    A(f"v_and_b32 {v(vN)}, 15, {v(vLane)}")
    A(f"s_and_b32 s{sKVH}, s2, 7")
    A(f"s_lshl_b32 s{sKVH}, s{sKVH}, 1")
    A(f"s_bfe_u32 s{sB}, s2, 0x10003")
    A(f"s_add_u32 s{sKVH}, s{sKVH}, s{sB}")
    A(f"s_bfe_u32 s{sB}, s2, 0x30004")
    A(f"s_and_b32 s{sPR}, s2, 127")
    A(f"s_lshl_b32 s{sT0}, s{sB}, 25")
    A(f"s_lshl_b32 s{sT1}, s{sKVH}, 21")
    A(f"s_add_u32 s{sT0}, s{sT0}, s{sT1}")
    A(f"s_add_u32 s{sT0}, s{sT0}, {6144*256}")
    A(f"s_add_u32 s{sT1}, s{sT0}, {N1*16384}")
    A(f"s_cmp_ge_u32 s2, 128")
    A(f"s_cselect_b32 s{sT2}, s{sT0}, s{sT1}")
    A(f"s_cselect_b32 s{sN}, {N1}, {N2}")
    A(f"s_lshl_b32 s{sM0B}, s{sW}, 12")
    A(f"s_add_u32 s{sLIM}, s{sM0B}, {VRING}")
    A(f"s_and_b32 s{sKH}, s{sW}, 1")
    A(f"v_lshlrev_b32 {v(vL16)}, 4, {v(vLane)}")

    def kv_setup():
        L = []
        for p in range(4):
            L += [f"v_or_b32 {v(vT)}, {4*p}, {v(vG)}", f"v_xor_b32 {v(vT)}, {v(vT)}, {v(vN)}",
                  f"v_lshlrev_b32 {v(vT)}, 4, {v(vT)}", f"v_lshl_add_u32 {v(vKoff+p)}, {v(vG)}, 8, {v(vT)}"]
        L += [f"v_lshlrev_b32 {v(vT)}, 2, {v(vG)}", f"v_xor_b32 {v(vT)}, {v(vT)}, {v(vN)}",
              f"v_lshlrev_b32 {v(vT)}, 4, {v(vT)}", f"v_lshl_add_u32 {v(vVoff)}, {v(vG)}, 8, {v(vT)}"]
        return L
    def kv_srds():
        return [f"s_add_u32 s{SK}, s{KA+2}, s{sT2}", f"s_addc_u32 s{SK+1}, s{KA+3}, 0", f"s_and_b32 s{SK+1}, s{SK+1}, 0xffff",
                f"s_lshl_b32 s{SK+2}, s{sN}, 14", f"s_mov_b32 s{SK+3}, 0x20000",
                f"s_sub_u32 s{sT2}, s{sT2}, 16384",
                f"s_add_u32 s{SV}, s{KA+4}, s{sT2}", f"s_addc_u32 s{SV+1}, s{KA+5}, 0", f"s_and_b32 s{SV+1}, s{SV+1}, 0xffff",
                f"s_add_u32 s{SV+2}, s{SK+2}, 16384", f"s_mov_b32 s{SV+3}, 0x20000",
                f"s_mov_b32 s{sOFF}, s{sM0B}", f"s_mov_b32 s{sRK}, s{sM0B}"]
    def dma_list(tag=None, first=False):
        L = [f"s_mov_b32 m0, s{sRK}", f"s_add_u32 s{sMK}, s{sRK}, 16384"]
        for p in range(4):
            ln = f"buffer_load_dwordx4 {v(vKoff+p)}, s[{SK}:{SK+3}], s{sOFF} offen offset:{p*1024}{POLK} lds"
            L.append((ln, tag) if tag else ln)
        L += [f"s_cmp_ge_u32 s{sMK}, s{sLIM}", f"s_cselect_b32 s{sRK}, s{sM0B}, s{sMK}", f"s_add_u32 m0, s{sRK}, {VRING}", "s_nop 0"]
        for p in range(0 if first else 4):
            ln = f"buffer_load_dwordx4 {v(vVoff)}, s[{SV}:{SV+3}], s{sOFF} offen offset:{p*1024}{POLV} lds"
            L.append((ln, tag) if tag else ln)
        L += [f"s_add_u32 s{sOFF}, s{sOFF}, 16384"]
        return L
    def common_setup():
        L = [f"s_mov_b32 s{sC}, {f32bits(SCALE_C):#x}", f"s_mov_b32 s{sTHR}, {f32bits(THR / SCALE_C):#x}",
             f"s_mov_b32 s{sSELL}, 0x05040100", f"s_mov_b32 s{sSELH}, 0x07060302", f"s_mov_b32 s{sK16}, 16384",
             f"s_mov_b32 s{sWIN}, 0x1000000", f"s_mov_b32 s{sWIN+1}, 0"]
        L += [f"v_and_b32 {v(vT)}, 31, {v(vLane)}",
              f"v_lshlrev_b32 {v(vT)}, 8, {v(vT)}",
              f"v_mov_b32 {v(vT+1)}, s{sKH}",
              f"v_lshl_add_u32 {v(vT)}, {v(vT+1)}, 13, {v(vT)}",
              f"v_lshrrev_b32 {v(vT+2)}, 5, {v(vLane)}",
              f"v_xor_b32 {v(vT+2)}, {v(vT+2)}, {v(vN)}"]
        for s_ in range(8):
            L += [f"v_xor_b32 {v(vT+3)}, {2*s_}, {v(vT+2)}",
                  f"v_lshl_add_u32 {v(vKa+s_)}, {v(vT+3)}, 4, {v(vT)}"]
        L += [f"v_lshrrev_b32 {v(vT+2)}, 2, {v(vN)}",
              f"v_lshrrev_b32 {v(vT)}, 5, {v(vLane)}",
              f"v_lshl_add_u32 {v(vT)}, {v(vT)}, 2, {v(vT+2)}",
              f"v_lshlrev_b32 {v(vT)}, 8, {v(vT)}",
              f"v_lshl_add_u32 {v(vT)}, {v(vT+1)}, 13, {v(vT)}",
              f"v_and_b32 {v(vT+3)}, 3, {v(vN)}",
              f"v_lshl_add_u32 {v(vT)}, {v(vT+3)}, 3, {v(vT)}",
              f"v_and_b32 {v(vT+3)}, 1, {v(vG)}",
              f"v_lshl_add_u32 {v(vT)}, {v(vT+3)}, 5, {v(vT)}",
              f"v_add_u32 {v(vT)}, {QIMG}, {v(vT)}",
              f"v_lshlrev_b32 {v(vT+1)}, 1, {v(vT+1)}",
              f"v_xor_b32 {v(vT+2)}, {v(vT+2)}, {v(vT+1)}"]
        for D in range(4):
            L += [f"v_xor_b32 {v(vT+3)}, {D}, {v(vT+2)}",
                  f"v_lshl_add_u32 {v(vVa+D)}, {v(vT+3)}, 6, {v(vT)}"]
        L += [f"v_lshrrev_b32 {v(vT)}, 2, {v(vN)}",
              f"v_xor_b32 {v(vT)}, {v(vT)}, {v(vG)}",
              f"v_and_b32 {v(vT)}, 1, {v(vT)}",
              f"v_add_u32 {v(vT)}, -1, {v(vT)}",
              f"v_and_b32 {v(vSel)}, 0x3f803f80, {v(vT)}",
              f"v_mov_b32 {v(vSel+1)}, {v(vSel)}", f"v_mov_b32 {v(vSel+2)}, {v(vSel)}", f"v_mov_b32 {v(vSel+3)}, {v(vSel)}"]
        return L
    def init_list():
        L = [f"v_mov_b32 {v(vO+k)}, 0" for k in range(64)] + [f"v_mov_b32 {v(vLa+k)}, 0" for k in range(4)]
        L += [f"v_mov_b32 {v(vM)}, 0xff800000", f"v_mov_b32 {v(vMc)}, 0"] + [f"v_mov_b32 {v(vSn+k)}, 0xff800000" for k in range(16)]
        L += [f"s_mov_b32 s{sSLOT}, 1", f"s_mov_b32 s{sIT}, 0", f"s_mov_b32 s{sDK}, 16384"]
        return L
    def q_image(vC, mid=()):
        A(f"v_lshlrev_b32 {v(vT+2)}, 4, {v(vN)}")
        A(f"v_lshl_add_u32 {v(vT+2)}, {v(vG)}, 11, {v(vT+2)}")
        A(f"s_lshr_b32 s{sT1}, s{sW}, 1")
        A(f"s_lshl_b32 s{sT1}, s{sT1}, 13")
        A(f"s_add_u32 s{sT1}, s{sT1}, {QIMG}")
        A(f"s_lshl_b32 s{sT2}, s{sKH}, 8")
        A(f"s_add_u32 s{sT2}, s{sT2}, s{sT1}")
        A(f"v_add_u32 {v(vT+2)}, s{sT2}, {v(vT+2)}")
        for i in range(4):
            A(f"ds_write_b128 {v(vT+2)}, {v(vC+4*i,4)} offset:{(i>>1)*1024 + (i&1)*512}")
        A(f"v_add_u32 {v(vT+3)}, s{sT1}, {v(vL16)}")
        emit(mid)
        A("s_waitcnt lgkmcnt(0)")
        A("s_barrier")
        for s_ in range(8):
            A(f"ds_read_b128 {v(vQf+4*s_,4)}, {v(vT+3)} offset:{s_*1024}")

    def pretouch(g1):
        if not PT:
            return
        A(f"v_mul_u32_u24 {v(vT)}, 36864, {v(vN)}")
        A(f"s_mul_i32 s{sT0}, s{sB}, {16*36864}")
        A(f"s_mul_i32 s{sT1}, s{sW}, 9216")
        A(f"s_add_u32 s{sT0}, s{sT0}, s{sT1}")
        A(f"s_add_u32 s{sT0}, s{sT0}, {PY}")
        A(f"v_add_u32 {v(vT)}, s{sT0}, {v(vT)}")
        A(f"s_lshl_b32 s{sT0}, s{sPR}, 2")
        A(f"s_add_u32 s{sT0}, s{sT0}, s{sW}")
        A(f"s_mul_i32 s{sT0}, s{sT0}, 9216")
        A(f"s_add_u32 s{sT0}, s{sT0}, {OB}")
        A(f"v_writelane_b32 {v(vT)}, s{sT0}, 16")
        A(f"s_add_u32 s{sT0}, s{sT0}, 8192")
        A(f"v_writelane_b32 {v(vT)}, s{sT0}, 17")
        A(f"s_lshl_b32 s{sT0}, s{sB}, 13")
        A(f"s_add_u32 s{sT0}, s{sT0}, {FY}")
        A(f"v_writelane_b32 {v(vT)}, s{sT0}, 18")
        A(f"s_add_u32 s{sT0}, s{sT0}, 4096")
        A(f"v_writelane_b32 {v(vT)}, s{sT0}, 19")
        A.vmem(f"buffer_load_dword {v(vX+18)}, {v(vT)}, s[{SWS}:{SWS+3}], 0 offen sc1", "pt")
        if not g1:
            A(f"v_lshlrev_b32 {v(vT)}, 12, {v(vN)}")
            A(f"s_mul_i32 s{sT0}, s{sB}, 36864")
            A.vmem(f"buffer_load_dword {v(vX+19)}, {v(vT)}, s[{SX}:{SX+3}], s{sT0} offen", "pt")

    fmas = [f"v_fma_f32 {v(vSo+k)}, {v(vSn+k)}, s{sC}, -{v(vMc)}" for k in range(16)]
    def expcvt():
        L = []
        for k in range(16):
            L.append(f"v_exp_f32 {v(vSo+k)}, {v(vSo+k)}")
            if k >= 3 and k % 2 == 1:
                q = (k - 3) // 2
                L.append(f"v_cvt_pk_bf16_f32 {v(vP+q)}, {v(vSo+2*q)}, {v(vSo+2*q+1)}")
        L.append("s_nop 0")
        L.append(f"v_cvt_pk_bf16_f32 {v(vP+7)}, {v(vSo+14)}, {v(vSo+15)}")
        return L
    pvo = [(2, 0), (3, 0), (2, 1), (3, 1), (0, 0), (1, 0), (0, 1), (1, 1)]
    def vread(f):
        D, t = pvo[f]
        return [f"ds_read_b64_tr_b16 {v(vKV+4*f+2*u,2)}, {v(vVa+D)} offset:{(16*t+8*u)*256}" for u in range(2)]
    def pvm(f):
        D, t = pvo[f]
        return f"{M32} {v(vO+16*D,16)}, {v(vKV+4*f,4)}, {v(vP+4*t,4)}, {v(vO+16*D,16)}"
    def lm(t):
        return f"{M16} {v(vLa,4)}, {v(vSel,4)}, {v(vP+4*t,4)}, {v(vLa,4)}"
    def body(mem, tail_salu, lab):
        if STAMPS and PROF == 0:
            A("s_memrealtime s[96:97]")
            A("s_waitcnt lgkmcnt(0)")
            A(f"s_mov_b32 m0, s{sIT}")
            A("s_nop 0")
            A(f"v_writelane_b32 v255, s96, m0")
        emit([f"ds_read_b128 {v(vKV+4*s_,4)}, {v(vKa+s_)}" for s_ in range(8)])
        emit(mem[0])
        emit(fmas)
        A(f"s_add_u32 s{sSLOT}, s{sSLOT}, 1")
        A(f"s_cmp_ge_u32 s{sSLOT}, 5")
        A(f"s_cselect_b32 s{sDV}, {(-4*16384) & 0xffffffff:#x}, s{sK16}")
        A(f"s_cselect_b32 s{sSLOT}, 0, s{sSLOT}")
        ec = expcvt()
        per = [3, 3, 3, 3, 3, 3, 4, 3]
        for s_ in range(8):
            A(f"s_waitcnt lgkmcnt({7 + s_})")
            A(f"{M32} {v(vSn,16)}, {v(vKV+4*s_,4)}, {v(vQf+4*s_,4)}, {v(vSn,16) if s_ else 0}")
            emit(vread(s_) if s_ < 7 else [])
            for _ in range(per[s_]):
                A(ec.pop(0))
            if s_ == 3:
                emit(mem[1])
        A("s_waitcnt lgkmcnt(12)")
        emit(vread(7))
        kadds = [f"v_add_u32 {v(vKa+k)}, s{sDK}, {v(vKa+k)}" for k in range(8)]
        vadds = [f"v_add_u32 {v(vVa+k)}, s{sDV}, {v(vVa+k)}" for k in range(4)]
        mx = [f"v_max3_f32 {v(vMx)}, {v(vSn)}, {v(vSn+1)}, {v(vSn+2)}", f"v_max3_f32 {v(vT)}, {v(vSn+3)}, {v(vSn+4)}, {v(vSn+5)}",
              f"v_max3_f32 {v(vMx)}, {v(vMx)}, {v(vSn+6)}, {v(vSn+7)}", f"v_max3_f32 {v(vT)}, {v(vT)}, {v(vSn+8)}, {v(vSn+9)}",
              f"v_max3_f32 {v(vMx)}, {v(vMx)}, {v(vSn+10)}, {v(vSn+11)}", f"v_max3_f32 {v(vT)}, {v(vT)}, {v(vSn+12)}, {v(vSn+13)}",
              f"v_max3_f32 {v(vMx)}, {v(vMx)}, {v(vSn+14)}, {v(vSn+15)}", f"v_max_f32 {v(vMx)}, {v(vMx)}, {v(vT)}"]
        gaps = [
            mem[2] + kadds[:3],
            kadds[3:8],
            mem[3] + vadds[:2],
            vadds[2:] + mx[:3],
            mem[4] + mx[3:6],
            mx[6:] + [f"v_mov_b32 {v(vT)}, {v(vMx)}"] + mem[5] + [f"s_mov_b32 s{sDK}, s{sDV}"],
            [f"v_permlane32_swap_b32 {v(vMx)}, {v(vT)}"] + mem[6] + ["s_nop 0", f"v_max_f32 {v(vMx)}, {v(vMx)}, {v(vT)}", f"v_sub_f32 {v(vT)}, {v(vMx)}, {v(vM)}"],
            mem[7] + [f"v_cmp_lt_f32 vcc, s{sTHR}, {v(vT)}"],
        ]
        for f in range(8):
            if f in (1, 3, 5, 7):
                A(f"s_waitcnt lgkmcnt({max(0, 16 - 2 * (f + 2))})")
            A(pvm(f))
            emit(gaps[f])
        A(lm(0)); A(lm(1))
        emit(tail_salu)
        A(f"s_cbranch_vccz L_nors{lab}")
        A(f"s_call_b64 s[{sM64}:{sM64+1}], L_rescale")
        A.label(f"L_nors{lab}")

    A(f"s_cmp_lt_u32 s2, 128")
    A("s_cbranch_scc1 L_g2")

    emit(kv_setup())
    A(f"s_mul_i32 s{sXOFF}, s{sKVH}, {256*1152}")
    A(f"s_mul_i32 s{sT0}, s{sB}, 36864")
    A(f"s_mul_i32 s{sT1}, s{sW}, 9216")
    A(f"s_add_u32 s{sT0}, s{sT0}, s{sT1}")
    A(f"s_add_u32 s{sT0}, s{sT0}, s{sXOFF}")
    A(f"v_lshlrev_b32 {v(vT)}, 7, {v(vLane)}")
    A("s_waitcnt lgkmcnt(0)")
    srd(A, SWT, KA+8, KA+9, 576 * 4096 * 2)
    A.vmem(f"buffer_load_dword {v(vAl)}, {v(vT)}, s[{SWT}:{SWT+3}], s{sT0} offen", "pw")
    A.vmem(f"buffer_load_dword {v(vBe)}, {v(vT)}, s[{SWT}:{SWT+3}], s{sT0} offen offset:1024", "pw")
    emit(kv_srds())
    emit(dma_list("G", first=True))
    emit(dma_list("G"))
    srd(A, SWS, KA+14, KA+15, 1 << 30)
    emit(common_setup())
    if CODEWARM == 1:
        A(f"s_cmp_eq_u32 s{sB}, 0")
        A("s_cbranch_scc0 L_nocw")
        for x in [f"s_getpc_b64 s[{sT0}:{sT0+1}]", "L_pc:", f"s_sub_u32 s{sT0}, s{sT0}, L_pc-{NAME}", f"s_subb_u32 s{sT1}, s{sT1}, 0",
                  f"v_mov_b32 {v(vT+1)}, s{sW}", f"v_lshlrev_b32 {v(vT+1)}, 13, {v(vT+1)}", f"v_lshl_add_u32 {v(vT+1)}, {v(vLane)}, 7, {v(vT+1)}",
                  f"v_min_u32 {v(vT+1)}, L_code_end-{NAME}-4, {v(vT+1)}",
                  f"global_load_dword {v(vMx)}, {v(vT+1)}, s[{sT0}:{sT0+1}]"]:
            A(x)
        A.label("L_nocw")
    vWm, vTmp = 68, 72
    A(f"v_lshrrev_b32 {v(vT)}, 1, {v(vG)}")
    A(f"v_lshlrev_b32 {v(vT)}, 2, {v(vT)}")
    A(f"v_and_b32 {v(vT+1)}, 1, {v(vG)}")
    A(f"v_add_u32 {v(vT)}, {v(vT)}, {v(vT+1)}")
    A(f"v_mul_u32_u24 {v(vT)}, {4*1152}, {v(vT)}")
    A(f"s_lshl_b32 s{sT0}, s{sW}, 8")
    A(f"v_lshl_add_u32 {v(vWm)}, {v(vN)}, 4, {v(vT)}")
    A(f"v_add_u32 {v(vWm)}, s{sT0}, {v(vWm)}")
    A(f"v_add_u32 {v(vWm+1)}, {8*1152}, {v(vWm)}")
    for g_ in range(2, 5):
        emit(dma_list("G"))
    stamp(0)
    rawat = [88 + 32 * (k % 5) for k in range(8)]
    def wo_issue(k):
        T = rawat[k]
        L = [f"s_add_u32 s{sT2}, s{sXOFF}, {k*32*1152}"]
        for e in range(8):
            L.append((f"buffer_load_dwordx4 {v(T+4*e,4)}, {v(vWm+(e>>2))}, s[{SWT}:{SWT+3}], s{sT2} offen offset:{(e&3)*1152}", f"w{k}"))
        return L
    def wo_transpose(k):
        T = rawat[k]
        L = []; cnt = 0
        for j in range(8):
            for t in range(4):
                tmp = vTmp + (cnt % 8); cnt += 1
                L.append(f"v_perm_b32 {v(tmp)}, {v(T+4*(2*t+1)+j//2)}, {v(T+4*(2*t)+j//2)}, s{sSELH if (j & 1) else sSELL}")
                L.append(f"v_accvgpr_write_b32 {a(32*k+4*j+t)}, {v(tmp)}")
        return L
    A(f"s_lshl_b32 s{sT0}, s{sPR}, 2")
    A(f"s_add_u32 s{sT0}, s{sT0}, s{sW}")
    A(f"s_lshl_b32 s{sQOFF}, s{sT0}, 7")
    A(f"s_add_u32 s{sQOFF}, s{sQOFF}, {FQ}")
    A(f"s_lshl_b32 s{sST}, s{sT0}, 13")
    A(f"s_sub_u32 s{sA0}, s{sTIM}, 1000")
    A(f"s_subb_u32 s{sA1}, s{sTIM+1}, 0")
    vQL = 36
    def q_batch():
        L = [(f"buffer_load_dwordx2 {v(vT,2)}, off, s[{SWS}:{SWS+3}], s{sQOFF} sc1", "qb"), f"s_add_u32 s{sT0}, s{sST}, 4096"]
        for k in range(8):
            L.append((f"buffer_load_dwordx4 {v(vQL+4*k,4)}, {v(vL16)}, s[{SWS}:{SWS+3}], s{sST if k < 4 else sT0} offen offset:{(k%4)*1024} sc1", "qb"))
        return L
    emit(wo_issue(0))
    emit(wo_issue(1))
    A("s_waitcnt vmcnt(40)"); A.retired = len(A.vm) - 40
    emit(wo_issue(2))
    emit(wo_issue(3))
    for k in range(8):
        A.wait_vm(f"w{k}")
        stamp(k, 2)
        nx = wo_issue(k + 4) if k + 4 < 8 else (q_batch() if k == QAT else [])
        emit(spread(wo_transpose(k), nx))
    stamp(1)
    if QAT == 8:
        emit(q_batch())
    emit(init_list())
    A(f"s_mov_b32 s{sT2}, 0")
    A("s_branch L_pollq_chk")
    A.label("L_pollq")
    A(f"s_sleep {SLEEP}")
    for x in q_batch():
        A(x[0] if isinstance(x, tuple) else x)
    A.label("L_pollq_chk")
    A(f"v_mov_b32 {v(vT+3)}, s{sA1}")
    A("s_waitcnt vmcnt(0)")
    for k in range(16):
        A(f"v_xor_b32 {v(vQL+2*k+1)}, {v(vQL+2*k+1)}, {v(vT)}")
        A(f"v_mov_b32 {v(vKV+k)}, {v(vQL+2*k)}")
    for k in range(1, 15, 2):
        A(f"v_or3_b32 {v(vQL+1)}, {v(vQL+1)}, {v(vQL+2*k+1)}, {v(vQL+2*k+3)}")
    A(f"v_subrev_co_u32 {v(vT+2)}, vcc, s{sA0}, {v(vT)}")
    A(f"v_subb_co_u32 {v(vT+3)}, vcc, {v(vT+1)}, {v(vT+3)}, vcc")
    A(f"v_or3_b32 {v(vT+3)}, {v(vT+3)}, {v(vQL+1)}, {v(vQL+31)}")
    A(f"v_cmp_le_u64 vcc, s[{sWIN}:{sWIN+1}], {v(vT+2,2)}")
    A(f"s_add_u32 s{sT2}, s{sT2}, 1")
    A("s_cbranch_vccz L_pollq_done")
    A(f"s_cmp_lt_u32 s{sT2}, {SPIN_MAX}")
    A("s_cbranch_scc1 L_pollq")
    A.label("L_pollq_done")
    A(f"v_readfirstlane_b32 s{sNON}, {v(vT)}")
    q_image(vKV)
    pretouch(True)
    A(f"s_mov_b32 s{sST}, {N1-2-ND}")
    A("s_waitcnt lgkmcnt(0)")
    stamp(2)
    A.label("L_nodma")
    body([[] for _ in range(8)], [], "f")
    A("s_branch L_loop_end")

    A.label("L_g2")
    A.vm = []; A.retired = 0
    NB = 5
    vRaw = [88 + 32 * i for i in range(NB)]
    vFr = 36
    vWoff = 68; vXoff = 76
    aXf = [64 + 8 * i for i in range(9)]
    A(f"v_lshlrev_b32 {v(vT)}, 16, {v(vG)}")
    A(f"v_lshl_add_u32 {v(vT)}, {v(vN)}, 4, {v(vT)}")
    for r in range(8):
        A(f"v_add_u32 {v(vWoff+r)}, {r*8192}, {v(vT)}")
    A(f"s_mov_b32 s{sST}, s{sB}")
    A(f"s_mul_i32 s{sQOFF}, s{sKH}, {288*8192}")
    A(f"s_lshl_b32 s{sT1}, s{sKVH}, 9")
    A(f"s_add_u32 s{sQOFF}, s{sQOFF}, s{sT1}")
    A(f"s_lshr_b32 s{sT1}, s{sW}, 1")
    A(f"s_lshl_b32 s{sT1}, s{sT1}, 8")
    A(f"s_add_u32 s{sQOFF}, s{sQOFF}, s{sT1}")
    A(f"s_mul_i32 s{sXOFF}, s{sB}, 36864")
    A(f"s_mul_i32 s{sT1}, s{sW}, 9216")
    A(f"s_add_u32 s{sXOFF}, s{sXOFF}, s{sT1}")
    A(f"s_add_u32 s{sT1}, s{sT1}, {XL}")
    A("s_waitcnt lgkmcnt(0)")
    srd(A, SX, KA+0, KA+1, 8 * 32 * 576 * 2)
    for k in range(9):
        if k % 4 == 0:
            A(f"s_mov_b32 m0, s{sT1}")
            A(f"s_add_u32 s{sT1}, s{sT1}, 4096")
        A.vmem(f"buffer_load_dwordx4 {v(vL16)}, s[{SX}:{SX+3}], s{sXOFF} offen offset:{(k%4)*1024} lds", "x")
        if k % 4 == 3:
            A(f"s_add_u32 s{sXOFF}, s{sXOFF}, 4096")
    srd(A, SWT, KA+6, KA+7, 576 * 4096 * 2)
    def qload(step):
        rb = vRaw[step % NB]
        L = [f"s_lshl_b32 s{sT0}, s{sST}, 18", f"s_add_u32 s{sT0}, s{sT0}, s{sQOFF}"]
        for r in range(8):
            L.append((f"buffer_load_dwordx4 {v(rb+4*r,4)}, {v(vWoff+r)}, s[{SWT}:{SWT+3}], s{sT0} offen", f"q{step}"))
        L += [f"s_add_u32 s{sST}, s{sST}, 1", f"s_cmp_eq_u32 s{sST}, 9", f"s_cselect_b32 s{sST}, 0, s{sST}"]
        return L
    emit(qload(0))
    emit(kv_srds())
    srd(A, SWS, KA+14, KA+15, 1 << 30)
    stamp(0)
    xa = [f"v_mul_u32_u24 {v(vT)}, 1152, {v(vN)}",
          f"v_lshl_add_u32 {v(vT)}, {v(vG)}, 4, {v(vT)}",
          f"v_mov_b32 {v(vT+1)}, s{sKH}",
          f"v_mul_u32_u24 {v(vT+2)}, {16*1152 + 576}, {v(vT+1)}",
          f"v_add3_u32 {v(vXoff)}, {v(vT)}, {v(vT+2)}, s{sK16}",
          f"v_mul_u32_u24 {v(vT+2)}, {16*1152 - 576}, {v(vT+1)}",
          f"v_sub_u32 {v(vXoff+1)}, {v(vT)}, {v(vT+2)}",
          f"v_add_u32 {v(vXoff+1)}, {16*1152 + 16384}, {v(vXoff+1)}"]
    emit(spread(kv_setup() + common_setup() + xa, qload(1) + qload(2)))
    A.wait_vm("x")
    A("s_barrier")
    A(f"s_mov_b32 s{sT1}, s{sB}")
    for step in range(9):
        A(f"s_lshl_b32 s{sT2}, s{sT1}, 6")
        for u in range(2):
            A(f"v_add_u32 {v(vT+u)}, s{sT2}, {v(vXoff+u)}")
            A(f"ds_read_b128 {a(aXf[step]+4*u,4)}, {v(vT+u)} offset:{XL - 16384}")
        A(f"s_add_u32 s{sT1}, s{sT1}, 1"); A(f"s_cmp_eq_u32 s{sT1}, 9"); A(f"s_cselect_b32 s{sT1}, 0, s{sT1}")
        if step == 5:
            A("s_waitcnt lgkmcnt(4)")
    emit(qload(3))
    A("s_waitcnt lgkmcnt(0)")
    A("s_barrier")
    ng = 0
    for step in range(9):
        rb = vRaw[step % NB]
        A.wait_vm(f"q{step}")
        stamp(step, 2)
        comp = []
        for j in range(8):
            for t in range(4):
                sel = sSELH if (j & 1) else sSELL
                comp.append(f"v_perm_b32 {v(vFr+4*j+t)}, {v(rb+4*(2*t+1)+j//2)}, {v(rb+4*(2*t)+j//2)}, s{sel}")
        comp.append("s_nop 1")
        for j in range(8):
            for u in range(2):
                acc = a((u * 8 + j) * 4, 4)
                comp.append(f"{M16} {acc}, {v(vFr+4*j,4)}, {a(aXf[step]+4*u,4)}, {acc if step else 0}")
        nx = []
        if step + 4 < 9:
            nx = qload(step + 4)
        elif ng < NGB:
            nx = dma_list(f"G{ng}", first=(ng == 0)); ng += 1
        emit(spread(comp, nx))
    A(f"s_memrealtime s[{sNON}:{sNON+1}]")
    stamp(1)
    A(f"s_lshl_b32 s{sT2}, s{sW}, 13")
    A(f"s_add_u32 s{sT2}, s{sT2}, {XL}")
    A(f"s_xor_b32 s{sT0}, s{sT2}, 8192")
    A(f"v_add_u32 {v(vT+1)}, s{sT0}, {v(vL16)}")
    A(f"v_add_u32 {v(vT+2)}, s{sT2}, {v(vL16)}")
    A.nop(2)
    for j in range(8):
        A(f"ds_write_b128 {v(vT+1)}, {a((8+j)*4,4)} offset:{j*1024}")
    vDq = 184; vG8 = 216; vC = 152
    for k in range(32):
        A(f"v_accvgpr_read_b32 {v(vDq+k)}, {a(k)}")
    A("s_waitcnt lgkmcnt(0)")
    A("s_barrier")
    for j in range(8):
        A(f"ds_read_b128 {v(vFr+4*j,4)}, {v(vT+2)} offset:{j*1024}")
    A(f"s_lshl_b32 s{sT0}, s{sPR}, 2")
    A(f"s_add_u32 s{sT0}, s{sT0}, s{sW}")
    A(f"s_lshl_b32 s{sQOFF}, s{sT0}, 7")
    A(f"s_add_u32 s{sQOFF}, s{sQOFF}, {FQ}")
    A(f"s_lshl_b32 s{sT0}, s{sT0}, 13")
    A(f"s_add_u32 s{sT1}, s{sT0}, 4096")
    for k in range(16):
        A(f"v_mov_b32 {v(vG8+2*k+1)}, s{sNON}")
    for k in range(4):
        A(f"v_mov_b32 {v(vX+12+k)}, s{sNON+(k&1)}")
    A("s_mov_b64 exec, 0xff")
    A.vmem(f"buffer_store_dwordx4 {v(vX+12,4)}, {v(vL16)}, s[{SWS}:{SWS+3}], s{sQOFF} offen sc1", "qs")
    A("s_mov_b64 exec, -1")
    A("s_waitcnt lgkmcnt(0)")
    for k in range(0, 32, 2):
        A(f"v_pk_add_f32 {v(vDq+k,2)}, {v(vDq+k,2)}, {v(vFr+k,2)}")
    for i in range(4):
        for t in range(4):
            A(f"v_cvt_pk_bf16_f32 {v(vG8+2*(4*i+t))}, {v(vDq+4*(2*t)+i)}, {v(vDq+4*(2*t+1)+i)}")
            if t % 2 == 1:
                k = 2 * i + t // 2
                A.vmem(f"buffer_store_dwordx4 {v(vG8+4*k,4)}, {v(vL16)}, s[{SWS}:{SWS+3}], s{sT0 if k < 4 else sT1} offen offset:{(k%4)*1024} sc1", "qs")
    stamp(6)
    for k in range(16):
        A(f"v_mov_b32 {v(vC+k)}, {v(vG8+2*k)}")
    mid = []
    while ng < 3:
        mid += dma_list(f"G{ng}", first=(ng == 0)); ng += 1
    q_image(vC, mid)
    emit(spread(init_list(), dma_list("G3")))
    A(f"s_mov_b32 s{sST}, 1000")
    srd(A, SX, KA+10, KA+11, 8 * 32 * 576 * 2)
    pretouch(False)
    A("s_waitcnt lgkmcnt(0)")
    stamp(2)

    A.label("L_loop")
    if SK_IT:
        A(f"s_cmp_gt_u32 s{sIT}, {SK_IT}")
        A("s_cbranch_scc0 L_w24")
        A("s_waitcnt vmcnt(16)")
        A.label("L_w24")
    A("s_waitcnt vmcnt(24)")
    A("s_barrier")
    if SK_IT:
        A(f"s_cmp_eq_u32 s{sIT}, {SK_IT}")
        A("s_cbranch_scc1 L_nodma")
    dl = dma_list()
    body([dl[0:3], [dl[3]], [dl[4]], dl[5:9], [dl[10]], [dl[11]], [dl[12]], [dl[13]]], dl[14:], "m")
    A.label("L_loop_end")
    A(f"s_cmp_eq_u32 s{sIT}, s{sST}")
    A("s_cbranch_scc1 L_special")
    A.label("L_special_ret")
    A(f"s_add_u32 s{sIT}, s{sIT}, 1")
    A(f"s_add_u32 s{sT0}, s{sIT}, {ND}")
    A(f"s_cmp_lt_u32 s{sT0}, s{sN}")
    A("s_cbranch_scc1 L_loop")

    for p in range(4):
        A(f"v_add_u32 {v(vKoff+p)}, {128*1152 - 16384}, {v(vKoff+p)}")
    A(f"s_lshl_b32 s{sQOFF}, s{sPR}, 2")
    A(f"s_add_u32 s{sQOFF}, s{sQOFF}, s{sW}")
    A(f"s_mul_i32 s{sQOFF}, s{sQOFF}, 9216")
    A(f"s_add_u32 s{sQOFF}, s{sQOFF}, {OB}")
    A(f"s_cmp_lt_u32 s2, 128")
    A(f"s_cselect_b32 s{sST}, {OOB:#x}, s{sQOFF}")
    A(f"s_add_u32 s{sMV}, s{sST}, 4096")
    A(f"s_add_u32 s{sOFFc}, s{sST}, 8192")
    def orec1(op, k, regs):
        return f"{op} {v(vR+4*k,4)}, {v(vL16)}, s[{SWS}:{SWS+3}], s{regs[k//4]} offen offset:{(k%4)*1024} sc1"
    RL = (sST, sMV, sOFFc)
    A.vm = [f"D{g_}" for g_ in range(3 - ND, 4) for _ in range(8)]; A.retired = 0
    for d in range(3 - ND, 3):
        A.wait_vm(f"D{d}")
        A("s_barrier")
        mem = [[] for _ in range(8)]
        if d == 3 - ND:
            b8 = dma_list("b8", first=True)
            mem[0] = b8[0:3]; mem[1] = [b8[3]]; mem[2] = [b8[4]]; mem[3] = [b8[5]]
        if d == RAT:
            for k in range(9):
                mem[min(7, k)].append((orec1("buffer_load_dwordx4", k, RL), "rec"))
        body(mem, [f"s_add_u32 s{sIT}, s{sIT}, 1"], f"d{d}")

    def slot_after(dst, src):
        A(f"s_add_u32 s{dst}, s{src}, 16384")
        A(f"s_cmp_ge_u32 s{dst}, {VRING}")
        A(f"s_cselect_b32 s{dst}, 0, s{dst}")
    A(f"s_sub_u32 s{sRK}, s{sRK}, s{sM0B}")
    slot_after(sA0, sRK)
    slot_after(sA1, sA0)
    slot_after(sMK, sA1)
    slot_after(sLIM, sMK)
    A(f"s_lshl_b32 s{sT0}, s{sW}, 9")
    A(f"s_add_u32 s{sT0}, s{sT0}, s{sMK}")
    A(f"s_add_u32 s{sT0}, s{sT0}, {VRING}")
    A(f"v_lshrrev_b32 {v(vT+2)}, 2, {v(vL16)}")
    A(f"v_add_u32 {v(vT+2)}, s{sT0}, {v(vT+2)}")
    A(f"ds_write_b32 {v(vT+2)}, {v(vM)}")
    A(f"v_xor_b32 {v(vT+1)}, 512, {v(vT+2)}")
    A("s_waitcnt lgkmcnt(0)")
    A("s_barrier")
    A(f"ds_read_b32 {v(vMx)}, {v(vT+1)}")
    A(f"s_cmp_lt_u32 s{sW}, 2")
    A(f"s_cselect_b32 s{sT1}, s{sA0}, s{sA1}")
    A(f"s_lshl_b32 s{sT2}, s{sKH}, 13")
    A(f"s_add_u32 s{sT1}, s{sT1}, s{sT2}")
    A(f"s_xor_b32 s{sT2}, s{sT1}, 8192")
    A(f"v_add_u32 {v(vT+3)}, s{sT2}, {v(vL16)}")
    A(f"v_add_u32 {v(vX+2)}, s{sT1}, {v(vL16)}")
    A(f"v_and_b32 {v(vX)}, 1, {v(vG)}")
    A(f"v_lshlrev_b32 {v(vX)}, 12, {v(vX)}")
    A(f"v_lshrrev_b32 {v(vX+1)}, 1, {v(vG)}")
    A(f"v_lshl_add_u32 {v(vX)}, {v(vX+1)}, 8, {v(vX)}")
    A(f"v_lshl_add_u32 {v(vX)}, {v(vN)}, 4, {v(vX)}")
    A(f"s_lshr_b32 s{sT0}, s{sW}, 1")
    A(f"s_lshl_b32 s{sT0}, s{sT0}, 13")
    A(f"s_lshl_b32 s{sT1}, s{sKH}, 11")
    A(f"s_add_u32 s{sT0}, s{sT0}, s{sT1}")
    A(f"s_add_u32 s{sT0}, s{sT0}, s{sMK}")
    A(f"v_add_u32 {v(vX)}, s{sT0}, {v(vX)}")
    A("s_waitcnt lgkmcnt(0)")
    A(f"s_call_b64 s[{sM64}:{sM64+1}], L_rescale")
    emit(fmas)
    emit(expcvt())
    A.nop(1)
    A(lm(0)); A(lm(1))
    if RAT == 3:
        for k in range(9):
            A.vmem(orec1("buffer_load_dwordx4", k, RL), "rec")
    A.nop(8)
    A(f"ds_write_b32 {v(vT+2)}, {v(vLa)} offset:256")
    A("s_waitcnt lgkmcnt(0)")
    A.wait_vm("b8")
    A("s_barrier")
    stamp(3)
    for f in range(7):
        emit(vread(f))
    A("s_waitcnt lgkmcnt(10)")
    A(pvm(0)); A(pvm(1))
    emit(vread(7))
    A(f"ds_read_b32 {v(vT)}, {v(vT+1)} offset:256")
    A("s_waitcnt lgkmcnt(9)")
    A(pvm(2)); A(pvm(3))
    A("s_waitcnt lgkmcnt(5)")
    A(pvm(4)); A(pvm(5))
    A("s_waitcnt lgkmcnt(0)")
    A(pvm(6)); A(pvm(7))
    vL1 = vX + 3
    A(f"v_add_f32 {v(vL1)}, {v(vLa)}, {v(vT)}")
    A.nop(5)
    for k in range(8):
        A(f"ds_write_b128 {v(vT+3)}, {v(vO+32+4*k,4)} offset:{k*1024}")
    A(f"s_cmp_lt_u32 s2, 128")
    A("s_cbranch_scc1 L_g2_tail")

    A(f"s_mov_b32 s{sT2}, 0")
    A("s_branch L_pollo_chk")
    A.label("L_pollo")
    A(f"s_sleep {SLEEP}")
    for k in range(9):
        A(orec1("buffer_load_dwordx4", k, RL))
    A.label("L_pollo_chk")
    A(f"v_mov_b32 {v(vT)}, s{sNON}")
    A("s_waitcnt vmcnt(0)")
    for k in range(18):
        A(f"v_xor_b32 {v(vR+2*k+1)}, {v(vR+2*k+1)}, {v(vT)}")
    for k in range(1, 17, 2):
        A(f"v_or3_b32 {v(vR+1)}, {v(vR+1)}, {v(vR+2*k+1)}, {v(vR+2*k+3)}")
    A(f"v_or_b32 {v(vR+1)}, {v(vR+1)}, {v(vR+35)}")
    A(f"v_cmp_ne_u32 vcc, 0, {v(vR+1)}")
    A(f"s_add_u32 s{sT2}, s{sT2}, 1")
    A("s_cbranch_vccz L_pollo_done")
    A(f"s_cmp_lt_u32 s{sT2}, {SPIN_MAX}")
    A("s_cbranch_scc1 L_pollo")
    A.label("L_pollo_done")
    A("s_waitcnt lgkmcnt(0)")
    A("s_barrier")
    stamp(11)
    for k in range(8):
        A(f"ds_read_b128 {v(vO+32+4*k,4)}, {v(vX+2)} offset:{k*1024}")
    A(f"v_max_f32 {v(vMx)}, {v(vM)}, {v(vR+32)}")
    A(f"v_mul_f32 {v(vMc)}, s{sC}, {v(vMx)}")
    A(f"v_fma_f32 {v(vAl)}, {v(vM)}, s{sC}, -{v(vMc)}")
    A(f"v_fma_f32 {v(vBe)}, {v(vR+32)}, s{sC}, -{v(vMc)}")
    A(f"v_exp_f32 {v(vAl)}, {v(vAl)}")
    A(f"v_exp_f32 {v(vBe)}, {v(vBe)}")
    A.nop(1)
    A(f"v_mul_f32 {v(vT)}, {v(vBe)}, {v(vR+34)}")
    A(f"v_fma_f32 {v(vT)}, {v(vAl)}, {v(vL1)}, {v(vT)}")
    A(f"v_rcp_f32 {v(vT)}, {v(vT)}")
    for k in range(16):
        A(f"v_and_b32 {v(vR+2*k+1)}, 0xffff0000, {v(vR+2*k)}")
        A(f"v_lshlrev_b32 {v(vR+2*k)}, 16, {v(vR+2*k)}")
    A(f"v_mul_f32 {v(vAl)}, {v(vAl)}, {v(vT)}")
    A(f"v_mul_f32 {v(vBe)}, {v(vBe)}, {v(vT)}")
    A("s_waitcnt lgkmcnt(0)")
    for c in range(4):
        for k in range(4 * c, 4 * c + 4):
            A(f"v_pk_add_f32 {v(vO+2*k,2)}, {v(vO+2*k,2)}, {v(vO+32+2*k,2)}")
            A(f"v_pk_mul_f32 {v(vR+2*k,2)}, {v(vR+2*k,2)}, {v(vAl,2)} op_sel:[0,1] op_sel_hi:[1,1]")
            A(f"v_pk_fma_f32 {v(vO+2*k,2)}, {v(vO+2*k,2)}, {v(vAl,2)}, {v(vR+2*k,2)} op_sel_hi:[1,0,1]")
            A(f"v_cvt_pk_bf16_f32 {v(vX+4+k)}, {v(vO+2*k)}, {v(vO+2*k+1)}")
        A(f"ds_write_b128 {v(vX)}, {v(vX+4+4*c,4)} offset:{(c>>1)*1024 + (c&1)*512}")
    vB8 = 216
    A(f"v_lshrrev_b32 {v(vT)}, 1, {v(vG)}")
    A(f"v_lshlrev_b32 {v(vT)}, 2, {v(vT)}")
    A(f"v_and_b32 {v(vT+1)}, 1, {v(vG)}")
    A(f"v_add_u32 {v(vT)}, {v(vT)}, {v(vT+1)}")
    A(f"v_lshrrev_b32 {v(vT+1)}, 2, {v(vN)}")
    A(f"v_lshl_add_u32 {v(vT)}, {v(vT)}, 2, {v(vT+1)}")
    A(f"v_and_b32 {v(vT+1)}, 3, {v(vN)}")
    A(f"v_lshlrev_b32 {v(vT+1)}, 3, {v(vT+1)}")
    A(f"v_lshl_add_u32 {v(vT)}, {v(vT)}, 7, {v(vT+1)}")
    A(f"s_lshl_b32 s{sT1}, s{sW}, 5")
    A(f"s_add_u32 s{sT2}, s{sT1}, s{sRK}")
    A(f"s_add_u32 s{sT1}, s{sT1}, s{sLIM}")
    A(f"v_add_u32 {v(vT+1)}, s{sT2}, {v(vT)}")
    A(f"v_add_u32 {v(vT)}, s{sT1}, {v(vT)}")
    A(f"v_add_u32 {v(vT+2)}, s{sMK}, {v(vL16)}")
    A(f"s_and_b32 s{sT2}, s2, 15")
    A(f"s_lshl_b32 s{sT0}, s{sB}, 4")
    A(f"s_add_u32 s{sT0}, s{sT0}, s{sT2}")
    A(f"s_mul_i32 s{sT0}, s{sT0}, 36864")
    A(f"s_mul_i32 s{sT1}, s{sW}, 9216")
    A(f"s_add_u32 s{sT0}, s{sT0}, s{sT1}")
    A(f"s_add_u32 s{sT0}, s{sT0}, {PY}")
    A("s_waitcnt lgkmcnt(0)")
    A("s_barrier")
    stamp(4)
    def wfr(ks, j):
        return a(32 * ks + 4 * j, 4) if j < 8 else v(vB8 + 4 * ks, 4)
    def acc(rh, j):
        return 144 + 4 * (rh * 9 + j)
    def ofr(rh, ks):
        return v(vQf + 4 * ks, 4) if rh == 0 else v(vO + 4 * ks, 4)
    vPk = 120
    b8r = [f"ds_read_b64_tr_b16 {v(vB8+4*ks+2*u,2)}, {v(vT+(ks>>2))} offset:{(32*(ks&3)+8*u)*128}" for ks in range(8) for u in range(2)]
    o0 = [f"ds_read_b128 {ofr(0,ks)}, {v(vT+2)} offset:{(((ks>>2)*2+0)*4+(ks&3))*1024}" for ks in range(8)]
    o1 = [f"ds_read_b128 {ofr(1,ks)}, {v(vT+2)} offset:{(((ks>>2)*2+1)*4+(ks&3))*1024}" for ks in range(8)]
    for ks in range(4):
        A(o0[ks]); A(b8r[2*ks]); A(b8r[2*ks+1])
    for ks in range(8):
        A(f"s_waitcnt lgkmcnt({9 if ks < 5 else 9})")
        nxt = [o0[ks+4], b8r[2*(ks+4)], b8r[2*(ks+4)+1]] if ks < 4 else [o1[2*(ks-4)], o1[2*(ks-4)+1], o1[2*(ks-4)+1]]
        for j in range(9):
            d = v(acc(0, j), 4)
            A(f"{M16} {d}, {ofr(0,ks)}, {wfr(ks,j)}, {d if ks else 0}")
            if j < 3:
                A(nxt[j])
    A("s_waitcnt lgkmcnt(0)")
    def pack_store(rh):
        L = []
        for i in range(4):
            d = vPk + 4 * i
            for q in range(4):
                L.append(f"v_cvt_pk_bf16_f32 {v(d+q)}, {v(acc(rh,2*q)+i)}, {v(acc(rh,2*q+1)+i)}")
            L.append(f"buffer_store_dwordx4 {v(d,4)}, {v(vL16)}, s[{SWS}:{SWS+3}], s{sT0} offen offset:{i*1024} sc1")
        L.append(f"s_add_u32 s{sT0}, s{sT0}, 4096")
        for q in range(2):
            L.append(f"v_cvt_pk_bf16_f32 {v(136+2*rh+q)}, {v(acc(rh,8)+2*q)}, {v(acc(rh,8)+2*q+1)}")
        return L
    m1 = []
    for ks in range(8):
        for j in range(9):
            d = v(acc(1, j), 4)
            m1.append(f"{M16} {d}, {ofr(1,ks)}, {wfr(ks,j)}, {d if ks else 0}")
    misc = [f"s_lshl_b32 s{sT1}, s{sB}, 13",
            f"s_lshl_b32 s{sQOFF}, s{sW}, 7",
            f"s_add_u32 s{sT1}, s{sT1}, s{sQOFF}",
            f"s_lshl_b32 s{sQOFF}, s{sT2}, 3",
            f"s_add_u32 s{sT1}, s{sT1}, s{sQOFF}",
            f"s_add_u32 s{sT1}, s{sT1}, {FY}",
            f"v_lshlrev_b32 {v(vT)}, 9, {v(vN)}",
            f"s_memrealtime s[{sNON}:{sNON+1}]"]
    emit(m1[:10])
    emit(weave(m1[10:], pack_store(0) + misc, 1))
    stamp(5)
    A.nop(8)
    emit(pack_store(1))
    A(f"buffer_store_dwordx4 {v(136,4)}, {v(vL16)}, s[{SWS}:{SWS+3}], s{sT0} offen sc1")
    stamp(7)
    A("s_waitcnt lgkmcnt(0)")
    A(f"v_mov_b32 {v(vT+2)}, s{sNON}")
    A(f"v_mov_b32 {v(vT+3)}, s{sNON+1}")
    A("s_waitcnt vmcnt(0)")
    A("s_mov_b64 exec, 0xffff")
    A(f"buffer_store_dwordx2 {v(vT+2,2)}, {v(vT)}, s[{SWS}:{SWS+3}], s{sT1} offen sc1")
    A("s_mov_b64 exec, -1")
    stamp(8)
    A("s_branch L_fin")

    A.label("L_g2_tail")
    A("s_waitcnt vmcnt(0)")
    for k in range(18):
        A(f"v_mov_b32 {v(vR+2*k+1)}, s{sNON}")
    A(f"v_mov_b32 {v(vR+32)}, {v(vM)}")
    A(f"v_mov_b32 {v(vR+34)}, {v(vL1)}")
    A(f"s_add_u32 s{sMV}, s{sQOFF}, 4096")
    A(f"s_add_u32 s{sOFFc}, s{sQOFF}, 8192")
    RS = (sQOFF, sMV, sOFFc)
    A("s_waitcnt lgkmcnt(0)")
    A("s_barrier")
    for k in range(8):
        A(f"ds_read_b128 {v(vO+32+4*k,4)}, {v(vX+2)} offset:{k*1024}")
    A(orec1("buffer_store_dwordx4", 8, RS))
    for k in range(8):
        A(f"s_waitcnt lgkmcnt({7-k})")
        for z in range(2):
            A(f"v_pk_add_f32 {v(vO+4*k+2*z,2)}, {v(vO+4*k+2*z,2)}, {v(vO+32+4*k+2*z,2)}")
        for z in range(2):
            A(f"v_cvt_pk_bf16_f32 {v(vR+4*k+2*z)}, {v(vO+4*k+2*z)}, {v(vO+4*k+2*z+1)}")
        A(orec1("buffer_store_dwordx4", k, RS))
    stamp(4)
    sJ = sST
    srd(A, SX, KA+10, KA+11, 8 * 32 * 576 * 2)
    A(f"s_and_b32 s{sJ}, s2, 15")
    vSA = vQf
    A(f"v_and_b32 {v(vT)}, 1, {v(vN)}")
    A(f"v_lshlrev_b32 {v(vT)}, 4, {v(vT)}")
    A(f"v_mov_b32 {v(vT+1)}, 0x3f80")
    A(f"v_lshlrev_b32 {v(vT+1)}, {v(vT)}, {v(vT+1)}")
    A(f"v_lshrrev_b32 {v(vT)}, 1, {v(vN)}")
    for t in range(4):
        A(f"v_cmp_eq_u32 vcc, {t}, {v(vT)}")
        A.nop(2)
        A(f"v_cndmask_b32 {v(vSA+t)}, 0, {v(vT+1)}, vcc")
    A(f"s_lshl_b32 s{sT0}, s{sB}, 4")
    A(f"s_add_u32 s{sT0}, s{sT0}, s{sJ}")
    A(f"s_lshl_b32 s{sT0}, s{sT0}, 2")
    A(f"s_add_u32 s{sT0}, s{sT0}, s{sW}")
    A(f"s_lshl_b32 s{sT0}, s{sT0}, 7")
    A(f"s_add_u32 s{sQOFF}, s{sT0}, {FY}")
    A(f"v_lshlrev_b32 {v(vT+1)}, 3, {v(vN)}")
    A(f"v_mul_u32_u24 {v(vT)}, 36864, {v(vG)}")
    A(f"v_lshl_add_u32 {v(vT)}, {v(vN)}, 4, {v(vT)}")
    A(f"s_mul_i32 s{sT0}, s{sB}, {16*36864}")
    A(f"s_mul_i32 s{sT1}, s{sW}, 9216")
    A(f"s_add_u32 s{sT0}, s{sT0}, s{sT1}")
    A(f"s_add_u32 s{sT0}, s{sT0}, {PY}")
    A(f"s_lshl_b32 s{sT1}, s{sJ}, 8")
    A(f"s_add_u32 s{sXOFF}, s{sT0}, s{sT1}")
    A(f"s_add_u32 s{sXOFF}, s{sXOFF}, 8192")
    A(f"s_lshl_b32 s{sT1}, s{sJ}, 9")
    A(f"s_add_u32 s{sT0}, s{sT0}, s{sT1}")
    A(f"s_lshr_b32 s{sT1}, s{sJ}, 3")
    A(f"s_lshl_b32 s{sT1}, s{sT1}, 4")
    A(f"s_and_b32 s{sT2}, s{sJ}, 1")
    A(f"s_lshl_b32 s{sT2}, s{sT2}, 3")
    A(f"s_add_u32 s{sT1}, s{sT1}, s{sT2}")
    A(f"s_bfe_u32 s{sT2}, s{sJ}, 0x20001")
    A(f"s_add_u32 s{sT1}, s{sT1}, s{sT2}")
    A(f"s_lshl_b32 s{sT2}, s{sB}, 5")
    A(f"s_add_u32 s{sT1}, s{sT1}, s{sT2}")
    A(f"s_mul_i32 s{sT1}, s{sT1}, 1152")
    A(f"s_lshl_b32 s{sT2}, s{sW}, 8")
    A(f"s_add_u32 s{sT1}, s{sT1}, s{sT2}")
    A(f"s_add_u32 s{sOFF}, s{sT1}, {4*1152}")
    A(f"v_lshlrev_b32 {v(vMx)}, 4, {v(vN)}")
    A(f"v_lshl_add_u32 {v(vMx)}, {v(vG)}, 3, {v(vMx)}")
    A(f"s_mov_b32 s{sT2}, 0")
    A("s_branch L_polly_ld")
    A.label("L_polly")
    A(f"s_sleep {SLEEPY}")
    A.label("L_polly_ld")
    A(f"buffer_load_dwordx2 {v(vT+2,2)}, {v(vT+1)}, s[{SWS}:{SWS+3}], s{sQOFF} offen sc1")
    A(f"v_mov_b32 {v(vBe)}, s{sTIM+1}")
    A("s_waitcnt vmcnt(0)")
    A(f"v_subrev_co_u32 {v(vAl)}, vcc, s{sTIM}, {v(vT+2)}")
    A(f"v_subb_co_u32 {v(vBe)}, vcc, {v(vT+3)}, {v(vBe)}, vcc")
    A(f"v_cmp_le_u64 vcc, s[{sWIN}:{sWIN+1}], {v(vAl,2)}")
    A(f"s_add_u32 s{sT2}, s{sT2}, 1")
    A("s_cbranch_vccz L_polly_done")
    A(f"s_cmp_lt_u32 s{sT2}, {SPIN_MAX}")
    A("s_cbranch_scc1 L_polly")
    A.label("L_polly_done")
    stamp(9)
    vRR = vO
    for k in range(4):
        A(f"buffer_load_dwordx4 {v(vRR+4*k,4)}, {v(vT)}, s[{SWS}:{SWS+3}], s{sT0} offen sc1")
        A(f"buffer_load_dwordx4 {v(vRR+16+4*k,4)}, {v(vT)}, s[{SWS}:{SWS+3}], s{sT0} offen offset:256 sc1")
        A(f"s_add_u32 s{sT0}, s{sT0}, {4*36864}")
    A(f"s_cmp_lt_u32 s{sJ}, 4")
    A("s_cbranch_scc0 L_no_extra_ld")
    for k in range(4):
        A(f"buffer_load_dwordx4 {v(vRR+32+4*k,4)}, {v(vT)}, s[{SWS}:{SWS+3}], s{sXOFF} offen sc1")
        A(f"s_add_u32 s{sXOFF}, s{sXOFF}, {4*36864}")
    A.label("L_no_extra_ld")
    A("s_waitcnt vmcnt(0)")
    vS = vSo
    for k in range(4):
        for u in range(2):
            A(f"{M16} {v(vS+4*u,4)}, {v(vSA,4)}, {v(vRR+16*u+4*k,4)}, {v(vS+4*u,4) if k else 0}")
    A.nop(8)
    for u in range(2):
        A(f"v_cvt_pk_bf16_f32 {v(vSn+2*u)}, {v(vS+4*u)}, {v(vS+4*u+1)}")
        A(f"v_cvt_pk_bf16_f32 {v(vSn+2*u+1)}, {v(vS+4*u+2)}, {v(vS+4*u+3)}")
    A("s_mov_b32 exec_hi, 0")
    A(f"buffer_store_dwordx2 {v(vSn,2)}, {v(vMx)}, s[{SX}:{SX+3}], s{sT1} offen")
    A(f"buffer_store_dwordx2 {v(vSn+2,2)}, {v(vMx)}, s[{SX}:{SX+3}], s{sOFF} offen")
    A(f"s_mov_b64 exec, -1")
    A(f"s_cmp_lt_u32 s{sJ}, 4")
    A("s_cbranch_scc0 L_fin")
    for k in range(4):
        A(f"{M16} {v(vS+8,4)}, {v(vSA,4)}, {v(vRR+32+4*k,4)}, {v(vS+8,4) if k else 0}")
    A(f"s_lshl_b32 s{sT0}, s{sJ}, 2")
    A(f"s_lshl_b32 s{sT1}, s{sB}, 5")
    A(f"s_add_u32 s{sT0}, s{sT0}, s{sT1}")
    A(f"s_mul_i32 s{sT0}, s{sT0}, 1152")
    A(f"s_lshl_b32 s{sT1}, s{sW}, 5")
    A(f"s_add_u32 s{sT0}, s{sT0}, s{sT1}")
    A(f"s_add_u32 s{sT0}, s{sT0}, 1024")
    A(f"v_lshlrev_b32 {v(vT)}, 1, {v(vN)}")
    A(f"v_mul_u32_u24 {v(vT+1)}, {16*1152}, {v(vG)}")
    A(f"v_add_u32 {v(vT)}, {v(vT)}, {v(vT+1)}")
    A.nop(4)
    A(f"v_cvt_pk_bf16_f32 {v(vS+12)}, {v(vS+8)}, {v(vS+9)}")
    A(f"v_cvt_pk_bf16_f32 {v(vS+13)}, {v(vS+10)}, {v(vS+11)}")
    A("s_mov_b32 exec_hi, 0")
    A(f"buffer_store_short {v(vS+12)}, {v(vT)}, s[{SX}:{SX+3}], s{sT0} offen")
    A(f"buffer_store_short_d16_hi {v(vS+12)}, {v(vT)}, s[{SX}:{SX+3}], s{sT0} offen offset:1152")
    A(f"buffer_store_short {v(vS+13)}, {v(vT)}, s[{SX}:{SX+3}], s{sT0} offen offset:2304")
    A(f"buffer_store_short_d16_hi {v(vS+13)}, {v(vT)}, s[{SX}:{SX+3}], s{sT0} offen offset:3456")
    A(f"s_mov_b64 exec, -1")
    A.label("L_fin")
    if STAMPS:
        A("s_waitcnt vmcnt(0)")
        stamp(10)
        A(f"s_lshl_b32 s{sT0}, s2, 2")
        A(f"s_add_u32 s{sT0}, s{sT0}, s{sW}")
        A(f"s_lshl_b32 s{sT1}, s{sT0}, 8")
        A(f"s_lshl_b32 s{sT0}, s{sT0}, 7")
        A(f"s_add_u32 s{sT0}, s{sT0}, {STAMP_BASE}")
        A(f"s_add_u32 s{sT1}, s{sT1}, {STAMP_BASE + (1 << 20)}")
        A(f"v_lshlrev_b32 {v(vT)}, 2, {v(vLane)}")
        A(f"buffer_store_dword v255, {v(vT)}, s[{SWS}:{SWS+3}], s{sT1} offen")
        A.nop(2)
        A(f"v_mov_b32 {v(vT)}, 0")
        A("s_mov_b64 exec, 1")
        for i in range(13):
            src = 56 + 2 * i if i < 12 else sTIM
            A(f"v_mov_b32 {v(vT+2)}, s{src}")
            A(f"v_mov_b32 {v(vT+3)}, s{src+1}")
            A(f"buffer_store_dwordx2 {v(vT+2,2)}, {v(vT)}, s[{SWS}:{SWS+3}], s{sT0} offen offset:{8*i}")
            A.nop(2)
    A.label("L_end")
    A("s_endpgm")

    A.label("L_rescale")
    A(f"v_max_f32 {v(vMx)}, {v(vMx)}, {v(vM)}")
    A(f"v_mul_f32 {v(vMc)}, s{sC}, {v(vMx)}")
    A(f"v_fma_f32 {v(vAl)}, {v(vM)}, s{sC}, -{v(vMc)}")
    A(f"v_exp_f32 {v(vAl)}, {v(vAl)}")
    A(f"v_mov_b32 {v(vM)}, {v(vMx)}")
    A.nop(8)
    for k in list(range(32, 64, 2)) + list(range(0, 32, 2)):
        A(f"v_pk_mul_f32 {v(vO+k,2)}, {v(vO+k,2)}, {v(vAl,2)} op_sel_hi:[1,0]")
    for k in range(0, 4, 2):
        A(f"v_pk_mul_f32 {v(vLa+k,2)}, {v(vLa+k,2)}, {v(vAl,2)} op_sel_hi:[1,0]")
    A(f"s_setpc_b64 s[{sM64}:{sM64+1}]")

    A.label("L_special")
    A(f"s_add_u32 s{sT0}, s{sXOFF}, 1024")
    A(f"s_add_u32 s{SK}, s{KA+8}, s{sT0}")
    A(f"s_addc_u32 s{SK+1}, s{KA+9}, 0")
    A(f"s_sub_u32 s{SK}, s{SK}, {N1*16384}")
    A(f"s_subb_u32 s{SK+1}, s{SK+1}, 0")
    A(f"s_and_b32 s{SK+1}, s{SK+1}, 0xffff")
    A(f"s_mov_b32 s{SK+2}, {N1*16384 + 256*1152 - 1024}")
    A(f"v_lshrrev_b32 {v(vT)}, 3, {v(vLane)}")
    A(f"v_mul_u32_u24 {v(vT)}, 1152, {v(vT)}")
    A(f"v_and_b32 {v(vT+1)}, 7, {v(vLane)}")
    A(f"v_lshl_add_u32 {v(vT)}, {v(vT+1)}, 4, {v(vT)}")
    A(f"s_mul_i32 s{sT0}, s{sW}, {36864 - 4096}")
    for p in range(4):
        A(f"v_add_u32 {v(vKoff+p)}, s{sT0}, {v(vT)}")
        A(f"s_add_u32 s{sT0}, s{sT0}, {9216 - 1024}")
    A("s_branch L_special_ret")
    A.label("L_code_end")
    return A.text()

def main():
    k = gen()
    out = f"""; generated by gen13.py
; @launch grid=(256,1,1) block=(256,1,1) lds=163840
.amdgcn_target "amdgcn-amd-amdhsa--gfx950"
.text
"""
    out += kernel_head(NAME) + k
    out += '.section .rodata,"a"\n.p2align 6\n'
    out += kernel_desc(NAME, 512, 256, 102)
    open(sys.argv[1], "w").write(out)

main()
```

```python
import sys, struct
from asmlib import *

NAME = "standalone__sliding_block_cached__sampling_kernel"
OPTS = set(sys.argv[2:])
STAMPS = "stamps" in OPTS
def opt(name, default):
    for o in OPTS:
        if o.startswith(name + "="):
            return int(o.split("=")[1])
    return default
N1 = opt("n1", 17)
N2 = 32 - N1
SLEEP = opt("sleep", 2)
SLEEPY = opt("sleepy", 2)
PROF = opt("prof", 0)
THR = 8.0
POLK = " nt" if opt("polk", 1) else ""
POLV = " nt" if opt("polv", 1) else ""
XSWAP = opt("xswap", 1)
CODEWARM = opt("codewarm", 2)
MAGREE = opt("magree", 1)
GX = opt("gx", 0)
PREPOLL = opt("prepoll", 0)
POLO = {0: "", 1: " sc1", 2: " nt", 3: " sc0 sc1"}[opt("polo", 0)]
QAT = opt("qat", 8)
PT = opt("pt", 0)
CWN = opt("cwn", 256)
SK_IT = opt("skip", 6)
NGB = opt("ngb", 2)
RAT = opt("rat", 2)

ND = 2 if SK_IT else 3

def slot3(k):
    return 4 * (k // 3) + k % 3

def f32bits(x):
    return struct.unpack("<I", struct.pack("<f", x))[0]

SCALE_C = (128 ** -0.5) * 1.4426950408889634
QB = 0
OB = 4 << 20
FY = 13 << 20
PY = 16 << 20
STAMP_BASE = 64 << 20
SPIN_MAX = 1 << 20
VRING = 81920
OOB = 0x7ff00000
M32 = "v_mfma_f32_32x32x16_bf16"
M16 = "v_mfma_f32_16x16x32_bf16"

def srd(A, d, lo, hi, nbytes):
    A(f"s_mov_b32 s{d}, s{lo}")
    A(f"s_and_b32 s{d+1}, s{hi}, 0xffff")
    A(f"s_mov_b32 s{d+2}, {nbytes:#x}")
    A(f"s_mov_b32 s{d+3}, 0x20000")

def weave(main, fill, per):
    out = []; fill = list(fill)
    for m in main:
        out.append(m)
        for _ in range(per):
            if fill:
                out.append(fill.pop(0))
    return out + fill

def spread(main, fill):
    out = []; n, k = len(main), len(fill); fi = 0
    for i, m in enumerate(main):
        out.append(m)
        while fi < k and (fi + 1) * n <= (i + 1) * k:
            out.append(fill[fi]); fi += 1
    return out + list(fill[fi:])

def gen():
    A = Asm()
    def emit(lst):
        for x in lst:
            if isinstance(x, tuple):
                A.vmem(x[0], x[1])
            else:
                A(x)
    def stamp(i, mode=0):
        if STAMPS and mode == PROF:
            assert i < 12
            A(f"s_memrealtime s[{56+2*i}:{57+2*i}]")
            A("s_waitcnt lgkmcnt(0)")
    SK, SV, SX, SWT, SWS = 4, 8, 12, 16, 20
    sWIN = 24
    sA0, sA1 = 26, 27
    sNON = 28
    sTIM = 30
    (sW, sKVH, sB, sPR, sOFF, sOFFc, sRK, sMK, sMV, sC, sSELL, sSELH, sT0, sT1, sT2, sLIM, sDK,
     sQOFF, sXOFF, sM0B, sST, sN, sIT, sSLOT) = range(32, 56)
    sM64, sTHR, sK16, sDV, sKH = 96, 98, 99, 100, 101
    KA = 80
    vL16, vVoff, vM = 1, 2, 3
    vKoff, vT, vKa, vVa = 4, 8, 12, 20
    vMc, vMx, vAl, vBe = 24, 25, 26, 27
    vSel, vLa, vQf = 28, 32, 36
    vX = 68
    vO, vSo, vSn, vKV = 88, 152, 168, 184
    vR = 216
    vLane, vG, vN = 252, 253, 254
    vP = vSo
    XL = 65536
    QIMG = VRING + 16384

    A("s_cmp_ge_u32 s2, 256")
    A("s_cbranch_scc1 L_end")
    A(f"s_load_dwordx16 s[{KA}:{KA+15}], s[0:1], 0")
    A(f"s_memrealtime s[{sTIM}:{sTIM+1}]")
    if CODEWARM == 2:
        A(f"s_cmp_lt_u32 s2, {CWN}")
        A("s_cbranch_scc0 L_nocw")
        for x in [f"s_getpc_b64 s[{sT0}:{sT0+1}]", "L_pc:", f"s_sub_u32 s{sT0}, s{sT0}, L_pc-{NAME}", f"s_subb_u32 s{sT1}, s{sT1}, 0",
                  f"v_lshlrev_b32 {v(vT+1)}, 7, v0",
                  f"v_min_u32 {v(vT+1)}, L_code_end-{NAME}-4, {v(vT+1)}",
                  f"global_load_dword {v(vMx)}, {v(vT+1)}, s[{sT0}:{sT0+1}]"]:
            A(x)
        A.label("L_nocw")
    if XSWAP:
        A("s_lshr_b32 s3, s2, 7")
        A("s_xor_b32 s2, s2, s3")
    A(f"v_lshrrev_b32 {v(vT)}, 6, v0")
    A(f"v_and_b32 {v(vLane)}, 63, v0")
    A(f"v_readfirstlane_b32 s{sW}, {v(vT)}")
    A(f"v_lshrrev_b32 {v(vG)}, 4, {v(vLane)}")
    A(f"v_and_b32 {v(vN)}, 15, {v(vLane)}")
    A(f"s_and_b32 s{sKVH}, s2, 7")
    A(f"s_lshl_b32 s{sKVH}, s{sKVH}, 1")
    A(f"s_bfe_u32 s{sB}, s2, 0x10003")
    A(f"s_add_u32 s{sKVH}, s{sKVH}, s{sB}")
    A(f"s_bfe_u32 s{sB}, s2, 0x30004")
    A(f"s_and_b32 s{sPR}, s2, 127")
    A(f"s_lshl_b32 s{sT0}, s{sB}, 25")
    A(f"s_lshl_b32 s{sT1}, s{sKVH}, 21")
    A(f"s_add_u32 s{sT0}, s{sT0}, s{sT1}")
    A(f"s_add_u32 s{sT0}, s{sT0}, {6144*256}")
    A(f"s_add_u32 s{sT1}, s{sT0}, {N1*16384}")
    A(f"s_cmp_ge_u32 s2, 128")
    A(f"s_cselect_b32 s{sT2}, s{sT0}, s{sT1}")
    A(f"s_cselect_b32 s{sN}, {N1}, {N2}")
    A(f"s_lshl_b32 s{sM0B}, s{sW}, 12")
    A(f"s_add_u32 s{sLIM}, s{sM0B}, {VRING}")
    A(f"s_and_b32 s{sKH}, s{sW}, 1")
    A(f"v_lshlrev_b32 {v(vL16)}, 4, {v(vLane)}")

    def kv_setup():
        L = []
        for p in range(4):
            L += [f"v_or_b32 {v(vT)}, {4*p}, {v(vG)}", f"v_xor_b32 {v(vT)}, {v(vT)}, {v(vN)}",
                  f"v_lshlrev_b32 {v(vT)}, 4, {v(vT)}", f"v_lshl_add_u32 {v(vKoff+p)}, {v(vG)}, 8, {v(vT)}"]
        L += [f"v_lshlrev_b32 {v(vT)}, 2, {v(vG)}", f"v_xor_b32 {v(vT)}, {v(vT)}, {v(vN)}",
              f"v_lshlrev_b32 {v(vT)}, 4, {v(vT)}", f"v_lshl_add_u32 {v(vVoff)}, {v(vG)}, 8, {v(vT)}"]
        return L
    def kv_srds():
        return [f"s_add_u32 s{SK}, s{KA+2}, s{sT2}", f"s_addc_u32 s{SK+1}, s{KA+3}, 0", f"s_and_b32 s{SK+1}, s{SK+1}, 0xffff",
                f"s_lshl_b32 s{SK+2}, s{sN}, 14", f"s_mov_b32 s{SK+3}, 0x20000",
                f"s_sub_u32 s{sT2}, s{sT2}, 16384",
                f"s_add_u32 s{SV}, s{KA+4}, s{sT2}", f"s_addc_u32 s{SV+1}, s{KA+5}, 0", f"s_and_b32 s{SV+1}, s{SV+1}, 0xffff",
                f"s_add_u32 s{SV+2}, s{SK+2}, 16384", f"s_mov_b32 s{SV+3}, 0x20000",
                f"s_mov_b32 s{sOFF}, s{sM0B}", f"s_mov_b32 s{sRK}, s{sM0B}"]
    def dma_list(tag=None, first=False):
        L = [f"s_mov_b32 m0, s{sRK}", f"s_add_u32 s{sMK}, s{sRK}, 16384"]
        for p in range(4):
            ln = f"buffer_load_dwordx4 {v(vKoff+p)}, s[{SK}:{SK+3}], s{sOFF} offen offset:{p*1024}{POLK} lds"
            L.append((ln, tag) if tag else ln)
        L += [f"s_cmp_ge_u32 s{sMK}, s{sLIM}", f"s_cselect_b32 s{sRK}, s{sM0B}, s{sMK}", f"s_add_u32 m0, s{sRK}, {VRING}", "s_nop 0"]
        for p in range(0 if first else 4):
            ln = f"buffer_load_dwordx4 {v(vVoff)}, s[{SV}:{SV+3}], s{sOFF} offen offset:{p*1024}{POLV} lds"
            L.append((ln, tag) if tag else ln)
        L += [f"s_add_u32 s{sOFF}, s{sOFF}, 16384"]
        return L
    def common_setup():
        L = [f"s_mov_b32 s{sC}, {f32bits(SCALE_C):#x}", f"s_mov_b32 s{sTHR}, {f32bits(THR / SCALE_C):#x}",
             f"s_mov_b32 s{sSELL}, 0x05040100", f"s_mov_b32 s{sSELH}, 0x07060302", f"s_mov_b32 s{sK16}, 16384",
             f"s_mov_b32 s{sWIN}, 0x1000000", f"s_mov_b32 s{sWIN+1}, 0"]
        L += [f"v_and_b32 {v(vT)}, 31, {v(vLane)}",
              f"v_lshlrev_b32 {v(vT)}, 8, {v(vT)}",
              f"v_mov_b32 {v(vT+1)}, s{sKH}",
              f"v_lshl_add_u32 {v(vT)}, {v(vT+1)}, 13, {v(vT)}",
              f"v_lshrrev_b32 {v(vT+2)}, 5, {v(vLane)}",
              f"v_xor_b32 {v(vT+2)}, {v(vT+2)}, {v(vN)}"]
        for s_ in range(8):
            L += [f"v_xor_b32 {v(vT+3)}, {2*s_}, {v(vT+2)}",
                  f"v_lshl_add_u32 {v(vKa+s_)}, {v(vT+3)}, 4, {v(vT)}"]
        L += [f"v_lshrrev_b32 {v(vT+2)}, 2, {v(vN)}",
              f"v_lshrrev_b32 {v(vT)}, 5, {v(vLane)}",
              f"v_lshl_add_u32 {v(vT)}, {v(vT)}, 2, {v(vT+2)}",
              f"v_lshlrev_b32 {v(vT)}, 8, {v(vT)}",
              f"v_lshl_add_u32 {v(vT)}, {v(vT+1)}, 13, {v(vT)}",
              f"v_and_b32 {v(vT+3)}, 3, {v(vN)}",
              f"v_lshl_add_u32 {v(vT)}, {v(vT+3)}, 3, {v(vT)}",
              f"v_and_b32 {v(vT+3)}, 1, {v(vG)}",
              f"v_lshl_add_u32 {v(vT)}, {v(vT+3)}, 5, {v(vT)}",
              f"v_add_u32 {v(vT)}, {QIMG}, {v(vT)}",
              f"v_lshlrev_b32 {v(vT+1)}, 1, {v(vT+1)}",
              f"v_xor_b32 {v(vT+2)}, {v(vT+2)}, {v(vT+1)}"]
        for D in range(4):
            L += [f"v_xor_b32 {v(vT+3)}, {D}, {v(vT+2)}",
                  f"v_lshl_add_u32 {v(vVa+D)}, {v(vT+3)}, 6, {v(vT)}"]
        L += [f"v_lshrrev_b32 {v(vT)}, 2, {v(vN)}",
              f"v_xor_b32 {v(vT)}, {v(vT)}, {v(vG)}",
              f"v_and_b32 {v(vT)}, 1, {v(vT)}",
              f"v_add_u32 {v(vT)}, -1, {v(vT)}",
              f"v_and_b32 {v(vSel)}, 0x3f803f80, {v(vT)}",
              f"v_mov_b32 {v(vSel+1)}, {v(vSel)}", f"v_mov_b32 {v(vSel+2)}, {v(vSel)}", f"v_mov_b32 {v(vSel+3)}, {v(vSel)}"]
        return L
    def init_list():
        L = [f"v_mov_b32 {v(vO+k)}, 0" for k in range(64)] + [f"v_mov_b32 {v(vLa+k)}, 0" for k in range(4)]
        L += [f"v_mov_b32 {v(vM)}, 0xff800000", f"v_mov_b32 {v(vMc)}, 0"] + [f"v_mov_b32 {v(vSn+k)}, 0xff800000" for k in range(16)]
        L += [f"s_mov_b32 s{sSLOT}, 1", f"s_mov_b32 s{sIT}, 0", f"s_mov_b32 s{sDK}, 16384"]
        return L
    def q_image(vC, mid=()):
        A(f"v_lshlrev_b32 {v(vT+2)}, 4, {v(vN)}")
        A(f"v_lshl_add_u32 {v(vT+2)}, {v(vG)}, 11, {v(vT+2)}")
        A(f"s_lshr_b32 s{sT1}, s{sW}, 1")
        A(f"s_lshl_b32 s{sT1}, s{sT1}, 13")
        A(f"s_add_u32 s{sT1}, s{sT1}, {QIMG}")
        A(f"s_lshl_b32 s{sT2}, s{sKH}, 8")
        A(f"s_add_u32 s{sT2}, s{sT2}, s{sT1}")
        A(f"v_add_u32 {v(vT+2)}, s{sT2}, {v(vT+2)}")
        for i in range(4):
            A(f"ds_write_b128 {v(vT+2)}, {v(vC+4*i,4)} offset:{(i>>1)*1024 + (i&1)*512}")
        A(f"v_add_u32 {v(vT+3)}, s{sT1}, {v(vL16)}")
        emit(mid)
        A("s_waitcnt lgkmcnt(0)")
        A("s_barrier")
        for s_ in range(8):
            A(f"ds_read_b128 {v(vQf+4*s_,4)}, {v(vT+3)} offset:{s_*1024}")

    def pretouch(g1):
        if not PT:
            return
        A(f"v_mul_u32_u24 {v(vT)}, 36864, {v(vN)}")
        A(f"s_mul_i32 s{sT0}, s{sB}, {16*36864}")
        A(f"s_mul_i32 s{sT1}, s{sW}, 9216")
        A(f"s_add_u32 s{sT0}, s{sT0}, s{sT1}")
        A(f"s_add_u32 s{sT0}, s{sT0}, {PY}")
        A(f"v_add_u32 {v(vT)}, s{sT0}, {v(vT)}")
        A(f"s_lshl_b32 s{sT0}, s{sPR}, 2")
        A(f"s_add_u32 s{sT0}, s{sT0}, s{sW}")
        A(f"s_mul_i32 s{sT0}, s{sT0}, 9216")
        A(f"s_add_u32 s{sT0}, s{sT0}, {OB}")
        A(f"v_writelane_b32 {v(vT)}, s{sT0}, 16")
        A(f"s_add_u32 s{sT0}, s{sT0}, 8192")
        A(f"v_writelane_b32 {v(vT)}, s{sT0}, 17")
        A(f"s_lshl_b32 s{sT0}, s{sB}, 13")
        A(f"s_add_u32 s{sT0}, s{sT0}, {FY}")
        A(f"v_writelane_b32 {v(vT)}, s{sT0}, 18")
        A(f"s_add_u32 s{sT0}, s{sT0}, 4096")
        A(f"v_writelane_b32 {v(vT)}, s{sT0}, 19")
        A.vmem(f"buffer_load_dword {v(vX+18)}, {v(vT)}, s[{SWS}:{SWS+3}], 0 offen sc1", "pt")
        if not g1:
            A(f"v_lshlrev_b32 {v(vT)}, 12, {v(vN)}")
            A(f"s_mul_i32 s{sT0}, s{sB}, 36864")
            A.vmem(f"buffer_load_dword {v(vX+19)}, {v(vT)}, s[{SX}:{SX+3}], s{sT0} offen", "pt")

    fmas = [f"v_fma_f32 {v(vSo+k)}, {v(vSn+k)}, s{sC}, -{v(vMc)}" for k in range(16)]
    def expcvt():
        L = []
        for k in range(16):
            L.append(f"v_exp_f32 {v(vSo+k)}, {v(vSo+k)}")
            if k >= 3 and k % 2 == 1:
                q = (k - 3) // 2
                L.append(f"v_cvt_pk_bf16_f32 {v(vP+q)}, {v(vSo+2*q)}, {v(vSo+2*q+1)}")
        L.append("s_nop 0")
        L.append(f"v_cvt_pk_bf16_f32 {v(vP+7)}, {v(vSo+14)}, {v(vSo+15)}")
        return L
    pvo = [(2, 0), (3, 0), (2, 1), (3, 1), (0, 0), (1, 0), (0, 1), (1, 1)]
    def vread(f):
        D, t = pvo[f]
        return [f"ds_read_b64_tr_b16 {v(vKV+4*f+2*u,2)}, {v(vVa+D)} offset:{(16*t+8*u)*256}" for u in range(2)]
    def pvm(f):
        D, t = pvo[f]
        return f"{M32} {v(vO+16*D,16)}, {v(vKV+4*f,4)}, {v(vP+4*t,4)}, {v(vO+16*D,16)}"
    def lm(t):
        return f"{M16} {v(vLa,4)}, {v(vSel,4)}, {v(vP+4*t,4)}, {v(vLa,4)}"
    def body(mem, tail_salu, lab):
        if STAMPS and PROF == 0:
            A("s_memrealtime s[96:97]")
            A("s_waitcnt lgkmcnt(0)")
            A(f"s_mov_b32 m0, s{sIT}")
            A("s_nop 0")
            A(f"v_writelane_b32 v255, s96, m0")
        emit([f"ds_read_b128 {v(vKV+4*s_,4)}, {v(vKa+s_)}" for s_ in range(8)])
        emit(mem[0])
        emit(fmas)
        A(f"s_add_u32 s{sSLOT}, s{sSLOT}, 1")
        A(f"s_cmp_ge_u32 s{sSLOT}, 5")
        A(f"s_cselect_b32 s{sDV}, {(-4*16384) & 0xffffffff:#x}, s{sK16}")
        A(f"s_cselect_b32 s{sSLOT}, 0, s{sSLOT}")
        ec = expcvt()
        per = [3, 3, 3, 3, 3, 3, 4, 3]
        for s_ in range(8):
            A(f"s_waitcnt lgkmcnt({7 + s_})")
            A(f"{M32} {v(vSn,16)}, {v(vKV+4*s_,4)}, {v(vQf+4*s_,4)}, {v(vSn,16) if s_ else 0}")
            emit(vread(s_) if s_ < 7 else [])
            for _ in range(per[s_]):
                A(ec.pop(0))
            if s_ == 3:
                emit(mem[1])
        A("s_waitcnt lgkmcnt(12)")
        emit(vread(7))
        kadds = [f"v_add_u32 {v(vKa+k)}, s{sDK}, {v(vKa+k)}" for k in range(8)]
        vadds = [f"v_add_u32 {v(vVa+k)}, s{sDV}, {v(vVa+k)}" for k in range(4)]
        mx = [f"v_max3_f32 {v(vMx)}, {v(vSn)}, {v(vSn+1)}, {v(vSn+2)}", f"v_max3_f32 {v(vT)}, {v(vSn+3)}, {v(vSn+4)}, {v(vSn+5)}",
              f"v_max3_f32 {v(vMx)}, {v(vMx)}, {v(vSn+6)}, {v(vSn+7)}", f"v_max3_f32 {v(vT)}, {v(vT)}, {v(vSn+8)}, {v(vSn+9)}",
              f"v_max3_f32 {v(vMx)}, {v(vMx)}, {v(vSn+10)}, {v(vSn+11)}", f"v_max3_f32 {v(vT)}, {v(vT)}, {v(vSn+12)}, {v(vSn+13)}",
              f"v_max3_f32 {v(vMx)}, {v(vMx)}, {v(vSn+14)}, {v(vSn+15)}", f"v_max_f32 {v(vMx)}, {v(vMx)}, {v(vT)}"]
        gaps = [
            mem[2] + kadds[:3],
            kadds[3:8],
            mem[3] + vadds[:2],
            vadds[2:] + mx[:3],
            mem[4] + mx[3:6],
            mx[6:] + [f"v_mov_b32 {v(vT)}, {v(vMx)}"] + mem[5] + [f"s_mov_b32 s{sDK}, s{sDV}"],
            [f"v_permlane32_swap_b32 {v(vMx)}, {v(vT)}"] + mem[6] + ["s_nop 0", f"v_max_f32 {v(vMx)}, {v(vMx)}, {v(vT)}", f"v_sub_f32 {v(vT)}, {v(vMx)}, {v(vM)}"],
            mem[7] + [f"v_cmp_lt_f32 vcc, s{sTHR}, {v(vT)}"],
        ]
        for f in range(8):
            if f in (1, 3, 5, 7):
                A(f"s_waitcnt lgkmcnt({max(0, 16 - 2 * (f + 2))})")
            A(pvm(f))
            emit(gaps[f])
        A(lm(0)); A(lm(1))
        emit(tail_salu)
        A(f"s_cbranch_vccz L_nors{lab}")
        A(f"s_call_b64 s[{sM64}:{sM64+1}], L_rescale")
        A.label(f"L_nors{lab}")

    A(f"s_cmp_lt_u32 s2, 128")
    A("s_cbranch_scc1 L_g2")

    emit(kv_setup())
    A(f"s_mul_i32 s{sXOFF}, s{sKVH}, {256*1152}")
    A(f"s_mul_i32 s{sT0}, s{sB}, 36864")
    A(f"s_mul_i32 s{sT1}, s{sW}, 9216")
    A(f"s_add_u32 s{sT0}, s{sT0}, s{sT1}")
    A(f"s_add_u32 s{sT0}, s{sT0}, s{sXOFF}")
    A(f"v_lshlrev_b32 {v(vT)}, 7, {v(vLane)}")
    A("s_waitcnt lgkmcnt(0)")
    srd(A, SWT, KA+8, KA+9, 576 * 4096 * 2)
    A.vmem(f"buffer_load_dword {v(vAl)}, {v(vT)}, s[{SWT}:{SWT+3}], s{sT0} offen", "pw")
    A.vmem(f"buffer_load_dword {v(vBe)}, {v(vT)}, s[{SWT}:{SWT+3}], s{sT0} offen offset:1024", "pw")
    emit(kv_srds())
    emit(dma_list("G", first=True))
    emit(dma_list("G"))
    srd(A, SWS, KA+14, KA+15, 1 << 30)
    emit(common_setup())
    if CODEWARM == 1:
        A(f"s_cmp_eq_u32 s{sB}, 0")
        A("s_cbranch_scc0 L_nocw")
        for x in [f"s_getpc_b64 s[{sT0}:{sT0+1}]", "L_pc:", f"s_sub_u32 s{sT0}, s{sT0}, L_pc-{NAME}", f"s_subb_u32 s{sT1}, s{sT1}, 0",
                  f"v_mov_b32 {v(vT+1)}, s{sW}", f"v_lshlrev_b32 {v(vT+1)}, 13, {v(vT+1)}", f"v_lshl_add_u32 {v(vT+1)}, {v(vLane)}, 7, {v(vT+1)}",
                  f"v_min_u32 {v(vT+1)}, L_code_end-{NAME}-4, {v(vT+1)}",
                  f"global_load_dword {v(vMx)}, {v(vT+1)}, s[{sT0}:{sT0+1}]"]:
            A(x)
        A.label("L_nocw")
    vWm, vTmp = 68, 72
    A(f"v_lshrrev_b32 {v(vT)}, 1, {v(vG)}")
    A(f"v_lshlrev_b32 {v(vT)}, 2, {v(vT)}")
    A(f"v_and_b32 {v(vT+1)}, 1, {v(vG)}")
    A(f"v_add_u32 {v(vT)}, {v(vT)}, {v(vT+1)}")
    A(f"v_mul_u32_u24 {v(vT)}, {4*1152}, {v(vT)}")
    A(f"s_lshl_b32 s{sT0}, s{sW}, 8")
    A(f"v_lshl_add_u32 {v(vWm)}, {v(vN)}, 4, {v(vT)}")
    A(f"v_add_u32 {v(vWm)}, s{sT0}, {v(vWm)}")
    A(f"v_add_u32 {v(vWm+1)}, {8*1152}, {v(vWm)}")
    for g_ in range(2, 5):
        emit(dma_list("G"))
    stamp(0)
    rawat = [88 + 32 * (k % 5) for k in range(8)]
    def wo_issue(k):
        T = rawat[k]
        L = [f"s_add_u32 s{sT2}, s{sXOFF}, {k*32*1152}"]
        for e in range(8):
            L.append((f"buffer_load_dwordx4 {v(T+4*e,4)}, {v(vWm+(e>>2))}, s[{SWT}:{SWT+3}], s{sT2} offen offset:{(e&3)*1152}", f"w{k}"))
        return L
    def wo_transpose(k):
        T = rawat[k]
        L = []; cnt = 0
        for j in range(8):
            for t in range(4):
                tmp = vTmp + (cnt % 8); cnt += 1
                L.append(f"v_perm_b32 {v(tmp)}, {v(T+4*(2*t+1)+j//2)}, {v(T+4*(2*t)+j//2)}, s{sSELH if (j & 1) else sSELL}")
                L.append(f"v_accvgpr_write_b32 {a(32*k+4*j+t)}, {v(tmp)}")
        return L
    A(f"s_lshl_b32 s{sT0}, s{sPR}, 2")
    A(f"s_add_u32 s{sT0}, s{sT0}, s{sW}")
    A(f"s_mul_i32 s{sST}, s{sT0}, 6144")
    A(f"s_add_u32 s{sQOFF}, s{sST}, 4096")
    A(f"s_sub_u32 s{sA0}, s{sTIM}, 1000")
    A(f"s_subb_u32 s{sA1}, s{sTIM+1}, 0")
    vQL = 36
    def q_batch(ks=range(6)):
        L = []
        for k in ks:
            L.append((f"buffer_load_dwordx4 {v(vQL+4*k,4)}, {v(vL16)}, s[{SWS}:{SWS+3}], s{sST if k < 4 else sQOFF} offen offset:{(k%4)*1024} sc1", "qb"))
        return L
    emit(wo_issue(0))
    emit(wo_issue(1))
    A("s_waitcnt vmcnt(40)"); A.retired = len(A.vm) - 40
    emit(wo_issue(2))
    emit(wo_issue(3))
    for k in range(8):
        A.wait_vm(f"w{k}")
        stamp(k, 2)
        nx = wo_issue(k + 4) if k + 4 < 8 else []
        emit(spread(wo_transpose(k), nx))
    stamp(1)
    def stamp_check(extra):
        A(f"v_subrev_co_u32 {v(vT+2)}, vcc, s{sA0}, {v(vQL+23)}")
        A(f"v_subb_co_u32 {v(vT+3)}, vcc, {v(vQL+slot3(16))}, {v(vT+3)}, vcc")
        if extra is not None:
            A(f"v_or_b32 {v(vT+3)}, {v(vT+3)}, {v(extra)}")
        A(f"v_cmp_le_u64 vcc, s[{sWIN}:{sWIN+1}], {v(vT+2,2)}")
    A(f"s_mov_b32 s{sT2}, 0")
    if PREPOLL:
        emit(q_batch([5]))
        emit(init_list())
        A("s_branch L_prep_chk")
        A.label("L_prep")
        A(f"s_sleep {SLEEP}")
        A(q_batch([5])[0][0])
        A.label("L_prep_chk")
        A(f"v_mov_b32 {v(vT+3)}, s{sA1}")
        A("s_waitcnt vmcnt(0)")
        stamp_check(None)
        A(f"s_add_u32 s{sT2}, s{sT2}, 1")
        A("s_cbranch_vccz L_pollq_ld")
        A(f"s_cmp_lt_u32 s{sT2}, {SPIN_MAX}")
        A("s_cbranch_scc1 L_prep")
    else:
        emit(q_batch())
        emit(init_list())
        A("s_branch L_pollq_chk")
    A.label("L_pollq")
    A(f"s_sleep {SLEEP}")
    A.label("L_pollq_ld")
    for x in q_batch():
        A(x[0])
    A.label("L_pollq_chk")
    A(f"v_mov_b32 {v(vT+3)}, s{sA1}")
    A("s_waitcnt vmcnt(0)")
    for k in range(5):
        A(f"v_xor_b32 {v(vQL+4*k+3)}, {v(vQL+4*k+3)}, {v(vQL+23)}")
    for k in range(16):
        A(f"v_mov_b32 {v(vKV+k)}, {v(vQL+slot3(k))}")
    A(f"v_or3_b32 {v(vQL+3)}, {v(vQL+3)}, {v(vQL+7)}, {v(vQL+11)}")
    A(f"v_or3_b32 {v(vQL+3)}, {v(vQL+3)}, {v(vQL+15)}, {v(vQL+19)}")
    stamp_check(vQL + 3)
    A(f"s_add_u32 s{sT2}, s{sT2}, 1")
    A("s_cbranch_vccz L_pollq_done")
    A(f"s_cmp_lt_u32 s{sT2}, {SPIN_MAX}")
    A("s_cbranch_scc1 L_pollq")
    A.label("L_pollq_done")
    A(f"v_readfirstlane_b32 s{sNON}, {v(vQL+23)}")
    q_image(vKV)
    pretouch(True)
    A(f"s_mov_b32 s{sST}, {N1-2-ND}")
    A("s_waitcnt lgkmcnt(0)")
    stamp(2)
    A.label("L_nodma")
    body([[] for _ in range(8)], [], "f")
    if MAGREE and SK_IT:
        A(f"s_cmp_eq_u32 s{sIT}, 0")
        A("s_cbranch_scc1 L_loop_end")
        A(f"v_lshrrev_b32 {v(vT+2)}, 2, {v(vL16)}")
        A(f"v_add_u32 {v(vT+2)}, s{sRK}, {v(vT+2)}")
        A(f"ds_write_b32 {v(vT+2)}, {v(vM)}")
        A(f"v_xor_b32 {v(vT+1)}, 4096, {v(vT+2)}")
        A("s_waitcnt lgkmcnt(0)")
        A("s_barrier")
        A(f"ds_read_b32 {v(vMx)}, {v(vT+1)}")
        A("s_waitcnt lgkmcnt(0)")
        A(f"s_call_b64 s[{sM64}:{sM64+1}], L_rescale")
    A("s_branch L_loop_end")

    A.label("L_g2")
    A.vm = []; A.retired = 0
    NB = 5
    vRaw = [88 + 32 * i for i in range(NB)]
    vFr = 36
    vWoff = 68; vXoff = 76
    aXf = [64 + 8 * i for i in range(9)]
    A(f"v_lshlrev_b32 {v(vT)}, 16, {v(vG)}")
    A(f"v_lshl_add_u32 {v(vT)}, {v(vN)}, 4, {v(vT)}")
    for r in range(8):
        A(f"v_add_u32 {v(vWoff+r)}, {r*8192}, {v(vT)}")
    A(f"s_mov_b32 s{sST}, s{sB}")
    A(f"s_mul_i32 s{sQOFF}, s{sKH}, {288*8192}")
    A(f"s_lshl_b32 s{sT1}, s{sKVH}, 9")
    A(f"s_add_u32 s{sQOFF}, s{sQOFF}, s{sT1}")
    A(f"s_lshr_b32 s{sT1}, s{sW}, 1")
    A(f"s_lshl_b32 s{sT1}, s{sT1}, 8")
    A(f"s_add_u32 s{sQOFF}, s{sQOFF}, s{sT1}")
    A(f"s_mul_i32 s{sXOFF}, s{sB}, 36864")
    A(f"s_mul_i32 s{sT1}, s{sW}, 9216")
    A(f"s_add_u32 s{sXOFF}, s{sXOFF}, s{sT1}")
    A(f"s_add_u32 s{sT1}, s{sT1}, {XL}")
    A("s_waitcnt lgkmcnt(0)")
    srd(A, SX, KA+0, KA+1, 8 * 32 * 576 * 2)
    for k in range(9):
        if k % 4 == 0:
            A(f"s_mov_b32 m0, s{sT1}")
            A(f"s_add_u32 s{sT1}, s{sT1}, 4096")
        A.vmem(f"buffer_load_dwordx4 {v(vL16)}, s[{SX}:{SX+3}], s{sXOFF} offen offset:{(k%4)*1024} lds", "x")
        if k % 4 == 3:
            A(f"s_add_u32 s{sXOFF}, s{sXOFF}, 4096")
    srd(A, SWT, KA+6, KA+7, 576 * 4096 * 2)
    def qload(step):
        rb = vRaw[step % NB]
        L = [f"s_lshl_b32 s{sT0}, s{sST}, 18", f"s_add_u32 s{sT0}, s{sT0}, s{sQOFF}"]
        for r in range(8):
            L.append((f"buffer_load_dwordx4 {v(rb+4*r,4)}, {v(vWoff+r)}, s[{SWT}:{SWT+3}], s{sT0} offen", f"q{step}"))
        L += [f"s_add_u32 s{sST}, s{sST}, 1", f"s_cmp_eq_u32 s{sST}, 9", f"s_cselect_b32 s{sST}, 0, s{sST}"]
        return L
    emit(qload(0))
    emit(kv_srds())
    srd(A, SWS, KA+14, KA+15, 1 << 30)
    stamp(0)
    xa = [f"v_mul_u32_u24 {v(vT)}, 1152, {v(vN)}",
          f"v_lshl_add_u32 {v(vT)}, {v(vG)}, 4, {v(vT)}",
          f"v_mov_b32 {v(vT+1)}, s{sKH}",
          f"v_mul_u32_u24 {v(vT+2)}, {16*1152 + 576}, {v(vT+1)}",
          f"v_add3_u32 {v(vXoff)}, {v(vT)}, {v(vT+2)}, s{sK16}",
          f"v_mul_u32_u24 {v(vT+2)}, {16*1152 - 576}, {v(vT+1)}",
          f"v_sub_u32 {v(vXoff+1)}, {v(vT)}, {v(vT+2)}",
          f"v_add_u32 {v(vXoff+1)}, {16*1152 + 16384}, {v(vXoff+1)}"]
    emit(spread(kv_setup() + common_setup() + xa, qload(1) + qload(2)))
    A.wait_vm("x")
    A("s_barrier")
    A(f"s_mov_b32 s{sT1}, s{sB}")
    for step in range(9):
        A(f"s_lshl_b32 s{sT2}, s{sT1}, 6")
        for u in range(2):
            A(f"v_add_u32 {v(vT+u)}, s{sT2}, {v(vXoff+u)}")
            A(f"ds_read_b128 {a(aXf[step]+4*u,4)}, {v(vT+u)} offset:{XL - 16384}")
        A(f"s_add_u32 s{sT1}, s{sT1}, 1"); A(f"s_cmp_eq_u32 s{sT1}, 9"); A(f"s_cselect_b32 s{sT1}, 0, s{sT1}")
        if step == 5:
            A("s_waitcnt lgkmcnt(4)")
    emit(qload(3))
    A("s_waitcnt lgkmcnt(0)")
    A("s_barrier")
    ng = 0
    for step in range(9):
        rb = vRaw[step % NB]
        A.wait_vm(f"q{step}")
        stamp(step, 2)
        comp = []
        for j in range(8):
            for t in range(4):
                sel = sSELH if (j & 1) else sSELL
                comp.append(f"v_perm_b32 {v(vFr+4*j+t)}, {v(rb+4*(2*t+1)+j//2)}, {v(rb+4*(2*t)+j//2)}, s{sel}")
        comp.append("s_nop 1")
        for j in range(8):
            for u in range(2):
                acc = a((u * 8 + j) * 4, 4)
                comp.append(f"{M16} {acc}, {v(vFr+4*j,4)}, {a(aXf[step]+4*u,4)}, {acc if step else 0}")
        nx = []
        if step + 4 < 9:
            nx = qload(step + 4)
        elif ng < NGB:
            nx = dma_list(f"G{ng}", first=(ng == 0)); ng += 1
        emit(spread(comp, nx))
    A(f"s_memrealtime s[{sNON}:{sNON+1}]")
    stamp(1)
    A(f"s_lshl_b32 s{sT2}, s{sW}, 13")
    A(f"s_add_u32 s{sT2}, s{sT2}, {XL}")
    A(f"s_xor_b32 s{sT0}, s{sT2}, 8192")
    A(f"v_add_u32 {v(vT+1)}, s{sT0}, {v(vL16)}")
    A(f"v_add_u32 {v(vT+2)}, s{sT2}, {v(vL16)}")
    A.nop(2)
    for j in range(8):
        A(f"ds_write_b128 {v(vT+1)}, {a((8+j)*4,4)} offset:{j*1024}")
    vDq = 184; vG8 = 216; vC = 152
    for k in range(32):
        A(f"v_accvgpr_read_b32 {v(vDq+k)}, {a(k)}")
    if GX:
        emit(dma_list(f"G{ng}")); ng += 1
    A("s_waitcnt lgkmcnt(0)")
    A("s_barrier")
    for j in range(8):
        A(f"ds_read_b128 {v(vFr+4*j,4)}, {v(vT+2)} offset:{j*1024}")
    A(f"s_lshl_b32 s{sT0}, s{sPR}, 2")
    A(f"s_add_u32 s{sT0}, s{sT0}, s{sW}")
    A(f"s_mul_i32 s{sT0}, s{sT0}, 6144")
    A(f"s_add_u32 s{sT1}, s{sT0}, 4096")
    for k in range(6):
        A(f"v_mov_b32 {v(vG8+4*k+3)}, s{sNON}")
    A(f"v_mov_b32 {v(vG8+slot3(16))}, s{sNON+1}")
    A(f"v_mov_b32 {v(vG8+slot3(17))}, 0")
    A("s_waitcnt lgkmcnt(0)")
    for k in range(0, 32, 2):
        A(f"v_pk_add_f32 {v(vDq+k,2)}, {v(vDq+k,2)}, {v(vFr+k,2)}")
    for i in range(4):
        for t in range(4):
            q = 4 * i + t
            A(f"v_cvt_pk_bf16_f32 {v(vG8+slot3(q))}, {v(vDq+4*(2*t)+i)}, {v(vDq+4*(2*t+1)+i)}")
            if q % 3 == 2 or q == 15:
                k = q // 3
                A.vmem(f"buffer_store_dwordx4 {v(vG8+4*k,4)}, {v(vL16)}, s[{SWS}:{SWS+3}], s{sT0 if k < 4 else sT1} offen offset:{(k%4)*1024} sc1", "qs")
    stamp(6)
    for k in range(16):
        A(f"v_mov_b32 {v(vC+k)}, {v(vG8+slot3(k))}")
    mid = []
    while ng < 3:
        mid += dma_list(f"G{ng}", first=(ng == 0)); ng += 1
    q_image(vC, mid)
    emit(spread(init_list(), dma_list("G3")))
    A(f"s_mov_b32 s{sST}, 1000")
    srd(A, SX, KA+10, KA+11, 8 * 32 * 576 * 2)
    pretouch(False)
    A("s_waitcnt lgkmcnt(0)")
    stamp(2)

    A.label("L_loop")
    if SK_IT:
        A(f"s_cmp_gt_u32 s{sIT}, {SK_IT}")
        A("s_cbranch_scc0 L_w24")
        A("s_waitcnt vmcnt(16)")
        A.label("L_w24")
    A("s_waitcnt vmcnt(24)")
    A("s_barrier")
    if SK_IT:
        A(f"s_cmp_eq_u32 s{sIT}, {SK_IT}")
        A("s_cbranch_scc1 L_nodma")
    dl = dma_list()
    body([dl[0:3], [dl[3]], [dl[4]], dl[5:9], [dl[10]], [dl[11]], [dl[12]], [dl[13]]], dl[14:], "m")
    A.label("L_loop_end")
    A(f"s_cmp_eq_u32 s{sIT}, s{sST}")
    A("s_cbranch_scc1 L_special")
    A.label("L_special_ret")
    A(f"s_add_u32 s{sIT}, s{sIT}, 1")
    A(f"s_add_u32 s{sT0}, s{sIT}, {ND}")
    A(f"s_cmp_lt_u32 s{sT0}, s{sN}")
    A("s_cbranch_scc1 L_loop")

    for p in range(4):
        A(f"v_add_u32 {v(vKoff+p)}, {128*1152 - 16384}, {v(vKoff+p)}")
    A(f"s_lshl_b32 s{sQOFF}, s{sPR}, 2")
    A(f"s_add_u32 s{sQOFF}, s{sQOFF}, s{sW}")
    A(f"s_mul_i32 s{sQOFF}, s{sQOFF}, 6144")
    A(f"s_add_u32 s{sQOFF}, s{sQOFF}, {OB}")
    A(f"s_cmp_lt_u32 s2, 128")
    A(f"s_cselect_b32 s{sST}, {OOB:#x}, s{sQOFF}")
    A(f"s_add_u32 s{sMV}, s{sST}, 4096")
    A(f"s_add_u32 s{sOFFc}, s{sST}, 8192")
    def orec1(op, k, regs):
        return f"{op} {v(vR+4*k,4)}, {v(vL16)}, s[{SWS}:{SWS+3}], s{regs[k//4]} offen offset:{(k%4)*1024} sc1"
    RL = (sST, sMV, sOFFc)
    A.vm = [f"D{g_}" for g_ in range(3 - ND, 4) for _ in range(8)]; A.retired = 0
    for d in range(3 - ND, 3):
        A.wait_vm(f"D{d}")
        A("s_barrier")
        mem = [[] for _ in range(8)]
        if d == 3 - ND:
            b8 = dma_list("b8", first=True)
            mem[0] = b8[0:3]; mem[1] = [b8[3]]; mem[2] = [b8[4]]; mem[3] = [b8[5]]
        if d == RAT:
            for k in range(6):
                mem[min(7, k)].append((orec1("buffer_load_dwordx4", k, RL), "rec"))
        body(mem, [f"s_add_u32 s{sIT}, s{sIT}, 1"], f"d{d}")

    def slot_after(dst, src):
        A(f"s_add_u32 s{dst}, s{src}, 16384")
        A(f"s_cmp_ge_u32 s{dst}, {VRING}")
        A(f"s_cselect_b32 s{dst}, 0, s{dst}")
    A(f"s_sub_u32 s{sRK}, s{sRK}, s{sM0B}")
    slot_after(sA0, sRK)
    slot_after(sA1, sA0)
    slot_after(sMK, sA1)
    slot_after(sLIM, sMK)
    A(f"s_lshl_b32 s{sT0}, s{sW}, 9")
    A(f"s_add_u32 s{sT0}, s{sT0}, s{sMK}")
    A(f"s_add_u32 s{sT0}, s{sT0}, {VRING}")
    A(f"v_lshrrev_b32 {v(vT+2)}, 2, {v(vL16)}")
    A(f"v_add_u32 {v(vT+2)}, s{sT0}, {v(vT+2)}")
    A(f"ds_write_b32 {v(vT+2)}, {v(vM)}")
    A(f"v_xor_b32 {v(vT+1)}, 512, {v(vT+2)}")
    A("s_waitcnt lgkmcnt(0)")
    A("s_barrier")
    A(f"ds_read_b32 {v(vMx)}, {v(vT+1)}")
    A(f"s_cmp_lt_u32 s{sW}, 2")
    A(f"s_cselect_b32 s{sT1}, s{sA0}, s{sA1}")
    A(f"s_lshl_b32 s{sT2}, s{sKH}, 13")
    A(f"s_add_u32 s{sT1}, s{sT1}, s{sT2}")
    A(f"s_xor_b32 s{sT2}, s{sT1}, 8192")
    A(f"v_add_u32 {v(vT+3)}, s{sT2}, {v(vL16)}")
    A(f"v_add_u32 {v(vX+2)}, s{sT1}, {v(vL16)}")
    A(f"v_and_b32 {v(vX)}, 1, {v(vG)}")
    A(f"v_lshlrev_b32 {v(vX)}, 12, {v(vX)}")
    A(f"v_lshrrev_b32 {v(vX+1)}, 1, {v(vG)}")
    A(f"v_lshl_add_u32 {v(vX)}, {v(vX+1)}, 8, {v(vX)}")
    A(f"v_lshl_add_u32 {v(vX)}, {v(vN)}, 4, {v(vX)}")
    A(f"s_lshr_b32 s{sT0}, s{sW}, 1")
    A(f"s_lshl_b32 s{sT0}, s{sT0}, 13")
    A(f"s_lshl_b32 s{sT1}, s{sKH}, 11")
    A(f"s_add_u32 s{sT0}, s{sT0}, s{sT1}")
    A(f"s_add_u32 s{sT0}, s{sT0}, s{sMK}")
    A(f"v_add_u32 {v(vX)}, s{sT0}, {v(vX)}")
    A("s_waitcnt lgkmcnt(0)")
    A(f"v_cmp_gt_f32 vcc, {v(vMx)}, {v(vM)}")
    A("s_cbranch_vccz L_magreed")
    A(f"s_call_b64 s[{sM64}:{sM64+1}], L_rescale")
    A.label("L_magreed")
    emit(fmas)
    emit(expcvt())
    A.nop(1)
    A(lm(0)); A(lm(1))
    if RAT == 3:
        for k in range(6):
            A.vmem(orec1("buffer_load_dwordx4", k, RL), "rec")
    A.nop(8)
    A(f"ds_write_b32 {v(vT+2)}, {v(vLa)} offset:256")
    A("s_waitcnt lgkmcnt(0)")
    A.wait_vm("b8")
    A("s_barrier")
    stamp(3)
    for f in range(7):
        emit(vread(f))
    A("s_waitcnt lgkmcnt(10)")
    A(pvm(0)); A(pvm(1))
    emit(vread(7))
    A(f"ds_read_b32 {v(vT)}, {v(vT+1)} offset:256")
    A("s_waitcnt lgkmcnt(9)")
    A(pvm(2)); A(pvm(3))
    A("s_waitcnt lgkmcnt(5)")
    A(pvm(4)); A(pvm(5))
    A("s_waitcnt lgkmcnt(0)")
    A(pvm(6)); A(pvm(7))
    vL1 = vX + 3
    A(f"v_add_f32 {v(vL1)}, {v(vLa)}, {v(vT)}")
    A.nop(5)
    for k in range(8):
        A(f"ds_write_b128 {v(vT+3)}, {v(vO+32+4*k,4)} offset:{k*1024}")
    A(f"s_cmp_lt_u32 s2, 128")
    A("s_cbranch_scc1 L_g2_tail")

    A(f"s_mov_b32 s{sT2}, 0")
    A("s_branch L_pollo_chk")
    A.label("L_pollo")
    A(f"s_sleep {SLEEP}")
    for k in range(6):
        A(orec1("buffer_load_dwordx4", k, RL))
    A.label("L_pollo_chk")
    A(f"v_mov_b32 {v(vT)}, s{sNON}")
    A("s_waitcnt vmcnt(0)")
    for k in range(6):
        A(f"v_xor_b32 {v(vR+4*k+3)}, {v(vR+4*k+3)}, {v(vT)}")
    A(f"v_or3_b32 {v(vR+3)}, {v(vR+3)}, {v(vR+7)}, {v(vR+11)}")
    A(f"v_or3_b32 {v(vR+15)}, {v(vR+15)}, {v(vR+19)}, {v(vR+23)}")
    A(f"v_or_b32 {v(vR+3)}, {v(vR+3)}, {v(vR+15)}")
    A(f"v_cmp_ne_u32 vcc, 0, {v(vR+3)}")
    A(f"s_add_u32 s{sT2}, s{sT2}, 1")
    A("s_cbranch_vccz L_pollo_done")
    A(f"s_cmp_lt_u32 s{sT2}, {SPIN_MAX}")
    A("s_cbranch_scc1 L_pollo")
    A.label("L_pollo_done")
    A("s_waitcnt lgkmcnt(0)")
    A("s_barrier")
    stamp(11)
    for k in range(8):
        A(f"ds_read_b128 {v(vO+32+4*k,4)}, {v(vX+2)} offset:{k*1024}")
    A(f"v_max_f32 {v(vMx)}, {v(vM)}, {v(vR+slot3(16))}")
    A(f"v_mul_f32 {v(vMc)}, s{sC}, {v(vMx)}")
    A(f"v_fma_f32 {v(vAl)}, {v(vM)}, s{sC}, -{v(vMc)}")
    A(f"v_fma_f32 {v(vBe)}, {v(vR+slot3(16))}, s{sC}, -{v(vMc)}")
    A(f"v_exp_f32 {v(vAl)}, {v(vAl)}")
    A(f"v_exp_f32 {v(vBe)}, {v(vBe)}")
    A.nop(1)
    A(f"v_mul_f32 {v(vT)}, {v(vBe)}, {v(vR+slot3(17))}")
    A(f"v_fma_f32 {v(vT)}, {v(vAl)}, {v(vL1)}, {v(vT)}")
    A(f"v_rcp_f32 {v(vT)}, {v(vT)}")
    vU = vSo
    for k in range(16):
        A(f"v_and_b32 {v(vU+2*k+1)}, 0xffff0000, {v(vR+slot3(k))}")
        A(f"v_lshlrev_b32 {v(vU+2*k)}, 16, {v(vR+slot3(k))}")
    A(f"v_mul_f32 {v(vAl)}, {v(vAl)}, {v(vT)}")
    A(f"v_mul_f32 {v(vBe)}, {v(vBe)}, {v(vT)}")
    A("s_waitcnt lgkmcnt(0)")
    for c in range(4):
        for k in range(4 * c, 4 * c + 4):
            A(f"v_pk_add_f32 {v(vO+2*k,2)}, {v(vO+2*k,2)}, {v(vO+32+2*k,2)}")
            A(f"v_pk_mul_f32 {v(vU+2*k,2)}, {v(vU+2*k,2)}, {v(vAl,2)} op_sel:[0,1] op_sel_hi:[1,1]")
            A(f"v_pk_fma_f32 {v(vO+2*k,2)}, {v(vO+2*k,2)}, {v(vAl,2)}, {v(vU+2*k,2)} op_sel_hi:[1,0,1]")
            A(f"v_cvt_pk_bf16_f32 {v(vX+4+k)}, {v(vO+2*k)}, {v(vO+2*k+1)}")
        A(f"ds_write_b128 {v(vX)}, {v(vX+4+4*c,4)} offset:{(c>>1)*1024 + (c&1)*512}")
    vB8 = 216
    A(f"v_lshrrev_b32 {v(vT)}, 1, {v(vG)}")
    A(f"v_lshlrev_b32 {v(vT)}, 2, {v(vT)}")
    A(f"v_and_b32 {v(vT+1)}, 1, {v(vG)}")
    A(f"v_add_u32 {v(vT)}, {v(vT)}, {v(vT+1)}")
    A(f"v_lshrrev_b32 {v(vT+1)}, 2, {v(vN)}")
    A(f"v_lshl_add_u32 {v(vT)}, {v(vT)}, 2, {v(vT+1)}")
    A(f"v_and_b32 {v(vT+1)}, 3, {v(vN)}")
    A(f"v_lshlrev_b32 {v(vT+1)}, 3, {v(vT+1)}")
    A(f"v_lshl_add_u32 {v(vT)}, {v(vT)}, 7, {v(vT+1)}")
    A(f"s_lshl_b32 s{sT1}, s{sW}, 5")
    A(f"s_add_u32 s{sT2}, s{sT1}, s{sRK}")
    A(f"s_add_u32 s{sT1}, s{sT1}, s{sLIM}")
    A(f"v_add_u32 {v(vT+1)}, s{sT2}, {v(vT)}")
    A(f"v_add_u32 {v(vT)}, s{sT1}, {v(vT)}")
    A(f"v_add_u32 {v(vT+2)}, s{sMK}, {v(vL16)}")
    A(f"s_and_b32 s{sT2}, s2, 15")
    A(f"s_lshl_b32 s{sT0}, s{sB}, 4")
    A(f"s_add_u32 s{sT0}, s{sT0}, s{sT2}")
    A(f"s_mul_i32 s{sT0}, s{sT0}, 36864")
    A(f"s_mul_i32 s{sT1}, s{sW}, 9216")
    A(f"s_add_u32 s{sT0}, s{sT0}, s{sT1}")
    A(f"s_add_u32 s{sT0}, s{sT0}, {PY}")
    A("s_waitcnt lgkmcnt(0)")
    A("s_barrier")
    stamp(4)
    def wfr(ks, j):
        return a(32 * ks + 4 * j, 4) if j < 8 else v(vB8 + 4 * ks, 4)
    def acc(rh, j):
        return 144 + 4 * (rh * 9 + j)
    def ofr(rh, ks):
        return v(vQf + 4 * ks, 4) if rh == 0 else v(vO + 4 * ks, 4)
    vPk = 120
    b8r = [f"ds_read_b64_tr_b16 {v(vB8+4*ks+2*u,2)}, {v(vT+(ks>>2))} offset:{(32*(ks&3)+8*u)*128}" for ks in range(8) for u in range(2)]
    o0 = [f"ds_read_b128 {ofr(0,ks)}, {v(vT+2)} offset:{(((ks>>2)*2+0)*4+(ks&3))*1024}" for ks in range(8)]
    o1 = [f"ds_read_b128 {ofr(1,ks)}, {v(vT+2)} offset:{(((ks>>2)*2+1)*4+(ks&3))*1024}" for ks in range(8)]
    for ks in range(4):
        A(o0[ks]); A(b8r[2*ks]); A(b8r[2*ks+1])
    for ks in range(8):
        A(f"s_waitcnt lgkmcnt({9 if ks < 5 else 9})")
        nxt = [o0[ks+4], b8r[2*(ks+4)], b8r[2*(ks+4)+1]] if ks < 4 else [o1[2*(ks-4)], o1[2*(ks-4)+1], o1[2*(ks-4)+1]]
        for j in range(9):
            d = v(acc(0, j), 4)
            A(f"{M16} {d}, {ofr(0,ks)}, {wfr(ks,j)}, {d if ks else 0}")
            if j < 3:
                A(nxt[j])
    A("s_waitcnt lgkmcnt(0)")
    def pack_store(rh):
        L = []
        for i in range(4):
            d = vPk + 4 * i
            for q in range(4):
                L.append(f"v_cvt_pk_bf16_f32 {v(d+q)}, {v(acc(rh,2*q)+i)}, {v(acc(rh,2*q+1)+i)}")
            L.append(f"buffer_store_dwordx4 {v(d,4)}, {v(vL16)}, s[{SWS}:{SWS+3}], s{sT0} offen offset:{i*1024} sc1")
        L.append(f"s_add_u32 s{sT0}, s{sT0}, 4096")
        for q in range(2):
            L.append(f"v_cvt_pk_bf16_f32 {v(136+2*rh+q)}, {v(acc(rh,8)+2*q)}, {v(acc(rh,8)+2*q+1)}")
        return L
    m1 = []
    for ks in range(8):
        for j in range(9):
            d = v(acc(1, j), 4)
            m1.append(f"{M16} {d}, {ofr(1,ks)}, {wfr(ks,j)}, {d if ks else 0}")
    misc = [f"s_lshl_b32 s{sT1}, s{sB}, 13",
            f"s_lshl_b32 s{sQOFF}, s{sW}, 7",
            f"s_add_u32 s{sT1}, s{sT1}, s{sQOFF}",
            f"s_lshl_b32 s{sQOFF}, s{sT2}, 3",
            f"s_add_u32 s{sT1}, s{sT1}, s{sQOFF}",
            f"s_add_u32 s{sT1}, s{sT1}, {FY}",
            f"v_lshlrev_b32 {v(vT)}, 9, {v(vN)}",
            f"s_memrealtime s[{sNON}:{sNON+1}]"]
    emit(m1[:10])
    emit(weave(m1[10:], pack_store(0) + misc, 1))
    stamp(5)
    A.nop(8)
    emit(pack_store(1))
    A(f"buffer_store_dwordx4 {v(136,4)}, {v(vL16)}, s[{SWS}:{SWS+3}], s{sT0} offen sc1")
    stamp(7)
    A("s_waitcnt lgkmcnt(0)")
    A(f"v_mov_b32 {v(vT+2)}, s{sNON}")
    A(f"v_mov_b32 {v(vT+3)}, s{sNON+1}")
    A("s_waitcnt vmcnt(0)")
    A("s_mov_b64 exec, 0xffff")
    A(f"buffer_store_dwordx2 {v(vT+2,2)}, {v(vT)}, s[{SWS}:{SWS+3}], s{sT1} offen sc1")
    A("s_mov_b64 exec, -1")
    stamp(8)
    A("s_branch L_fin")

    A.label("L_g2_tail")
    A("s_waitcnt vmcnt(0)")
    for k in range(6):
        A(f"v_mov_b32 {v(vR+4*k+3)}, s{sNON}")
    A(f"v_mov_b32 {v(vR+slot3(16))}, {v(vM)}")
    A(f"v_mov_b32 {v(vR+slot3(17))}, {v(vL1)}")
    A(f"s_add_u32 s{sMV}, s{sQOFF}, 4096")
    A(f"s_add_u32 s{sOFFc}, s{sQOFF}, 8192")
    RS = (sQOFF, sMV, sOFFc)
    A("s_waitcnt lgkmcnt(0)")
    A("s_barrier")
    for k in range(8):
        A(f"ds_read_b128 {v(vO+32+4*k,4)}, {v(vX+2)} offset:{k*1024}")
    for k in range(8):
        A(f"s_waitcnt lgkmcnt({7-k})")
        for z in range(2):
            A(f"v_pk_add_f32 {v(vO+4*k+2*z,2)}, {v(vO+4*k+2*z,2)}, {v(vO+32+4*k+2*z,2)}")
        for z in range(2):
            q = 2 * k + z
            A(f"v_cvt_pk_bf16_f32 {v(vR+slot3(q))}, {v(vO+4*k+2*z)}, {v(vO+4*k+2*z+1)}")
            if q % 3 == 2 or q == 15:
                A(orec1("buffer_store_dwordx4", q // 3, RS))
    stamp(4)
    sJ = sST
    srd(A, SX, KA+10, KA+11, 8 * 32 * 576 * 2)
    A(f"s_and_b32 s{sJ}, s2, 15")
    vSA = vQf
    A(f"v_and_b32 {v(vT)}, 1, {v(vN)}")
    A(f"v_lshlrev_b32 {v(vT)}, 4, {v(vT)}")
    A(f"v_mov_b32 {v(vT+1)}, 0x3f80")
    A(f"v_lshlrev_b32 {v(vT+1)}, {v(vT)}, {v(vT+1)}")
    A(f"v_lshrrev_b32 {v(vT)}, 1, {v(vN)}")
    for t in range(4):
        A(f"v_cmp_eq_u32 vcc, {t}, {v(vT)}")
        A.nop(2)
        A(f"v_cndmask_b32 {v(vSA+t)}, 0, {v(vT+1)}, vcc")
    A(f"s_lshl_b32 s{sT0}, s{sB}, 4")
    A(f"s_add_u32 s{sT0}, s{sT0}, s{sJ}")
    A(f"s_lshl_b32 s{sT0}, s{sT0}, 2")
    A(f"s_add_u32 s{sT0}, s{sT0}, s{sW}")
    A(f"s_lshl_b32 s{sT0}, s{sT0}, 7")
    A(f"s_add_u32 s{sQOFF}, s{sT0}, {FY}")
    A(f"v_lshlrev_b32 {v(vT+1)}, 3, {v(vN)}")
    A(f"v_mul_u32_u24 {v(vT)}, 36864, {v(vG)}")
    A(f"v_lshl_add_u32 {v(vT)}, {v(vN)}, 4, {v(vT)}")
    A(f"s_mul_i32 s{sT0}, s{sB}, {16*36864}")
    A(f"s_mul_i32 s{sT1}, s{sW}, 9216")
    A(f"s_add_u32 s{sT0}, s{sT0}, s{sT1}")
    A(f"s_add_u32 s{sT0}, s{sT0}, {PY}")
    A(f"s_lshl_b32 s{sT1}, s{sJ}, 8")
    A(f"s_add_u32 s{sXOFF}, s{sT0}, s{sT1}")
    A(f"s_add_u32 s{sXOFF}, s{sXOFF}, 8192")
    A(f"s_lshl_b32 s{sT1}, s{sJ}, 9")
    A(f"s_add_u32 s{sT0}, s{sT0}, s{sT1}")
    A(f"s_lshr_b32 s{sT1}, s{sJ}, 3")
    A(f"s_lshl_b32 s{sT1}, s{sT1}, 4")
    A(f"s_and_b32 s{sT2}, s{sJ}, 1")
    A(f"s_lshl_b32 s{sT2}, s{sT2}, 3")
    A(f"s_add_u32 s{sT1}, s{sT1}, s{sT2}")
    A(f"s_bfe_u32 s{sT2}, s{sJ}, 0x20001")
    A(f"s_add_u32 s{sT1}, s{sT1}, s{sT2}")
    A(f"s_lshl_b32 s{sT2}, s{sB}, 5")
    A(f"s_add_u32 s{sT1}, s{sT1}, s{sT2}")
    A(f"s_mul_i32 s{sT1}, s{sT1}, 1152")
    A(f"s_lshl_b32 s{sT2}, s{sW}, 8")
    A(f"s_add_u32 s{sT1}, s{sT1}, s{sT2}")
    A(f"s_add_u32 s{sOFF}, s{sT1}, {4*1152}")
    A(f"v_lshlrev_b32 {v(vMx)}, 4, {v(vN)}")
    A(f"v_lshl_add_u32 {v(vMx)}, {v(vG)}, 3, {v(vMx)}")
    A(f"s_mov_b32 s{sT2}, 0")
    A("s_branch L_polly_ld")
    A.label("L_polly")
    A(f"s_sleep {SLEEPY}")
    A.label("L_polly_ld")
    A(f"buffer_load_dwordx2 {v(vT+2,2)}, {v(vT+1)}, s[{SWS}:{SWS+3}], s{sQOFF} offen sc1")
    A(f"v_mov_b32 {v(vBe)}, s{sTIM+1}")
    A("s_waitcnt vmcnt(0)")
    A(f"v_subrev_co_u32 {v(vAl)}, vcc, s{sTIM}, {v(vT+2)}")
    A(f"v_subb_co_u32 {v(vBe)}, vcc, {v(vT+3)}, {v(vBe)}, vcc")
    A(f"v_cmp_le_u64 vcc, s[{sWIN}:{sWIN+1}], {v(vAl,2)}")
    A(f"s_add_u32 s{sT2}, s{sT2}, 1")
    A("s_cbranch_vccz L_polly_done")
    A(f"s_cmp_lt_u32 s{sT2}, {SPIN_MAX}")
    A("s_cbranch_scc1 L_polly")
    A.label("L_polly_done")
    stamp(9)
    vRR = vO
    for k in range(4):
        A(f"buffer_load_dwordx4 {v(vRR+4*k,4)}, {v(vT)}, s[{SWS}:{SWS+3}], s{sT0} offen sc1")
        A(f"buffer_load_dwordx4 {v(vRR+16+4*k,4)}, {v(vT)}, s[{SWS}:{SWS+3}], s{sT0} offen offset:256 sc1")
        A(f"s_add_u32 s{sT0}, s{sT0}, {4*36864}")
    A(f"s_cmp_lt_u32 s{sJ}, 4")
    A("s_cbranch_scc0 L_no_extra_ld")
    for k in range(4):
        A(f"buffer_load_dwordx4 {v(vRR+32+4*k,4)}, {v(vT)}, s[{SWS}:{SWS+3}], s{sXOFF} offen sc1")
        A(f"s_add_u32 s{sXOFF}, s{sXOFF}, {4*36864}")
    A.label("L_no_extra_ld")
    A("s_waitcnt vmcnt(0)")
    vS = vSo
    for k in range(4):
        for u in range(2):
            A(f"{M16} {v(vS+4*u,4)}, {v(vSA,4)}, {v(vRR+16*u+4*k,4)}, {v(vS+4*u,4) if k else 0}")
    A.nop(8)
    for u in range(2):
        A(f"v_cvt_pk_bf16_f32 {v(vSn+2*u)}, {v(vS+4*u)}, {v(vS+4*u+1)}")
        A(f"v_cvt_pk_bf16_f32 {v(vSn+2*u+1)}, {v(vS+4*u+2)}, {v(vS+4*u+3)}")
    A("s_mov_b32 exec_hi, 0")
    A(f"buffer_store_dwordx2 {v(vSn,2)}, {v(vMx)}, s[{SX}:{SX+3}], s{sT1} offen{POLO}")
    A(f"buffer_store_dwordx2 {v(vSn+2,2)}, {v(vMx)}, s[{SX}:{SX+3}], s{sOFF} offen{POLO}")
    A(f"s_mov_b64 exec, -1")
    A(f"s_cmp_lt_u32 s{sJ}, 4")
    A("s_cbranch_scc0 L_fin")
    for k in range(4):
        A(f"{M16} {v(vS+8,4)}, {v(vSA,4)}, {v(vRR+32+4*k,4)}, {v(vS+8,4) if k else 0}")
    A(f"s_lshl_b32 s{sT0}, s{sJ}, 2")
    A(f"s_lshl_b32 s{sT1}, s{sB}, 5")
    A(f"s_add_u32 s{sT0}, s{sT0}, s{sT1}")
    A(f"s_mul_i32 s{sT0}, s{sT0}, 1152")
    A(f"s_lshl_b32 s{sT1}, s{sW}, 5")
    A(f"s_add_u32 s{sT0}, s{sT0}, s{sT1}")
    A(f"s_add_u32 s{sT0}, s{sT0}, 1024")
    A(f"v_lshlrev_b32 {v(vT)}, 1, {v(vN)}")
    A(f"v_mul_u32_u24 {v(vT+1)}, {16*1152}, {v(vG)}")
    A(f"v_add_u32 {v(vT)}, {v(vT)}, {v(vT+1)}")
    A.nop(4)
    A(f"v_cvt_pk_bf16_f32 {v(vS+12)}, {v(vS+8)}, {v(vS+9)}")
    A(f"v_cvt_pk_bf16_f32 {v(vS+13)}, {v(vS+10)}, {v(vS+11)}")
    A("s_mov_b32 exec_hi, 0")
    A(f"buffer_store_short {v(vS+12)}, {v(vT)}, s[{SX}:{SX+3}], s{sT0} offen{POLO}")
    A(f"buffer_store_short_d16_hi {v(vS+12)}, {v(vT)}, s[{SX}:{SX+3}], s{sT0} offen offset:1152{POLO}")
    A(f"buffer_store_short {v(vS+13)}, {v(vT)}, s[{SX}:{SX+3}], s{sT0} offen offset:2304{POLO}")
    A(f"buffer_store_short_d16_hi {v(vS+13)}, {v(vT)}, s[{SX}:{SX+3}], s{sT0} offen offset:3456{POLO}")
    A(f"s_mov_b64 exec, -1")
    A.label("L_fin")
    if STAMPS:
        A("s_waitcnt vmcnt(0)")
        stamp(10)
        A(f"s_lshl_b32 s{sT0}, s2, 2")
        A(f"s_add_u32 s{sT0}, s{sT0}, s{sW}")
        A(f"s_lshl_b32 s{sT1}, s{sT0}, 8")
        A(f"s_lshl_b32 s{sT0}, s{sT0}, 7")
        A(f"s_add_u32 s{sT0}, s{sT0}, {STAMP_BASE}")
        A(f"s_add_u32 s{sT1}, s{sT1}, {STAMP_BASE + (1 << 20)}")
        A(f"v_lshlrev_b32 {v(vT)}, 2, {v(vLane)}")
        A(f"buffer_store_dword v255, {v(vT)}, s[{SWS}:{SWS+3}], s{sT1} offen")
        A.nop(2)
        A(f"v_mov_b32 {v(vT)}, 0")
        A("s_mov_b64 exec, 1")
        for i in range(13):
            src = 56 + 2 * i if i < 12 else sTIM
            A(f"v_mov_b32 {v(vT+2)}, s{src}")
            A(f"v_mov_b32 {v(vT+3)}, s{src+1}")
            A(f"buffer_store_dwordx2 {v(vT+2,2)}, {v(vT)}, s[{SWS}:{SWS+3}], s{sT0} offen offset:{8*i}")
            A.nop(2)
    A.label("L_end")
    A("s_endpgm")

    A.label("L_rescale")
    A(f"v_max_f32 {v(vMx)}, {v(vMx)}, {v(vM)}")
    A(f"v_mul_f32 {v(vMc)}, s{sC}, {v(vMx)}")
    A(f"v_fma_f32 {v(vAl)}, {v(vM)}, s{sC}, -{v(vMc)}")
    A(f"v_exp_f32 {v(vAl)}, {v(vAl)}")
    A(f"v_mov_b32 {v(vM)}, {v(vMx)}")
    A.nop(8)
    for k in list(range(32, 64, 2)) + list(range(0, 32, 2)):
        A(f"v_pk_mul_f32 {v(vO+k,2)}, {v(vO+k,2)}, {v(vAl,2)} op_sel_hi:[1,0]")
    for k in range(0, 4, 2):
        A(f"v_pk_mul_f32 {v(vLa+k,2)}, {v(vLa+k,2)}, {v(vAl,2)} op_sel_hi:[1,0]")
    A(f"s_setpc_b64 s[{sM64}:{sM64+1}]")

    A.label("L_special")
    A(f"s_add_u32 s{sT0}, s{sXOFF}, 1024")
    A(f"s_add_u32 s{SK}, s{KA+8}, s{sT0}")
    A(f"s_addc_u32 s{SK+1}, s{KA+9}, 0")
    A(f"s_sub_u32 s{SK}, s{SK}, {N1*16384}")
    A(f"s_subb_u32 s{SK+1}, s{SK+1}, 0")
    A(f"s_and_b32 s{SK+1}, s{SK+1}, 0xffff")
    A(f"s_mov_b32 s{SK+2}, {N1*16384 + 256*1152 - 1024}")
    A(f"v_lshrrev_b32 {v(vT)}, 3, {v(vLane)}")
    A(f"v_mul_u32_u24 {v(vT)}, 1152, {v(vT)}")
    A(f"v_and_b32 {v(vT+1)}, 7, {v(vLane)}")
    A(f"v_lshl_add_u32 {v(vT)}, {v(vT+1)}, 4, {v(vT)}")
    A(f"s_mul_i32 s{sT0}, s{sW}, {36864 - 4096}")
    for p in range(4):
        A(f"v_add_u32 {v(vKoff+p)}, s{sT0}, {v(vT)}")
        A(f"s_add_u32 s{sT0}, s{sT0}, {9216 - 1024}")
    A("s_branch L_special_ret")
    A.label("L_code_end")
    return A.text()

def main():
    k = gen()
    out = f"""; generated by gen14.py
; @launch grid=(256,1,1) block=(256,1,1) lds=163840
.amdgcn_target "amdgcn-amd-amdhsa--gfx950"
.text
"""
    out += kernel_head(NAME) + k
    out += '.section .rodata,"a"\n.p2align 6\n'
    out += kernel_desc(NAME, 512, 256, 102)
    open(sys.argv[1], "w").write(out)

main()
```

```python
import sys, struct
from asmlib import *

NAME = "standalone__sliding_block_cached__sampling_kernel"
OPTS = set(sys.argv[2:])
STAMPS = "stamps" in OPTS
def opt(name, default):
    for o in OPTS:
        if o.startswith(name + "="):
            return int(o.split("=")[1])
    return default
N1 = opt("n1", 17)
N2 = 32 - N1
SLEEP = opt("sleep", 2)
SLEEPY = opt("sleepy", 2)
PROF = opt("prof", 0)
THR = 8.0
POLK = " nt" if opt("polk", 1) else ""
POLV = " nt" if opt("polv", 1) else ""
XSWAP = opt("xswap", 1)
CODEWARM = opt("codewarm", 2)
MAGREE = opt("magree", 1)
GX = opt("gx", 0)
PREPOLL = opt("prepoll", 0)
DBG = opt("dbg", 0)
POLO = {0: "", 1: " sc1", 2: " nt", 3: " sc0 sc1"}[opt("polo", 0)]
QAT = opt("qat", 8)
PT = opt("pt", 0)
CWN = opt("cwn", 256)
SK_IT = opt("skip", 6)
NGB = opt("ngb", 2)
RAT = opt("rat", 2)

ND = 2 if SK_IT else 3

def slot3(k):
    return 4 * (k // 3) + k % 3

def f32bits(x):
    return struct.unpack("<I", struct.pack("<f", x))[0]

SCALE_C = (128 ** -0.5) * 1.4426950408889634
QB = 0
OB = 4 << 20
FY = 13 << 20
PY = 16 << 20
STAMP_BASE = 64 << 20
SPIN_MAX = 1 << 20
VRING = 81920
OOB = 0x7ff00000
M32 = "v_mfma_f32_32x32x16_bf16"
M16 = "v_mfma_f32_16x16x32_bf16"

def srd(A, d, lo, hi, nbytes):
    A(f"s_mov_b32 s{d}, s{lo}")
    A(f"s_and_b32 s{d+1}, s{hi}, 0xffff")
    A(f"s_mov_b32 s{d+2}, {nbytes:#x}")
    A(f"s_mov_b32 s{d+3}, 0x20000")

def weave(main, fill, per):
    out = []; fill = list(fill)
    for m in main:
        out.append(m)
        for _ in range(per):
            if fill:
                out.append(fill.pop(0))
    return out + fill

def spread(main, fill):
    out = []; n, k = len(main), len(fill); fi = 0
    for i, m in enumerate(main):
        out.append(m)
        while fi < k and (fi + 1) * n <= (i + 1) * k:
            out.append(fill[fi]); fi += 1
    return out + list(fill[fi:])

def gen():
    A = Asm()
    def emit(lst):
        for x in lst:
            if isinstance(x, tuple):
                A.vmem(x[0], x[1])
            else:
                A(x)
    def stamp(i, mode=0):
        if STAMPS and mode == PROF:
            assert i < 12
            A(f"s_memrealtime s[{56+2*i}:{57+2*i}]")
            A("s_waitcnt lgkmcnt(0)")
    SK, SV, SX, SWT, SWS = 4, 8, 12, 16, 20
    sWIN = 24
    sA0, sA1 = 26, 27
    sNON = 28
    sTIM = 30
    (sW, sKVH, sB, sPR, sOFF, sOFFc, sRK, sMK, sMV, sC, sSELL, sSELH, sT0, sT1, sT2, sLIM, sDK,
     sQOFF, sXOFF, sM0B, sST, sN, sIT, sSLOT) = range(32, 56)
    sM64, sTHR, sK16, sDV, sKH = 96, 98, 99, 100, 101
    KA = 80
    vL16, vVoff, vM = 1, 2, 3
    vKoff, vT, vKa, vVa = 4, 8, 12, 20
    vMc, vMx, vAl, vBe = 24, 25, 26, 27
    vSel, vLa, vQf = 28, 32, 36
    vX = 68
    vO, vSo, vSn, vKV = 88, 152, 168, 184
    vR = 216
    vLane, vG, vN = 252, 253, 254
    vP = vSo
    XL = 65536
    QIMG = VRING + 16384

    A("s_cmp_ge_u32 s2, 256")
    A("s_cbranch_scc1 L_end")
    A(f"s_load_dwordx16 s[{KA}:{KA+15}], s[0:1], 0")
    A(f"s_memrealtime s[{sTIM}:{sTIM+1}]")
    if DBG:
        A("s_memtime s[78:79]")
    if CODEWARM == 2:
        A(f"s_cmp_lt_u32 s2, {CWN}")
        A("s_cbranch_scc0 L_nocw")
        for x in [f"s_getpc_b64 s[{sT0}:{sT0+1}]", "L_pc:", f"s_sub_u32 s{sT0}, s{sT0}, L_pc-{NAME}", f"s_subb_u32 s{sT1}, s{sT1}, 0",
                  f"v_lshlrev_b32 {v(vT+1)}, 7, v0",
                  f"v_min_u32 {v(vT+1)}, L_code_end-{NAME}-4, {v(vT+1)}",
                  f"global_load_dword {v(vMx)}, {v(vT+1)}, s[{sT0}:{sT0+1}]"]:
            A(x)
        A.label("L_nocw")
    if XSWAP:
        A("s_lshr_b32 s3, s2, 7")
        A("s_xor_b32 s2, s2, s3")
    A(f"v_lshrrev_b32 {v(vT)}, 6, v0")
    A(f"v_and_b32 {v(vLane)}, 63, v0")
    A(f"v_readfirstlane_b32 s{sW}, {v(vT)}")
    A(f"v_lshrrev_b32 {v(vG)}, 4, {v(vLane)}")
    A(f"v_and_b32 {v(vN)}, 15, {v(vLane)}")
    A(f"s_and_b32 s{sKVH}, s2, 7")
    A(f"s_lshl_b32 s{sKVH}, s{sKVH}, 1")
    A(f"s_bfe_u32 s{sB}, s2, 0x10003")
    A(f"s_add_u32 s{sKVH}, s{sKVH}, s{sB}")
    A(f"s_bfe_u32 s{sB}, s2, 0x30004")
    A(f"s_and_b32 s{sPR}, s2, 127")
    A(f"s_lshl_b32 s{sT0}, s{sB}, 25")
    A(f"s_lshl_b32 s{sT1}, s{sKVH}, 21")
    A(f"s_add_u32 s{sT0}, s{sT0}, s{sT1}")
    A(f"s_add_u32 s{sT0}, s{sT0}, {6144*256}")
    A(f"s_add_u32 s{sT1}, s{sT0}, {N1*16384}")
    A(f"s_cmp_ge_u32 s2, 128")
    A(f"s_cselect_b32 s{sT2}, s{sT0}, s{sT1}")
    A(f"s_cselect_b32 s{sN}, {N1}, {N2}")
    A(f"s_lshl_b32 s{sM0B}, s{sW}, 12")
    A(f"s_add_u32 s{sLIM}, s{sM0B}, {VRING}")
    A(f"s_and_b32 s{sKH}, s{sW}, 1")
    A(f"v_lshlrev_b32 {v(vL16)}, 4, {v(vLane)}")

    def kv_setup():
        L = []
        for p in range(4):
            L += [f"v_or_b32 {v(vT)}, {4*p}, {v(vG)}", f"v_xor_b32 {v(vT)}, {v(vT)}, {v(vN)}",
                  f"v_lshlrev_b32 {v(vT)}, 4, {v(vT)}", f"v_lshl_add_u32 {v(vKoff+p)}, {v(vG)}, 8, {v(vT)}"]
        L += [f"v_lshlrev_b32 {v(vT)}, 2, {v(vG)}", f"v_xor_b32 {v(vT)}, {v(vT)}, {v(vN)}",
              f"v_lshlrev_b32 {v(vT)}, 4, {v(vT)}", f"v_lshl_add_u32 {v(vVoff)}, {v(vG)}, 8, {v(vT)}"]
        return L
    def kv_srds():
        return [f"s_add_u32 s{SK}, s{KA+2}, s{sT2}", f"s_addc_u32 s{SK+1}, s{KA+3}, 0", f"s_and_b32 s{SK+1}, s{SK+1}, 0xffff",
                f"s_lshl_b32 s{SK+2}, s{sN}, 14", f"s_mov_b32 s{SK+3}, 0x20000",
                f"s_sub_u32 s{sT2}, s{sT2}, 16384",
                f"s_add_u32 s{SV}, s{KA+4}, s{sT2}", f"s_addc_u32 s{SV+1}, s{KA+5}, 0", f"s_and_b32 s{SV+1}, s{SV+1}, 0xffff",
                f"s_add_u32 s{SV+2}, s{SK+2}, 16384", f"s_mov_b32 s{SV+3}, 0x20000",
                f"s_mov_b32 s{sOFF}, s{sM0B}", f"s_mov_b32 s{sRK}, s{sM0B}"]
    def dma_list(tag=None, first=False):
        L = [f"s_mov_b32 m0, s{sRK}", f"s_add_u32 s{sMK}, s{sRK}, 16384"]
        for p in range(4):
            ln = f"buffer_load_dwordx4 {v(vKoff+p)}, s[{SK}:{SK+3}], s{sOFF} offen offset:{p*1024}{POLK} lds"
            L.append((ln, tag) if tag else ln)
        L += [f"s_cmp_ge_u32 s{sMK}, s{sLIM}", f"s_cselect_b32 s{sRK}, s{sM0B}, s{sMK}", f"s_add_u32 m0, s{sRK}, {VRING}", "s_nop 0"]
        for p in range(0 if first else 4):
            ln = f"buffer_load_dwordx4 {v(vVoff)}, s[{SV}:{SV+3}], s{sOFF} offen offset:{p*1024}{POLV} lds"
            L.append((ln, tag) if tag else ln)
        L += [f"s_add_u32 s{sOFF}, s{sOFF}, 16384"]
        return L
    def common_setup():
        L = [f"s_mov_b32 s{sC}, {f32bits(SCALE_C):#x}", f"s_mov_b32 s{sTHR}, {f32bits(THR / SCALE_C):#x}",
             f"s_mov_b32 s{sSELL}, 0x05040100", f"s_mov_b32 s{sSELH}, 0x07060302", f"s_mov_b32 s{sK16}, 16384",
             f"s_mov_b32 s{sWIN}, 0x1000000", f"s_mov_b32 s{sWIN+1}, 0"]
        L += [f"v_and_b32 {v(vT)}, 31, {v(vLane)}",
              f"v_lshlrev_b32 {v(vT)}, 8, {v(vT)}",
              f"v_mov_b32 {v(vT+1)}, s{sKH}",
              f"v_lshl_add_u32 {v(vT)}, {v(vT+1)}, 13, {v(vT)}",
              f"v_lshrrev_b32 {v(vT+2)}, 5, {v(vLane)}",
              f"v_xor_b32 {v(vT+2)}, {v(vT+2)}, {v(vN)}"]
        for s_ in range(8):
            L += [f"v_xor_b32 {v(vT+3)}, {2*s_}, {v(vT+2)}",
                  f"v_lshl_add_u32 {v(vKa+s_)}, {v(vT+3)}, 4, {v(vT)}"]
        L += [f"v_lshrrev_b32 {v(vT+2)}, 2, {v(vN)}",
              f"v_lshrrev_b32 {v(vT)}, 5, {v(vLane)}",
              f"v_lshl_add_u32 {v(vT)}, {v(vT)}, 2, {v(vT+2)}",
              f"v_lshlrev_b32 {v(vT)}, 8, {v(vT)}",
              f"v_lshl_add_u32 {v(vT)}, {v(vT+1)}, 13, {v(vT)}",
              f"v_and_b32 {v(vT+3)}, 3, {v(vN)}",
              f"v_lshl_add_u32 {v(vT)}, {v(vT+3)}, 3, {v(vT)}",
              f"v_and_b32 {v(vT+3)}, 1, {v(vG)}",
              f"v_lshl_add_u32 {v(vT)}, {v(vT+3)}, 5, {v(vT)}",
              f"v_add_u32 {v(vT)}, {QIMG}, {v(vT)}",
              f"v_lshlrev_b32 {v(vT+1)}, 1, {v(vT+1)}",
              f"v_xor_b32 {v(vT+2)}, {v(vT+2)}, {v(vT+1)}"]
        for D in range(4):
            L += [f"v_xor_b32 {v(vT+3)}, {D}, {v(vT+2)}",
                  f"v_lshl_add_u32 {v(vVa+D)}, {v(vT+3)}, 6, {v(vT)}"]
        L += [f"v_lshrrev_b32 {v(vT)}, 2, {v(vN)}",
              f"v_xor_b32 {v(vT)}, {v(vT)}, {v(vG)}",
              f"v_and_b32 {v(vT)}, 1, {v(vT)}",
              f"v_add_u32 {v(vT)}, -1, {v(vT)}",
              f"v_and_b32 {v(vSel)}, 0x3f803f80, {v(vT)}",
              f"v_mov_b32 {v(vSel+1)}, {v(vSel)}", f"v_mov_b32 {v(vSel+2)}, {v(vSel)}", f"v_mov_b32 {v(vSel+3)}, {v(vSel)}"]
        return L
    def init_list():
        L = [f"v_mov_b32 {v(vO+k)}, 0" for k in range(64)] + [f"v_mov_b32 {v(vLa+k)}, 0" for k in range(4)]
        L += [f"v_mov_b32 {v(vM)}, 0xff800000", f"v_mov_b32 {v(vMc)}, 0"] + [f"v_mov_b32 {v(vSn+k)}, 0xff800000" for k in range(16)]
        L += [f"s_mov_b32 s{sSLOT}, 1", f"s_mov_b32 s{sIT}, 0", f"s_mov_b32 s{sDK}, 16384"]
        return L
    def q_image(vC, mid=()):
        A(f"v_lshlrev_b32 {v(vT+2)}, 4, {v(vN)}")
        A(f"v_lshl_add_u32 {v(vT+2)}, {v(vG)}, 11, {v(vT+2)}")
        A(f"s_lshr_b32 s{sT1}, s{sW}, 1")
        A(f"s_lshl_b32 s{sT1}, s{sT1}, 13")
        A(f"s_add_u32 s{sT1}, s{sT1}, {QIMG}")
        A(f"s_lshl_b32 s{sT2}, s{sKH}, 8")
        A(f"s_add_u32 s{sT2}, s{sT2}, s{sT1}")
        A(f"v_add_u32 {v(vT+2)}, s{sT2}, {v(vT+2)}")
        for i in range(4):
            A(f"ds_write_b128 {v(vT+2)}, {v(vC+4*i,4)} offset:{(i>>1)*1024 + (i&1)*512}")
        A(f"v_add_u32 {v(vT+3)}, s{sT1}, {v(vL16)}")
        emit(mid)
        A("s_waitcnt lgkmcnt(0)")
        A("s_barrier")
        for s_ in range(8):
            A(f"ds_read_b128 {v(vQf+4*s_,4)}, {v(vT+3)} offset:{s_*1024}")

    def pretouch(g1):
        if not PT:
            return
        A(f"v_mul_u32_u24 {v(vT)}, 36864, {v(vN)}")
        A(f"s_mul_i32 s{sT0}, s{sB}, {16*36864}")
        A(f"s_mul_i32 s{sT1}, s{sW}, 9216")
        A(f"s_add_u32 s{sT0}, s{sT0}, s{sT1}")
        A(f"s_add_u32 s{sT0}, s{sT0}, {PY}")
        A(f"v_add_u32 {v(vT)}, s{sT0}, {v(vT)}")
        A(f"s_lshl_b32 s{sT0}, s{sPR}, 2")
        A(f"s_add_u32 s{sT0}, s{sT0}, s{sW}")
        A(f"s_mul_i32 s{sT0}, s{sT0}, 9216")
        A(f"s_add_u32 s{sT0}, s{sT0}, {OB}")
        A(f"v_writelane_b32 {v(vT)}, s{sT0}, 16")
        A(f"s_add_u32 s{sT0}, s{sT0}, 8192")
        A(f"v_writelane_b32 {v(vT)}, s{sT0}, 17")
        A(f"s_lshl_b32 s{sT0}, s{sB}, 13")
        A(f"s_add_u32 s{sT0}, s{sT0}, {FY}")
        A(f"v_writelane_b32 {v(vT)}, s{sT0}, 18")
        A(f"s_add_u32 s{sT0}, s{sT0}, 4096")
        A(f"v_writelane_b32 {v(vT)}, s{sT0}, 19")
        A.vmem(f"buffer_load_dword {v(vX+18)}, {v(vT)}, s[{SWS}:{SWS+3}], 0 offen sc1", "pt")
        if not g1:
            A(f"v_lshlrev_b32 {v(vT)}, 12, {v(vN)}")
            A(f"s_mul_i32 s{sT0}, s{sB}, 36864")
            A.vmem(f"buffer_load_dword {v(vX+19)}, {v(vT)}, s[{SX}:{SX+3}], s{sT0} offen", "pt")

    fmas = [f"v_fma_f32 {v(vSo+k)}, {v(vSn+k)}, s{sC}, -{v(vMc)}" for k in range(16)]
    def expcvt():
        L = []
        for k in range(16):
            L.append(f"v_exp_f32 {v(vSo+k)}, {v(vSo+k)}")
            if k >= 3 and k % 2 == 1:
                q = (k - 3) // 2
                L.append(f"v_cvt_pk_bf16_f32 {v(vP+q)}, {v(vSo+2*q)}, {v(vSo+2*q+1)}")
        L.append("s_nop 0")
        L.append(f"v_cvt_pk_bf16_f32 {v(vP+7)}, {v(vSo+14)}, {v(vSo+15)}")
        return L
    pvo = [(2, 0), (3, 0), (2, 1), (3, 1), (0, 0), (1, 0), (0, 1), (1, 1)]
    def vread(f):
        D, t = pvo[f]
        return [f"ds_read_b64_tr_b16 {v(vKV+4*f+2*u,2)}, {v(vVa+D)} offset:{(16*t+8*u)*256}" for u in range(2)]
    def pvm(f):
        D, t = pvo[f]
        return f"{M32} {v(vO+16*D,16)}, {v(vKV+4*f,4)}, {v(vP+4*t,4)}, {v(vO+16*D,16)}"
    def lm(t):
        return f"{M16} {v(vLa,4)}, {v(vSel,4)}, {v(vP+4*t,4)}, {v(vLa,4)}"
    def body(mem, tail_salu, lab):
        if STAMPS and PROF == 0:
            A("s_memrealtime s[96:97]")
            A("s_waitcnt lgkmcnt(0)")
            A(f"s_mov_b32 m0, s{sIT}")
            A("s_nop 0")
            A(f"v_writelane_b32 v255, s96, m0")
        emit([f"ds_read_b128 {v(vKV+4*s_,4)}, {v(vKa+s_)}" for s_ in range(8)])
        emit(mem[0])
        emit(fmas)
        A(f"s_add_u32 s{sSLOT}, s{sSLOT}, 1")
        A(f"s_cmp_ge_u32 s{sSLOT}, 5")
        A(f"s_cselect_b32 s{sDV}, {(-4*16384) & 0xffffffff:#x}, s{sK16}")
        A(f"s_cselect_b32 s{sSLOT}, 0, s{sSLOT}")
        ec = expcvt()
        per = [3, 3, 3, 3, 3, 3, 4, 3]
        for s_ in range(8):
            A(f"s_waitcnt lgkmcnt({7 + s_})")
            A(f"{M32} {v(vSn,16)}, {v(vKV+4*s_,4)}, {v(vQf+4*s_,4)}, {v(vSn,16) if s_ else 0}")
            emit(vread(s_) if s_ < 7 else [])
            for _ in range(per[s_]):
                A(ec.pop(0))
            if s_ == 3:
                emit(mem[1])
        A("s_waitcnt lgkmcnt(12)")
        emit(vread(7))
        kadds = [f"v_add_u32 {v(vKa+k)}, s{sDK}, {v(vKa+k)}" for k in range(8)]
        vadds = [f"v_add_u32 {v(vVa+k)}, s{sDV}, {v(vVa+k)}" for k in range(4)]
        mx = [f"v_max3_f32 {v(vMx)}, {v(vSn)}, {v(vSn+1)}, {v(vSn+2)}", f"v_max3_f32 {v(vT)}, {v(vSn+3)}, {v(vSn+4)}, {v(vSn+5)}",
              f"v_max3_f32 {v(vMx)}, {v(vMx)}, {v(vSn+6)}, {v(vSn+7)}", f"v_max3_f32 {v(vT)}, {v(vT)}, {v(vSn+8)}, {v(vSn+9)}",
              f"v_max3_f32 {v(vMx)}, {v(vMx)}, {v(vSn+10)}, {v(vSn+11)}", f"v_max3_f32 {v(vT)}, {v(vT)}, {v(vSn+12)}, {v(vSn+13)}",
              f"v_max3_f32 {v(vMx)}, {v(vMx)}, {v(vSn+14)}, {v(vSn+15)}", f"v_max_f32 {v(vMx)}, {v(vMx)}, {v(vT)}"]
        gaps = [
            mem[2] + kadds[:3],
            kadds[3:8],
            mem[3] + vadds[:2],
            vadds[2:] + mx[:3],
            mem[4] + mx[3:6],
            mx[6:] + [f"v_mov_b32 {v(vT)}, {v(vMx)}"] + mem[5] + [f"s_mov_b32 s{sDK}, s{sDV}"],
            [f"v_permlane32_swap_b32 {v(vMx)}, {v(vT)}"] + mem[6] + ["s_nop 0", f"v_max_f32 {v(vMx)}, {v(vMx)}, {v(vT)}", f"v_sub_f32 {v(vT)}, {v(vMx)}, {v(vM)}"],
            mem[7] + [f"v_cmp_lt_f32 vcc, s{sTHR}, {v(vT)}"],
        ]
        for f in range(8):
            if f in (1, 3, 5, 7):
                A(f"s_waitcnt lgkmcnt({max(0, 16 - 2 * (f + 2))})")
            A(pvm(f))
            emit(gaps[f])
        A(lm(0)); A(lm(1))
        emit(tail_salu)
        A(f"s_cbranch_vccz L_nors{lab}")
        A(f"s_call_b64 s[{sM64}:{sM64+1}], L_rescale")
        A.label(f"L_nors{lab}")

    A(f"s_cmp_lt_u32 s2, 128")
    A("s_cbranch_scc1 L_g2")

    emit(kv_setup())
    A(f"s_mul_i32 s{sXOFF}, s{sKVH}, {256*1152}")
    A(f"s_mul_i32 s{sT0}, s{sB}, 36864")
    A(f"s_mul_i32 s{sT1}, s{sW}, 9216")
    A(f"s_add_u32 s{sT0}, s{sT0}, s{sT1}")
    A(f"s_add_u32 s{sT0}, s{sT0}, s{sXOFF}")
    A(f"v_lshlrev_b32 {v(vT)}, 7, {v(vLane)}")
    A("s_waitcnt lgkmcnt(0)")
    srd(A, SWT, KA+8, KA+9, 576 * 4096 * 2)
    A.vmem(f"buffer_load_dword {v(vAl)}, {v(vT)}, s[{SWT}:{SWT+3}], s{sT0} offen", "pw")
    A.vmem(f"buffer_load_dword {v(vBe)}, {v(vT)}, s[{SWT}:{SWT+3}], s{sT0} offen offset:1024", "pw")
    emit(kv_srds())
    emit(dma_list("G", first=True))
    emit(dma_list("G"))
    srd(A, SWS, KA+14, KA+15, 1 << 30)
    emit(common_setup())
    if CODEWARM == 1:
        A(f"s_cmp_eq_u32 s{sB}, 0")
        A("s_cbranch_scc0 L_nocw")
        for x in [f"s_getpc_b64 s[{sT0}:{sT0+1}]", "L_pc:", f"s_sub_u32 s{sT0}, s{sT0}, L_pc-{NAME}", f"s_subb_u32 s{sT1}, s{sT1}, 0",
                  f"v_mov_b32 {v(vT+1)}, s{sW}", f"v_lshlrev_b32 {v(vT+1)}, 13, {v(vT+1)}", f"v_lshl_add_u32 {v(vT+1)}, {v(vLane)}, 7, {v(vT+1)}",
                  f"v_min_u32 {v(vT+1)}, L_code_end-{NAME}-4, {v(vT+1)}",
                  f"global_load_dword {v(vMx)}, {v(vT+1)}, s[{sT0}:{sT0+1}]"]:
            A(x)
        A.label("L_nocw")
    vWm, vTmp = 68, 72
    A(f"v_lshrrev_b32 {v(vT)}, 1, {v(vG)}")
    A(f"v_lshlrev_b32 {v(vT)}, 2, {v(vT)}")
    A(f"v_and_b32 {v(vT+1)}, 1, {v(vG)}")
    A(f"v_add_u32 {v(vT)}, {v(vT)}, {v(vT+1)}")
    A(f"v_mul_u32_u24 {v(vT)}, {4*1152}, {v(vT)}")
    A(f"s_lshl_b32 s{sT0}, s{sW}, 8")
    A(f"v_lshl_add_u32 {v(vWm)}, {v(vN)}, 4, {v(vT)}")
    A(f"v_add_u32 {v(vWm)}, s{sT0}, {v(vWm)}")
    A(f"v_add_u32 {v(vWm+1)}, {8*1152}, {v(vWm)}")
    for g_ in range(2, 5):
        emit(dma_list("G"))
    stamp(0)
    rawat = [88 + 32 * (k % 5) for k in range(8)]
    def wo_issue(k):
        T = rawat[k]
        L = [f"s_add_u32 s{sT2}, s{sXOFF}, {k*32*1152}"]
        for e in range(8):
            L.append((f"buffer_load_dwordx4 {v(T+4*e,4)}, {v(vWm+(e>>2))}, s[{SWT}:{SWT+3}], s{sT2} offen offset:{(e&3)*1152}", f"w{k}"))
        return L
    def wo_transpose(k):
        T = rawat[k]
        L = []; cnt = 0
        for j in range(8):
            for t in range(4):
                tmp = vTmp + (cnt % 8); cnt += 1
                L.append(f"v_perm_b32 {v(tmp)}, {v(T+4*(2*t+1)+j//2)}, {v(T+4*(2*t)+j//2)}, s{sSELH if (j & 1) else sSELL}")
                L.append(f"v_accvgpr_write_b32 {a(32*k+4*j+t)}, {v(tmp)}")
        return L
    A(f"s_lshl_b32 s{sT0}, s{sPR}, 2")
    A(f"s_add_u32 s{sT0}, s{sT0}, s{sW}")
    A(f"s_mul_i32 s{sST}, s{sT0}, 6144")
    A(f"s_add_u32 s{sQOFF}, s{sST}, 4096")
    A(f"s_sub_u32 s{sA0}, s{sTIM}, 1000")
    A(f"s_subb_u32 s{sA1}, s{sTIM+1}, 0")
    vQL = 36
    def q_batch(ks=range(6)):
        L = []
        for k in ks:
            L.append((f"buffer_load_dwordx4 {v(vQL+4*k,4)}, {v(vL16)}, s[{SWS}:{SWS+3}], s{sST if k < 4 else sQOFF} offen offset:{(k%4)*1024} sc1", "qb"))
        return L
    emit(wo_issue(0))
    emit(wo_issue(1))
    A("s_waitcnt vmcnt(40)"); A.retired = len(A.vm) - 40
    emit(wo_issue(2))
    emit(wo_issue(3))
    for k in range(8):
        A.wait_vm(f"w{k}")
        stamp(k, 2)
        nx = wo_issue(k + 4) if k + 4 < 8 else []
        emit(spread(wo_transpose(k), nx))
    stamp(1)
    def stamp_check(extra):
        A(f"v_subrev_co_u32 {v(vT+2)}, vcc, s{sA0}, {v(vQL+23)}")
        A(f"v_subb_co_u32 {v(vT+3)}, vcc, {v(vQL+slot3(16))}, {v(vT+3)}, vcc")
        if extra is not None:
            A(f"v_or_b32 {v(vT+3)}, {v(vT+3)}, {v(extra)}")
        A(f"v_cmp_le_u64 vcc, s[{sWIN}:{sWIN+1}], {v(vT+2,2)}")
    A(f"s_mov_b32 s{sT2}, 0")
    if PREPOLL:
        emit(q_batch([5]))
        emit(init_list())
        A("s_branch L_prep_chk")
        A.label("L_prep")
        A(f"s_sleep {SLEEP}")
        A(q_batch([5])[0][0])
        A.label("L_prep_chk")
        A(f"v_mov_b32 {v(vT+3)}, s{sA1}")
        A("s_waitcnt vmcnt(0)")
        stamp_check(None)
        A(f"s_add_u32 s{sT2}, s{sT2}, 1")
        A("s_cbranch_vccz L_pollq_ld")
        A(f"s_cmp_lt_u32 s{sT2}, {SPIN_MAX}")
        A("s_cbranch_scc1 L_prep")
    else:
        emit(q_batch())
        emit(init_list())
        A("s_branch L_pollq_chk")
    A.label("L_pollq")
    A(f"s_sleep {SLEEP}")
    A.label("L_pollq_ld")
    for x in q_batch():
        A(x[0])
    A.label("L_pollq_chk")
    A(f"v_mov_b32 {v(vT+3)}, s{sA1}")
    A("s_waitcnt vmcnt(0)")
    for k in range(5):
        A(f"v_xor_b32 {v(vQL+4*k+3)}, {v(vQL+4*k+3)}, {v(vQL+23)}")
    for k in range(16):
        A(f"v_mov_b32 {v(vKV+k)}, {v(vQL+slot3(k))}")
    A(f"v_or3_b32 {v(vQL+3)}, {v(vQL+3)}, {v(vQL+7)}, {v(vQL+11)}")
    A(f"v_or3_b32 {v(vQL+3)}, {v(vQL+3)}, {v(vQL+15)}, {v(vQL+19)}")
    stamp_check(vQL + 3)
    A(f"s_add_u32 s{sT2}, s{sT2}, 1")
    A("s_cbranch_vccz L_pollq_done")
    A(f"s_cmp_lt_u32 s{sT2}, {SPIN_MAX}")
    A("s_cbranch_scc1 L_pollq")
    A.label("L_pollq_done")
    A(f"v_readfirstlane_b32 s{sNON}, {v(vQL+23)}")
    q_image(vKV)
    pretouch(True)
    A(f"s_mov_b32 s{sST}, {N1-2-ND}")
    A("s_waitcnt lgkmcnt(0)")
    stamp(2)
    A.label("L_nodma")
    body([[] for _ in range(8)], [], "f")
    if MAGREE and SK_IT:
        A(f"s_cmp_eq_u32 s{sIT}, 0")
        A("s_cbranch_scc1 L_loop_end")
        A(f"v_lshrrev_b32 {v(vT+2)}, 2, {v(vL16)}")
        A(f"v_add_u32 {v(vT+2)}, s{sRK}, {v(vT+2)}")
        A(f"ds_write_b32 {v(vT+2)}, {v(vM)}")
        A(f"v_xor_b32 {v(vT+1)}, 4096, {v(vT+2)}")
        A("s_waitcnt lgkmcnt(0)")
        A("s_barrier")
        A(f"ds_read_b32 {v(vMx)}, {v(vT+1)}")
        A("s_waitcnt lgkmcnt(0)")
        A(f"s_call_b64 s[{sM64}:{sM64+1}], L_rescale")
    A("s_branch L_loop_end")

    A.label("L_g2")
    A.vm = []; A.retired = 0
    NB = 5
    vRaw = [88 + 32 * i for i in range(NB)]
    vFr = 36
    vWoff = 68; vXoff = 76
    aXf = [64 + 8 * i for i in range(9)]
    A(f"v_lshlrev_b32 {v(vT)}, 16, {v(vG)}")
    A(f"v_lshl_add_u32 {v(vT)}, {v(vN)}, 4, {v(vT)}")
    for r in range(8):
        A(f"v_add_u32 {v(vWoff+r)}, {r*8192}, {v(vT)}")
    A(f"s_mov_b32 s{sST}, s{sB}")
    A(f"s_mul_i32 s{sQOFF}, s{sKH}, {288*8192}")
    A(f"s_lshl_b32 s{sT1}, s{sKVH}, 9")
    A(f"s_add_u32 s{sQOFF}, s{sQOFF}, s{sT1}")
    A(f"s_lshr_b32 s{sT1}, s{sW}, 1")
    A(f"s_lshl_b32 s{sT1}, s{sT1}, 8")
    A(f"s_add_u32 s{sQOFF}, s{sQOFF}, s{sT1}")
    A(f"s_mul_i32 s{sXOFF}, s{sB}, 36864")
    A(f"s_mul_i32 s{sT1}, s{sW}, 9216")
    A(f"s_add_u32 s{sXOFF}, s{sXOFF}, s{sT1}")
    A(f"s_add_u32 s{sT1}, s{sT1}, {XL}")
    A("s_waitcnt lgkmcnt(0)")
    srd(A, SX, KA+0, KA+1, 8 * 32 * 576 * 2)
    for k in range(9):
        if k % 4 == 0:
            A(f"s_mov_b32 m0, s{sT1}")
            A(f"s_add_u32 s{sT1}, s{sT1}, 4096")
        A.vmem(f"buffer_load_dwordx4 {v(vL16)}, s[{SX}:{SX+3}], s{sXOFF} offen offset:{(k%4)*1024} lds", "x")
        if k % 4 == 3:
            A(f"s_add_u32 s{sXOFF}, s{sXOFF}, 4096")
    srd(A, SWT, KA+6, KA+7, 576 * 4096 * 2)
    def qload(step):
        rb = vRaw[step % NB]
        L = [f"s_lshl_b32 s{sT0}, s{sST}, 18", f"s_add_u32 s{sT0}, s{sT0}, s{sQOFF}"]
        for r in range(8):
            L.append((f"buffer_load_dwordx4 {v(rb+4*r,4)}, {v(vWoff+r)}, s[{SWT}:{SWT+3}], s{sT0} offen", f"q{step}"))
        L += [f"s_add_u32 s{sST}, s{sST}, 1", f"s_cmp_eq_u32 s{sST}, 9", f"s_cselect_b32 s{sST}, 0, s{sST}"]
        return L
    emit(qload(0))
    emit(kv_srds())
    srd(A, SWS, KA+14, KA+15, 1 << 30)
    stamp(0)
    xa = [f"v_mul_u32_u24 {v(vT)}, 1152, {v(vN)}",
          f"v_lshl_add_u32 {v(vT)}, {v(vG)}, 4, {v(vT)}",
          f"v_mov_b32 {v(vT+1)}, s{sKH}",
          f"v_mul_u32_u24 {v(vT+2)}, {16*1152 + 576}, {v(vT+1)}",
          f"v_add3_u32 {v(vXoff)}, {v(vT)}, {v(vT+2)}, s{sK16}",
          f"v_mul_u32_u24 {v(vT+2)}, {16*1152 - 576}, {v(vT+1)}",
          f"v_sub_u32 {v(vXoff+1)}, {v(vT)}, {v(vT+2)}",
          f"v_add_u32 {v(vXoff+1)}, {16*1152 + 16384}, {v(vXoff+1)}"]
    emit(spread(kv_setup() + common_setup() + xa, qload(1) + qload(2)))
    A.wait_vm("x")
    A("s_barrier")
    A(f"s_mov_b32 s{sT1}, s{sB}")
    for step in range(9):
        A(f"s_lshl_b32 s{sT2}, s{sT1}, 6")
        for u in range(2):
            A(f"v_add_u32 {v(vT+u)}, s{sT2}, {v(vXoff+u)}")
            A(f"ds_read_b128 {a(aXf[step]+4*u,4)}, {v(vT+u)} offset:{XL - 16384}")
        A(f"s_add_u32 s{sT1}, s{sT1}, 1"); A(f"s_cmp_eq_u32 s{sT1}, 9"); A(f"s_cselect_b32 s{sT1}, 0, s{sT1}")
        if step == 5:
            A("s_waitcnt lgkmcnt(4)")
    emit(qload(3))
    A("s_waitcnt lgkmcnt(0)")
    A("s_barrier")
    ng = 0
    for step in range(9):
        rb = vRaw[step % NB]
        A.wait_vm(f"q{step}")
        stamp(step, 2)
        comp = []
        for j in range(8):
            for t in range(4):
                sel = sSELH if (j & 1) else sSELL
                comp.append(f"v_perm_b32 {v(vFr+4*j+t)}, {v(rb+4*(2*t+1)+j//2)}, {v(rb+4*(2*t)+j//2)}, s{sel}")
        comp.append("s_nop 1")
        for j in range(8):
            for u in range(2):
                acc = a((u * 8 + j) * 4, 4)
                comp.append(f"{M16} {acc}, {v(vFr+4*j,4)}, {a(aXf[step]+4*u,4)}, {acc if step else 0}")
        nx = []
        if step + 4 < 9:
            nx = qload(step + 4)
        elif ng < NGB:
            nx = dma_list(f"G{ng}", first=(ng == 0)); ng += 1
        emit(spread(comp, nx))
    A(f"s_memrealtime s[{sNON}:{sNON+1}]")
    stamp(1)
    A(f"s_lshl_b32 s{sT2}, s{sW}, 13")
    A(f"s_add_u32 s{sT2}, s{sT2}, {XL}")
    A(f"s_xor_b32 s{sT0}, s{sT2}, 8192")
    A(f"v_add_u32 {v(vT+1)}, s{sT0}, {v(vL16)}")
    A(f"v_add_u32 {v(vT+2)}, s{sT2}, {v(vL16)}")
    A.nop(2)
    for j in range(8):
        A(f"ds_write_b128 {v(vT+1)}, {a((8+j)*4,4)} offset:{j*1024}")
    vDq = 184; vG8 = 216; vC = 152
    for k in range(32):
        A(f"v_accvgpr_read_b32 {v(vDq+k)}, {a(k)}")
    if GX:
        emit(dma_list(f"G{ng}")); ng += 1
    A("s_waitcnt lgkmcnt(0)")
    A("s_barrier")
    for j in range(8):
        A(f"ds_read_b128 {v(vFr+4*j,4)}, {v(vT+2)} offset:{j*1024}")
    A(f"s_lshl_b32 s{sT0}, s{sPR}, 2")
    A(f"s_add_u32 s{sT0}, s{sT0}, s{sW}")
    A(f"s_mul_i32 s{sT0}, s{sT0}, 6144")
    A(f"s_add_u32 s{sT1}, s{sT0}, 4096")
    for k in range(6):
        A(f"v_mov_b32 {v(vG8+4*k+3)}, s{sNON}")
    A(f"v_mov_b32 {v(vG8+slot3(16))}, s{sNON+1}")
    A(f"v_mov_b32 {v(vG8+slot3(17))}, 0")
    A("s_waitcnt lgkmcnt(0)")
    for k in range(0, 32, 2):
        A(f"v_pk_add_f32 {v(vDq+k,2)}, {v(vDq+k,2)}, {v(vFr+k,2)}")
    for i in range(4):
        for t in range(4):
            q = 4 * i + t
            A(f"v_cvt_pk_bf16_f32 {v(vG8+slot3(q))}, {v(vDq+4*(2*t)+i)}, {v(vDq+4*(2*t+1)+i)}")
            if q % 3 == 2 or q == 15:
                k = q // 3
                A.vmem(f"buffer_store_dwordx4 {v(vG8+4*k,4)}, {v(vL16)}, s[{SWS}:{SWS+3}], s{sT0 if k < 4 else sT1} offen offset:{(k%4)*1024} sc1", "qs")
    stamp(6)
    for k in range(16):
        A(f"v_mov_b32 {v(vC+k)}, {v(vG8+slot3(k))}")
    mid = []
    while ng < 3:
        mid += dma_list(f"G{ng}", first=(ng == 0)); ng += 1
    q_image(vC, mid)
    emit(spread(init_list(), dma_list("G3")))
    A(f"s_mov_b32 s{sST}, 1000")
    srd(A, SX, KA+10, KA+11, 8 * 32 * 576 * 2)
    pretouch(False)
    A("s_waitcnt lgkmcnt(0)")
    stamp(2)

    A.label("L_loop")
    if SK_IT:
        A(f"s_cmp_gt_u32 s{sIT}, {SK_IT}")
        A("s_cbranch_scc0 L_w24")
        A("s_waitcnt vmcnt(16)")
        A.label("L_w24")
    A("s_waitcnt vmcnt(24)")
    A("s_barrier")
    if SK_IT:
        A(f"s_cmp_eq_u32 s{sIT}, {SK_IT}")
        A("s_cbranch_scc1 L_nodma")
    dl = dma_list()
    body([dl[0:3], [dl[3]], [dl[4]], dl[5:9], [dl[10]], [dl[11]], [dl[12]], [dl[13]]], dl[14:], "m")
    A.label("L_loop_end")
    A(f"s_cmp_eq_u32 s{sIT}, s{sST}")
    A("s_cbranch_scc1 L_special")
    A.label("L_special_ret")
    A(f"s_add_u32 s{sIT}, s{sIT}, 1")
    A(f"s_add_u32 s{sT0}, s{sIT}, {ND}")
    A(f"s_cmp_lt_u32 s{sT0}, s{sN}")
    A("s_cbranch_scc1 L_loop")

    for p in range(4):
        A(f"v_add_u32 {v(vKoff+p)}, {128*1152 - 16384}, {v(vKoff+p)}")
    A(f"s_lshl_b32 s{sQOFF}, s{sPR}, 2")
    A(f"s_add_u32 s{sQOFF}, s{sQOFF}, s{sW}")
    A(f"s_mul_i32 s{sQOFF}, s{sQOFF}, 6144")
    A(f"s_add_u32 s{sQOFF}, s{sQOFF}, {OB}")
    A(f"s_cmp_lt_u32 s2, 128")
    A(f"s_cselect_b32 s{sST}, {OOB:#x}, s{sQOFF}")
    A(f"s_add_u32 s{sMV}, s{sST}, 4096")
    A(f"s_add_u32 s{sOFFc}, s{sST}, 8192")
    def orec1(op, k, regs):
        return f"{op} {v(vR+4*k,4)}, {v(vL16)}, s[{SWS}:{SWS+3}], s{regs[k//4]} offen offset:{(k%4)*1024} sc1"
    RL = (sST, sMV, sOFFc)
    A.vm = [f"D{g_}" for g_ in range(3 - ND, 4) for _ in range(8)]; A.retired = 0
    for d in range(3 - ND, 3):
        A.wait_vm(f"D{d}")
        A("s_barrier")
        mem = [[] for _ in range(8)]
        if d == 3 - ND:
            b8 = dma_list("b8", first=True)
            mem[0] = b8[0:3]; mem[1] = [b8[3]]; mem[2] = [b8[4]]; mem[3] = [b8[5]]
        if d == RAT:
            for k in range(6):
                mem[min(7, k)].append((orec1("buffer_load_dwordx4", k, RL), "rec"))
        body(mem, [f"s_add_u32 s{sIT}, s{sIT}, 1"], f"d{d}")

    def slot_after(dst, src):
        A(f"s_add_u32 s{dst}, s{src}, 16384")
        A(f"s_cmp_ge_u32 s{dst}, {VRING}")
        A(f"s_cselect_b32 s{dst}, 0, s{dst}")
    A(f"s_sub_u32 s{sRK}, s{sRK}, s{sM0B}")
    slot_after(sA0, sRK)
    slot_after(sA1, sA0)
    slot_after(sMK, sA1)
    slot_after(sLIM, sMK)
    A(f"s_lshl_b32 s{sT0}, s{sW}, 9")
    A(f"s_add_u32 s{sT0}, s{sT0}, s{sMK}")
    A(f"s_add_u32 s{sT0}, s{sT0}, {VRING}")
    A(f"v_lshrrev_b32 {v(vT+2)}, 2, {v(vL16)}")
    A(f"v_add_u32 {v(vT+2)}, s{sT0}, {v(vT+2)}")
    A(f"ds_write_b32 {v(vT+2)}, {v(vM)}")
    A(f"v_xor_b32 {v(vT+1)}, 512, {v(vT+2)}")
    A("s_waitcnt lgkmcnt(0)")
    A("s_barrier")
    A(f"ds_read_b32 {v(vMx)}, {v(vT+1)}")
    A(f"s_cmp_lt_u32 s{sW}, 2")
    A(f"s_cselect_b32 s{sT1}, s{sA0}, s{sA1}")
    A(f"s_lshl_b32 s{sT2}, s{sKH}, 13")
    A(f"s_add_u32 s{sT1}, s{sT1}, s{sT2}")
    A(f"s_xor_b32 s{sT2}, s{sT1}, 8192")
    A(f"v_add_u32 {v(vT+3)}, s{sT2}, {v(vL16)}")
    A(f"v_add_u32 {v(vX+2)}, s{sT1}, {v(vL16)}")
    A(f"v_and_b32 {v(vX)}, 1, {v(vG)}")
    A(f"v_lshlrev_b32 {v(vX)}, 12, {v(vX)}")
    A(f"v_lshrrev_b32 {v(vX+1)}, 1, {v(vG)}")
    A(f"v_lshl_add_u32 {v(vX)}, {v(vX+1)}, 8, {v(vX)}")
    A(f"v_lshl_add_u32 {v(vX)}, {v(vN)}, 4, {v(vX)}")
    A(f"s_lshr_b32 s{sT0}, s{sW}, 1")
    A(f"s_lshl_b32 s{sT0}, s{sT0}, 13")
    A(f"s_lshl_b32 s{sT1}, s{sKH}, 11")
    A(f"s_add_u32 s{sT0}, s{sT0}, s{sT1}")
    A(f"s_add_u32 s{sT0}, s{sT0}, s{sMK}")
    A(f"v_add_u32 {v(vX)}, s{sT0}, {v(vX)}")
    A("s_waitcnt lgkmcnt(0)")
    A(f"v_cmp_gt_f32 vcc, {v(vMx)}, {v(vM)}")
    A("s_cbranch_vccz L_magreed")
    A(f"s_call_b64 s[{sM64}:{sM64+1}], L_rescale")
    A.label("L_magreed")
    emit(fmas)
    emit(expcvt())
    A.nop(1)
    A(lm(0)); A(lm(1))
    if RAT == 3:
        for k in range(6):
            A.vmem(orec1("buffer_load_dwordx4", k, RL), "rec")
    A.nop(8)
    A(f"ds_write_b32 {v(vT+2)}, {v(vLa)} offset:256")
    A("s_waitcnt lgkmcnt(0)")
    A.wait_vm("b8")
    A("s_barrier")
    stamp(3)
    for f in range(7):
        emit(vread(f))
    A("s_waitcnt lgkmcnt(10)")
    A(pvm(0)); A(pvm(1))
    emit(vread(7))
    A(f"ds_read_b32 {v(vT)}, {v(vT+1)} offset:256")
    A("s_waitcnt lgkmcnt(9)")
    A(pvm(2)); A(pvm(3))
    A("s_waitcnt lgkmcnt(5)")
    A(pvm(4)); A(pvm(5))
    A("s_waitcnt lgkmcnt(0)")
    A(pvm(6)); A(pvm(7))
    vL1 = vX + 3
    A(f"v_add_f32 {v(vL1)}, {v(vLa)}, {v(vT)}")
    A.nop(5)
    for k in range(8):
        A(f"ds_write_b128 {v(vT+3)}, {v(vO+32+4*k,4)} offset:{k*1024}")
    A(f"s_cmp_lt_u32 s2, 128")
    A("s_cbranch_scc1 L_g2_tail")

    A(f"s_mov_b32 s{sT2}, 0")
    A("s_branch L_pollo_chk")
    A.label("L_pollo")
    A(f"s_sleep {SLEEP}")
    for k in range(6):
        A(orec1("buffer_load_dwordx4", k, RL))
    A.label("L_pollo_chk")
    A(f"v_mov_b32 {v(vT)}, s{sNON}")
    A("s_waitcnt vmcnt(0)")
    for k in range(6):
        A(f"v_xor_b32 {v(vR+4*k+3)}, {v(vR+4*k+3)}, {v(vT)}")
    A(f"v_or3_b32 {v(vR+3)}, {v(vR+3)}, {v(vR+7)}, {v(vR+11)}")
    A(f"v_or3_b32 {v(vR+15)}, {v(vR+15)}, {v(vR+19)}, {v(vR+23)}")
    A(f"v_or_b32 {v(vR+3)}, {v(vR+3)}, {v(vR+15)}")
    A(f"v_cmp_ne_u32 vcc, 0, {v(vR+3)}")
    A(f"s_add_u32 s{sT2}, s{sT2}, 1")
    A("s_cbranch_vccz L_pollo_done")
    A(f"s_cmp_lt_u32 s{sT2}, {SPIN_MAX}")
    A("s_cbranch_scc1 L_pollo")
    A.label("L_pollo_done")
    A("s_waitcnt lgkmcnt(0)")
    A("s_barrier")
    if not DBG:
        stamp(11)
    for k in range(8):
        A(f"ds_read_b128 {v(vO+32+4*k,4)}, {v(vX+2)} offset:{k*1024}")
    A(f"v_max_f32 {v(vMx)}, {v(vM)}, {v(vR+slot3(16))}")
    A(f"v_mul_f32 {v(vMc)}, s{sC}, {v(vMx)}")
    A(f"v_fma_f32 {v(vAl)}, {v(vM)}, s{sC}, -{v(vMc)}")
    A(f"v_fma_f32 {v(vBe)}, {v(vR+slot3(16))}, s{sC}, -{v(vMc)}")
    A(f"v_exp_f32 {v(vAl)}, {v(vAl)}")
    A(f"v_exp_f32 {v(vBe)}, {v(vBe)}")
    A.nop(1)
    A(f"v_mul_f32 {v(vT)}, {v(vBe)}, {v(vR+slot3(17))}")
    A(f"v_fma_f32 {v(vT)}, {v(vAl)}, {v(vL1)}, {v(vT)}")
    A(f"v_rcp_f32 {v(vT)}, {v(vT)}")
    vU = vSo
    for k in range(16):
        A(f"v_and_b32 {v(vU+2*k+1)}, 0xffff0000, {v(vR+slot3(k))}")
        A(f"v_lshlrev_b32 {v(vU+2*k)}, 16, {v(vR+slot3(k))}")
    A(f"v_mul_f32 {v(vAl)}, {v(vAl)}, {v(vT)}")
    A(f"v_mul_f32 {v(vBe)}, {v(vBe)}, {v(vT)}")
    A("s_waitcnt lgkmcnt(0)")
    for c in range(4):
        for k in range(4 * c, 4 * c + 4):
            A(f"v_pk_add_f32 {v(vO+2*k,2)}, {v(vO+2*k,2)}, {v(vO+32+2*k,2)}")
            A(f"v_pk_mul_f32 {v(vU+2*k,2)}, {v(vU+2*k,2)}, {v(vAl,2)} op_sel:[0,1] op_sel_hi:[1,1]")
            A(f"v_pk_fma_f32 {v(vO+2*k,2)}, {v(vO+2*k,2)}, {v(vAl,2)}, {v(vU+2*k,2)} op_sel_hi:[1,0,1]")
            A(f"v_cvt_pk_bf16_f32 {v(vX+4+k)}, {v(vO+2*k)}, {v(vO+2*k+1)}")
        A(f"ds_write_b128 {v(vX)}, {v(vX+4+4*c,4)} offset:{(c>>1)*1024 + (c&1)*512}")
    vB8 = 216
    A(f"v_lshrrev_b32 {v(vT)}, 1, {v(vG)}")
    A(f"v_lshlrev_b32 {v(vT)}, 2, {v(vT)}")
    A(f"v_and_b32 {v(vT+1)}, 1, {v(vG)}")
    A(f"v_add_u32 {v(vT)}, {v(vT)}, {v(vT+1)}")
    A(f"v_lshrrev_b32 {v(vT+1)}, 2, {v(vN)}")
    A(f"v_lshl_add_u32 {v(vT)}, {v(vT)}, 2, {v(vT+1)}")
    A(f"v_and_b32 {v(vT+1)}, 3, {v(vN)}")
    A(f"v_lshlrev_b32 {v(vT+1)}, 3, {v(vT+1)}")
    A(f"v_lshl_add_u32 {v(vT)}, {v(vT)}, 7, {v(vT+1)}")
    A(f"s_lshl_b32 s{sT1}, s{sW}, 5")
    A(f"s_add_u32 s{sT2}, s{sT1}, s{sRK}")
    A(f"s_add_u32 s{sT1}, s{sT1}, s{sLIM}")
    A(f"v_add_u32 {v(vT+1)}, s{sT2}, {v(vT)}")
    A(f"v_add_u32 {v(vT)}, s{sT1}, {v(vT)}")
    A(f"v_add_u32 {v(vT+2)}, s{sMK}, {v(vL16)}")
    A(f"s_and_b32 s{sT2}, s2, 15")
    A(f"s_lshl_b32 s{sT0}, s{sB}, 4")
    A(f"s_add_u32 s{sT0}, s{sT0}, s{sT2}")
    A(f"s_mul_i32 s{sT0}, s{sT0}, 36864")
    A(f"s_mul_i32 s{sT1}, s{sW}, 9216")
    A(f"s_add_u32 s{sT0}, s{sT0}, s{sT1}")
    A(f"s_add_u32 s{sT0}, s{sT0}, {PY}")
    A("s_waitcnt lgkmcnt(0)")
    A("s_barrier")
    stamp(4)
    def wfr(ks, j):
        return a(32 * ks + 4 * j, 4) if j < 8 else v(vB8 + 4 * ks, 4)
    def acc(rh, j):
        return 144 + 4 * (rh * 9 + j)
    def ofr(rh, ks):
        return v(vQf + 4 * ks, 4) if rh == 0 else v(vO + 4 * ks, 4)
    vPk = 120
    b8r = [f"ds_read_b64_tr_b16 {v(vB8+4*ks+2*u,2)}, {v(vT+(ks>>2))} offset:{(32*(ks&3)+8*u)*128}" for ks in range(8) for u in range(2)]
    o0 = [f"ds_read_b128 {ofr(0,ks)}, {v(vT+2)} offset:{(((ks>>2)*2+0)*4+(ks&3))*1024}" for ks in range(8)]
    o1 = [f"ds_read_b128 {ofr(1,ks)}, {v(vT+2)} offset:{(((ks>>2)*2+1)*4+(ks&3))*1024}" for ks in range(8)]
    for ks in range(4):
        A(o0[ks]); A(b8r[2*ks]); A(b8r[2*ks+1])
    for ks in range(8):
        A(f"s_waitcnt lgkmcnt({9 if ks < 5 else 9})")
        nxt = [o0[ks+4], b8r[2*(ks+4)], b8r[2*(ks+4)+1]] if ks < 4 else [o1[2*(ks-4)], o1[2*(ks-4)+1], o1[2*(ks-4)+1]]
        for j in range(9):
            d = v(acc(0, j), 4)
            A(f"{M16} {d}, {ofr(0,ks)}, {wfr(ks,j)}, {d if ks else 0}")
            if j < 3:
                A(nxt[j])
    A("s_waitcnt lgkmcnt(0)")
    def pack_store(rh):
        L = []
        for i in range(4):
            d = vPk + 4 * i
            for q in range(4):
                L.append(f"v_cvt_pk_bf16_f32 {v(d+q)}, {v(acc(rh,2*q)+i)}, {v(acc(rh,2*q+1)+i)}")
            L.append(f"buffer_store_dwordx4 {v(d,4)}, {v(vL16)}, s[{SWS}:{SWS+3}], s{sT0} offen offset:{i*1024} sc1")
        L.append(f"s_add_u32 s{sT0}, s{sT0}, 4096")
        for q in range(2):
            L.append(f"v_cvt_pk_bf16_f32 {v(136+2*rh+q)}, {v(acc(rh,8)+2*q)}, {v(acc(rh,8)+2*q+1)}")
        return L
    m1 = []
    for ks in range(8):
        for j in range(9):
            d = v(acc(1, j), 4)
            m1.append(f"{M16} {d}, {ofr(1,ks)}, {wfr(ks,j)}, {d if ks else 0}")
    misc = [f"s_lshl_b32 s{sT1}, s{sB}, 13",
            f"s_lshl_b32 s{sQOFF}, s{sW}, 7",
            f"s_add_u32 s{sT1}, s{sT1}, s{sQOFF}",
            f"s_lshl_b32 s{sQOFF}, s{sT2}, 3",
            f"s_add_u32 s{sT1}, s{sT1}, s{sQOFF}",
            f"s_add_u32 s{sT1}, s{sT1}, {FY}",
            f"v_lshlrev_b32 {v(vT)}, 9, {v(vN)}",
            f"s_memrealtime s[{sNON}:{sNON+1}]"]
    emit(m1[:10])
    emit(weave(m1[10:], pack_store(0) + misc, 1))
    stamp(5)
    A.nop(8)
    emit(pack_store(1))
    A(f"buffer_store_dwordx4 {v(136,4)}, {v(vL16)}, s[{SWS}:{SWS+3}], s{sT0} offen sc1")
    stamp(7)
    A("s_waitcnt lgkmcnt(0)")
    A(f"v_mov_b32 {v(vT+2)}, s{sNON}")
    A(f"v_mov_b32 {v(vT+3)}, s{sNON+1}")
    A("s_waitcnt vmcnt(0)")
    A("s_mov_b64 exec, 0xffff")
    A(f"buffer_store_dwordx2 {v(vT+2,2)}, {v(vT)}, s[{SWS}:{SWS+3}], s{sT1} offen sc1")
    A("s_mov_b64 exec, -1")
    stamp(8)
    A("s_branch L_fin")

    A.label("L_g2_tail")
    A("s_waitcnt vmcnt(0)")
    for k in range(6):
        A(f"v_mov_b32 {v(vR+4*k+3)}, s{sNON}")
    A(f"v_mov_b32 {v(vR+slot3(16))}, {v(vM)}")
    A(f"v_mov_b32 {v(vR+slot3(17))}, {v(vL1)}")
    A(f"s_add_u32 s{sMV}, s{sQOFF}, 4096")
    A(f"s_add_u32 s{sOFFc}, s{sQOFF}, 8192")
    RS = (sQOFF, sMV, sOFFc)
    A("s_waitcnt lgkmcnt(0)")
    A("s_barrier")
    for k in range(8):
        A(f"ds_read_b128 {v(vO+32+4*k,4)}, {v(vX+2)} offset:{k*1024}")
    for k in range(8):
        A(f"s_waitcnt lgkmcnt({7-k})")
        for z in range(2):
            A(f"v_pk_add_f32 {v(vO+4*k+2*z,2)}, {v(vO+4*k+2*z,2)}, {v(vO+32+4*k+2*z,2)}")
        for z in range(2):
            q = 2 * k + z
            A(f"v_cvt_pk_bf16_f32 {v(vR+slot3(q))}, {v(vO+4*k+2*z)}, {v(vO+4*k+2*z+1)}")
            if q % 3 == 2 or q == 15:
                A(orec1("buffer_store_dwordx4", q // 3, RS))
    stamp(4)
    sJ = sST
    srd(A, SX, KA+10, KA+11, 8 * 32 * 576 * 2)
    A(f"s_and_b32 s{sJ}, s2, 15")
    vSA = vQf
    A(f"v_and_b32 {v(vT)}, 1, {v(vN)}")
    A(f"v_lshlrev_b32 {v(vT)}, 4, {v(vT)}")
    A(f"v_mov_b32 {v(vT+1)}, 0x3f80")
    A(f"v_lshlrev_b32 {v(vT+1)}, {v(vT)}, {v(vT+1)}")
    A(f"v_lshrrev_b32 {v(vT)}, 1, {v(vN)}")
    for t in range(4):
        A(f"v_cmp_eq_u32 vcc, {t}, {v(vT)}")
        A.nop(2)
        A(f"v_cndmask_b32 {v(vSA+t)}, 0, {v(vT+1)}, vcc")
    A(f"s_lshl_b32 s{sT0}, s{sB}, 4")
    A(f"s_add_u32 s{sT0}, s{sT0}, s{sJ}")
    A(f"s_lshl_b32 s{sT0}, s{sT0}, 2")
    A(f"s_add_u32 s{sT0}, s{sT0}, s{sW}")
    A(f"s_lshl_b32 s{sT0}, s{sT0}, 7")
    A(f"s_add_u32 s{sQOFF}, s{sT0}, {FY}")
    A(f"v_lshlrev_b32 {v(vT+1)}, 3, {v(vN)}")
    A(f"v_mul_u32_u24 {v(vT)}, 36864, {v(vG)}")
    A(f"v_lshl_add_u32 {v(vT)}, {v(vN)}, 4, {v(vT)}")
    A(f"s_mul_i32 s{sT0}, s{sB}, {16*36864}")
    A(f"s_mul_i32 s{sT1}, s{sW}, 9216")
    A(f"s_add_u32 s{sT0}, s{sT0}, s{sT1}")
    A(f"s_add_u32 s{sT0}, s{sT0}, {PY}")
    A(f"s_lshl_b32 s{sT1}, s{sJ}, 8")
    A(f"s_add_u32 s{sXOFF}, s{sT0}, s{sT1}")
    A(f"s_add_u32 s{sXOFF}, s{sXOFF}, 8192")
    A(f"s_lshl_b32 s{sT1}, s{sJ}, 9")
    A(f"s_add_u32 s{sT0}, s{sT0}, s{sT1}")
    A(f"s_lshr_b32 s{sT1}, s{sJ}, 3")
    A(f"s_lshl_b32 s{sT1}, s{sT1}, 4")
    A(f"s_and_b32 s{sT2}, s{sJ}, 1")
    A(f"s_lshl_b32 s{sT2}, s{sT2}, 3")
    A(f"s_add_u32 s{sT1}, s{sT1}, s{sT2}")
    A(f"s_bfe_u32 s{sT2}, s{sJ}, 0x20001")
    A(f"s_add_u32 s{sT1}, s{sT1}, s{sT2}")
    A(f"s_lshl_b32 s{sT2}, s{sB}, 5")
    A(f"s_add_u32 s{sT1}, s{sT1}, s{sT2}")
    A(f"s_mul_i32 s{sT1}, s{sT1}, 1152")
    A(f"s_lshl_b32 s{sT2}, s{sW}, 8")
    A(f"s_add_u32 s{sT1}, s{sT1}, s{sT2}")
    A(f"s_add_u32 s{sOFF}, s{sT1}, {4*1152}")
    A(f"v_lshlrev_b32 {v(vMx)}, 4, {v(vN)}")
    A(f"v_lshl_add_u32 {v(vMx)}, {v(vG)}, 3, {v(vMx)}")
    A(f"s_mov_b32 s{sT2}, 0")
    A("s_branch L_polly_ld")
    A.label("L_polly")
    A(f"s_sleep {SLEEPY}")
    A.label("L_polly_ld")
    A(f"buffer_load_dwordx2 {v(vT+2,2)}, {v(vT+1)}, s[{SWS}:{SWS+3}], s{sQOFF} offen sc1")
    A(f"v_mov_b32 {v(vBe)}, s{sTIM+1}")
    A("s_waitcnt vmcnt(0)")
    A(f"v_subrev_co_u32 {v(vAl)}, vcc, s{sTIM}, {v(vT+2)}")
    A(f"v_subb_co_u32 {v(vBe)}, vcc, {v(vT+3)}, {v(vBe)}, vcc")
    A(f"v_cmp_le_u64 vcc, s[{sWIN}:{sWIN+1}], {v(vAl,2)}")
    A(f"s_add_u32 s{sT2}, s{sT2}, 1")
    A("s_cbranch_vccz L_polly_done")
    A(f"s_cmp_lt_u32 s{sT2}, {SPIN_MAX}")
    A("s_cbranch_scc1 L_polly")
    A.label("L_polly_done")
    stamp(9)
    vRR = vO
    for k in range(4):
        A(f"buffer_load_dwordx4 {v(vRR+4*k,4)}, {v(vT)}, s[{SWS}:{SWS+3}], s{sT0} offen sc1")
        A(f"buffer_load_dwordx4 {v(vRR+16+4*k,4)}, {v(vT)}, s[{SWS}:{SWS+3}], s{sT0} offen offset:256 sc1")
        A(f"s_add_u32 s{sT0}, s{sT0}, {4*36864}")
    A(f"s_cmp_lt_u32 s{sJ}, 4")
    A("s_cbranch_scc0 L_no_extra_ld")
    for k in range(4):
        A(f"buffer_load_dwordx4 {v(vRR+32+4*k,4)}, {v(vT)}, s[{SWS}:{SWS+3}], s{sXOFF} offen sc1")
        A(f"s_add_u32 s{sXOFF}, s{sXOFF}, {4*36864}")
    A.label("L_no_extra_ld")
    A("s_waitcnt vmcnt(0)")
    vS = vSo
    for k in range(4):
        for u in range(2):
            A(f"{M16} {v(vS+4*u,4)}, {v(vSA,4)}, {v(vRR+16*u+4*k,4)}, {v(vS+4*u,4) if k else 0}")
    A.nop(8)
    for u in range(2):
        A(f"v_cvt_pk_bf16_f32 {v(vSn+2*u)}, {v(vS+4*u)}, {v(vS+4*u+1)}")
        A(f"v_cvt_pk_bf16_f32 {v(vSn+2*u+1)}, {v(vS+4*u+2)}, {v(vS+4*u+3)}")
    A("s_mov_b32 exec_hi, 0")
    A(f"buffer_store_dwordx2 {v(vSn,2)}, {v(vMx)}, s[{SX}:{SX+3}], s{sT1} offen{POLO}")
    A(f"buffer_store_dwordx2 {v(vSn+2,2)}, {v(vMx)}, s[{SX}:{SX+3}], s{sOFF} offen{POLO}")
    A(f"s_mov_b64 exec, -1")
    A(f"s_cmp_lt_u32 s{sJ}, 4")
    A("s_cbranch_scc0 L_fin")
    for k in range(4):
        A(f"{M16} {v(vS+8,4)}, {v(vSA,4)}, {v(vRR+32+4*k,4)}, {v(vS+8,4) if k else 0}")
    A(f"s_lshl_b32 s{sT0}, s{sJ}, 2")
    A(f"s_lshl_b32 s{sT1}, s{sB}, 5")
    A(f"s_add_u32 s{sT0}, s{sT0}, s{sT1}")
    A(f"s_mul_i32 s{sT0}, s{sT0}, 1152")
    A(f"s_lshl_b32 s{sT1}, s{sW}, 5")
    A(f"s_add_u32 s{sT0}, s{sT0}, s{sT1}")
    A(f"s_add_u32 s{sT0}, s{sT0}, 1024")
    A(f"v_lshlrev_b32 {v(vT)}, 1, {v(vN)}")
    A(f"v_mul_u32_u24 {v(vT+1)}, {16*1152}, {v(vG)}")
    A(f"v_add_u32 {v(vT)}, {v(vT)}, {v(vT+1)}")
    A.nop(4)
    A(f"v_cvt_pk_bf16_f32 {v(vS+12)}, {v(vS+8)}, {v(vS+9)}")
    A(f"v_cvt_pk_bf16_f32 {v(vS+13)}, {v(vS+10)}, {v(vS+11)}")
    A("s_mov_b32 exec_hi, 0")
    A(f"buffer_store_short {v(vS+12)}, {v(vT)}, s[{SX}:{SX+3}], s{sT0} offen{POLO}")
    A(f"buffer_store_short_d16_hi {v(vS+12)}, {v(vT)}, s[{SX}:{SX+3}], s{sT0} offen offset:1152{POLO}")
    A(f"buffer_store_short {v(vS+13)}, {v(vT)}, s[{SX}:{SX+3}], s{sT0} offen offset:2304{POLO}")
    A(f"buffer_store_short_d16_hi {v(vS+13)}, {v(vT)}, s[{SX}:{SX+3}], s{sT0} offen offset:3456{POLO}")
    A(f"s_mov_b64 exec, -1")
    A.label("L_fin")
    if STAMPS:
        A("s_waitcnt vmcnt(0)")
        if not DBG:
            stamp(10)
        if DBG:
            A("s_memtime s[76:77]")
            A("s_waitcnt lgkmcnt(0)")
            A(f"s_and_b32 s{sT0}, s2, 127")
            A(f"s_lshl_b32 s{sT0}, s{sT0}, 2")
            A(f"s_add_u32 s{sT0}, s{sT0}, s{sW}")
            A(f"s_cmp_eq_u32 s{sT0}, 20")
            A("s_cbranch_scc0 L_end")
            srd(A, SX, KA+12, KA+13, 256)
            A(f"s_lshr_b32 s{sT0}, s2, 7")
            A(f"s_lshl_b32 s{sT0}, s{sT0}, 5")
            A(f"s_cmp_lt_u32 s2, 128")
            A(f"s_cselect_b32 s72, s74, s72")
            A(f"v_mov_b32 {v(vT)}, 0")
            A("s_mov_b64 exec, 1")
            A("s_memrealtime s[74:75]")
            A("s_waitcnt lgkmcnt(0)")
            for i, src in enumerate([56, 58, 60, 62, 64, 72, 74]):
                A(f"s_sub_u32 s{sT1}, s{src}, s{sTIM}")
                A(f"v_mov_b32 {v(vT+2)}, s{sT1}")
                A(f"buffer_store_dword {v(vT+2)}, {v(vT)}, s[{SX}:{SX+3}], s{sT0} offen offset:{4*i}")
                A.nop(2)
            A(f"s_sub_u32 s{sT1}, s76, s78")
            A(f"v_mov_b32 {v(vT+2)}, s{sT1}")
            A(f"buffer_store_dword {v(vT+2)}, {v(vT)}, s[{SX}:{SX+3}], s{sT0} offen offset:28")
            A("s_endpgm")
        A(f"s_lshl_b32 s{sT0}, s2, 2")
        A(f"s_add_u32 s{sT0}, s{sT0}, s{sW}")
        A(f"s_lshl_b32 s{sT1}, s{sT0}, 8")
        A(f"s_lshl_b32 s{sT0}, s{sT0}, 7")
        A(f"s_add_u32 s{sT0}, s{sT0}, {STAMP_BASE}")
        A(f"s_add_u32 s{sT1}, s{sT1}, {STAMP_BASE + (1 << 20)}")
        A(f"v_lshlrev_b32 {v(vT)}, 2, {v(vLane)}")
        A(f"buffer_store_dword v255, {v(vT)}, s[{SWS}:{SWS+3}], s{sT1} offen")
        A.nop(2)
        A(f"v_mov_b32 {v(vT)}, 0")
        A("s_mov_b64 exec, 1")
        for i in range(13):
            src = 56 + 2 * i if i < 12 else sTIM
            A(f"v_mov_b32 {v(vT+2)}, s{src}")
            A(f"v_mov_b32 {v(vT+3)}, s{src+1}")
            A(f"buffer_store_dwordx2 {v(vT+2,2)}, {v(vT)}, s[{SWS}:{SWS+3}], s{sT0} offen offset:{8*i}")
            A.nop(2)
    A.label("L_end")
    A("s_endpgm")

    A.label("L_rescale")
    A(f"v_max_f32 {v(vMx)}, {v(vMx)}, {v(vM)}")
    A(f"v_mul_f32 {v(vMc)}, s{sC}, {v(vMx)}")
    A(f"v_fma_f32 {v(vAl)}, {v(vM)}, s{sC}, -{v(vMc)}")
    A(f"v_exp_f32 {v(vAl)}, {v(vAl)}")
    A(f"v_mov_b32 {v(vM)}, {v(vMx)}")
    A.nop(8)
    for k in list(range(32, 64, 2)) + list(range(0, 32, 2)):
        A(f"v_pk_mul_f32 {v(vO+k,2)}, {v(vO+k,2)}, {v(vAl,2)} op_sel_hi:[1,0]")
    for k in range(0, 4, 2):
        A(f"v_pk_mul_f32 {v(vLa+k,2)}, {v(vLa+k,2)}, {v(vAl,2)} op_sel_hi:[1,0]")
    A(f"s_setpc_b64 s[{sM64}:{sM64+1}]")

    A.label("L_special")
    A(f"s_add_u32 s{sT0}, s{sXOFF}, 1024")
    A(f"s_add_u32 s{SK}, s{KA+8}, s{sT0}")
    A(f"s_addc_u32 s{SK+1}, s{KA+9}, 0")
    A(f"s_sub_u32 s{SK}, s{SK}, {N1*16384}")
    A(f"s_subb_u32 s{SK+1}, s{SK+1}, 0")
    A(f"s_and_b32 s{SK+1}, s{SK+1}, 0xffff")
    A(f"s_mov_b32 s{SK+2}, {N1*16384 + 256*1152 - 1024}")
    A(f"v_lshrrev_b32 {v(vT)}, 3, {v(vLane)}")
    A(f"v_mul_u32_u24 {v(vT)}, 1152, {v(vT)}")
    A(f"v_and_b32 {v(vT+1)}, 7, {v(vLane)}")
    A(f"v_lshl_add_u32 {v(vT)}, {v(vT+1)}, 4, {v(vT)}")
    A(f"s_mul_i32 s{sT0}, s{sW}, {36864 - 4096}")
    for p in range(4):
        A(f"v_add_u32 {v(vKoff+p)}, s{sT0}, {v(vT)}")
        A(f"s_add_u32 s{sT0}, s{sT0}, {9216 - 1024}")
    A("s_branch L_special_ret")
    A.label("L_code_end")
    return A.text()

def main():
    k = gen()
    out = f"""; generated by gen14.py
; @launch grid=(256,1,1) block=(256,1,1) lds=163840
.amdgcn_target "amdgcn-amd-amdhsa--gfx950"
.text
"""
    out += kernel_head(NAME) + k
    out += '.section .rodata,"a"\n.p2align 6\n'
    out += kernel_desc(NAME, 512, 256, 102)
    open(sys.argv[1], "w").write(out)

main()
```

```python
import sys, struct
from asmlib import *

NAME = "standalone__sliding_block_cached__sampling_kernel"
OPTS = set(sys.argv[2:])
STAMPS = "stamps" in OPTS
def opt(name, default):
    for o in OPTS:
        if o.startswith(name + "="):
            return int(o.split("=")[1])
    return default
N1 = opt("n1", 17)
N2 = 32 - N1
SLEEP = opt("sleep", 1)
SLEEPY = opt("sleepy", 1)
PROF = opt("prof", 0)
THR = 8.0
POLK = " nt" if opt("polk", 1) else ""
POLV = " nt" if opt("polv", 1) else ""
XSWAP = opt("xswap", 1)
CODEWARM = opt("codewarm", 2)
MAGREE = opt("magree", 1)
GX = opt("gx", 0)
PREPOLL = opt("prepoll", 0)
DBG = opt("dbg", 0)
LATE = opt("late", -1)
EPOCH = opt("epoch", 1)
POLO = {0: "", 1: " sc1", 2: " nt", 3: " sc0 sc1"}[opt("polo", 0)]
QAT = opt("qat", 8)
PT = opt("pt", 0)
CWN = opt("cwn", 256)
SK_IT = opt("skip", 6)
NGB = opt("ngb", 2)
RAT = opt("rat", 2)

ND = 2 if SK_IT else 3

def slot3(k):
    return 4 * (k // 3) + k % 3

def f32bits(x):
    return struct.unpack("<I", struct.pack("<f", x))[0]

SCALE_C = (128 ** -0.5) * 1.4426950408889634
QB = 0
OB = 4 << 20
FY = 13 << 20
PY = 16 << 20
STAMP_BASE = 64 << 20
SPIN_MAX = 1 << 20
VRING = 81920
OOB = 0x7ff00000
M32 = "v_mfma_f32_32x32x16_bf16"
M16 = "v_mfma_f32_16x16x32_bf16"

def srd(A, d, lo, hi, nbytes):
    A(f"s_mov_b32 s{d}, s{lo}")
    A(f"s_and_b32 s{d+1}, s{hi}, 0xffff")
    A(f"s_mov_b32 s{d+2}, {nbytes:#x}")
    A(f"s_mov_b32 s{d+3}, 0x20000")

def weave(main, fill, per):
    out = []; fill = list(fill)
    for m in main:
        out.append(m)
        for _ in range(per):
            if fill:
                out.append(fill.pop(0))
    return out + fill

def spread(main, fill):
    out = []; n, k = len(main), len(fill); fi = 0
    for i, m in enumerate(main):
        out.append(m)
        while fi < k and (fi + 1) * n <= (i + 1) * k:
            out.append(fill[fi]); fi += 1
    return out + list(fill[fi:])

def gen():
    A = Asm()
    def emit(lst):
        for x in lst:
            if isinstance(x, tuple):
                A.vmem(x[0], x[1])
            else:
                A(x)
    def stamp(i, mode=0):
        if STAMPS and mode == PROF:
            assert i < 12
            A(f"s_memrealtime s[{56+2*i}:{57+2*i}]")
            A("s_waitcnt lgkmcnt(0)")
    SK, SV, SX, SWT, SWS = 4, 8, 12, 16, 20
    sWIN = 24
    sA0, sA1 = 26, 27
    sNON = 28
    sTIM = 30
    (sW, sKVH, sB, sPR, sOFF, sOFFc, sRK, sMK, sMV, sC, sSELL, sSELH, sT0, sT1, sT2, sLIM, sDK,
     sQOFF, sXOFF, sM0B, sST, sN, sIT, sSLOT) = range(32, 56)
    sM64, sTHR, sK16, sDV, sKH = 96, 98, 99, 100, 101
    KA = 80
    vL16, vVoff, vM = 1, 2, 3
    vKoff, vT, vKa, vVa = 4, 8, 12, 20
    vMc, vMx, vAl, vBe = 24, 25, 26, 27
    vSel, vLa, vQf = 28, 32, 36
    vX = 68
    vO, vSo, vSn, vKV = 88, 152, 168, 184
    vR = 216
    vLane, vG, vN = 252, 253, 254
    vP = vSo
    XL = 65536
    QIMG = VRING + 16384

    A("s_cmp_ge_u32 s2, 256")
    A("s_cbranch_scc1 L_end")
    if LATE >= 0:
        A(f"s_cmp_eq_u32 s2, {LATE}")
        A("s_cbranch_scc0 L_notlate")
        for _ in range(16):
            A("s_sleep 127")
        A.label("L_notlate")
    A(f"s_load_dwordx16 s[{KA}:{KA+15}], s[0:1], 0")
    A(f"s_memrealtime s[{sTIM}:{sTIM+1}]")
    if DBG:
        A("s_memtime s[78:79]")
    if CODEWARM == 2:
        A(f"s_cmp_lt_u32 s2, {CWN}")
        A("s_cbranch_scc0 L_nocw")
        for x in [f"s_getpc_b64 s[{sT0}:{sT0+1}]", "L_pc:", f"s_sub_u32 s{sT0}, s{sT0}, L_pc-{NAME}", f"s_subb_u32 s{sT1}, s{sT1}, 0",
                  f"v_lshlrev_b32 {v(vT+1)}, 7, v0",
                  f"v_min_u32 {v(vT+1)}, L_code_end-{NAME}-4, {v(vT+1)}",
                  f"global_load_dword {v(vMx)}, {v(vT+1)}, s[{sT0}:{sT0+1}]"]:
            A(x)
        A.label("L_nocw")
    if XSWAP:
        A("s_lshr_b32 s3, s2, 7")
        A("s_xor_b32 s2, s2, s3")
    A(f"v_lshrrev_b32 {v(vT)}, 6, v0")
    A(f"v_and_b32 {v(vLane)}, 63, v0")
    A(f"v_readfirstlane_b32 s{sW}, {v(vT)}")
    A(f"v_lshrrev_b32 {v(vG)}, 4, {v(vLane)}")
    A(f"v_and_b32 {v(vN)}, 15, {v(vLane)}")
    A(f"s_and_b32 s{sKVH}, s2, 7")
    A(f"s_lshl_b32 s{sKVH}, s{sKVH}, 1")
    A(f"s_bfe_u32 s{sB}, s2, 0x10003")
    A(f"s_add_u32 s{sKVH}, s{sKVH}, s{sB}")
    A(f"s_bfe_u32 s{sB}, s2, 0x30004")
    A(f"s_and_b32 s{sPR}, s2, 127")
    A(f"s_lshl_b32 s{sT0}, s{sB}, 25")
    A(f"s_lshl_b32 s{sT1}, s{sKVH}, 21")
    A(f"s_add_u32 s{sT0}, s{sT0}, s{sT1}")
    A(f"s_add_u32 s{sT0}, s{sT0}, {6144*256}")
    A(f"s_add_u32 s{sT1}, s{sT0}, {N1*16384}")
    A(f"s_cmp_ge_u32 s2, 128")
    A(f"s_cselect_b32 s{sT2}, s{sT0}, s{sT1}")
    A(f"s_cselect_b32 s{sN}, {N1}, {N2}")
    A(f"s_lshl_b32 s{sM0B}, s{sW}, 12")
    A(f"s_add_u32 s{sLIM}, s{sM0B}, {VRING}")
    A(f"s_and_b32 s{sKH}, s{sW}, 1")
    A(f"v_lshlrev_b32 {v(vL16)}, 4, {v(vLane)}")

    def kv_setup():
        L = []
        for p in range(4):
            L += [f"v_or_b32 {v(vT)}, {4*p}, {v(vG)}", f"v_xor_b32 {v(vT)}, {v(vT)}, {v(vN)}",
                  f"v_lshlrev_b32 {v(vT)}, 4, {v(vT)}", f"v_lshl_add_u32 {v(vKoff+p)}, {v(vG)}, 8, {v(vT)}"]
        L += [f"v_lshlrev_b32 {v(vT)}, 2, {v(vG)}", f"v_xor_b32 {v(vT)}, {v(vT)}, {v(vN)}",
              f"v_lshlrev_b32 {v(vT)}, 4, {v(vT)}", f"v_lshl_add_u32 {v(vVoff)}, {v(vG)}, 8, {v(vT)}"]
        return L
    def kv_srds():
        return [f"s_add_u32 s{SK}, s{KA+2}, s{sT2}", f"s_addc_u32 s{SK+1}, s{KA+3}, 0", f"s_and_b32 s{SK+1}, s{SK+1}, 0xffff",
                f"s_lshl_b32 s{SK+2}, s{sN}, 14", f"s_mov_b32 s{SK+3}, 0x20000",
                f"s_sub_u32 s{sT2}, s{sT2}, 16384",
                f"s_add_u32 s{SV}, s{KA+4}, s{sT2}", f"s_addc_u32 s{SV+1}, s{KA+5}, 0", f"s_and_b32 s{SV+1}, s{SV+1}, 0xffff",
                f"s_add_u32 s{SV+2}, s{SK+2}, 16384", f"s_mov_b32 s{SV+3}, 0x20000",
                f"s_mov_b32 s{sOFF}, s{sM0B}", f"s_mov_b32 s{sRK}, s{sM0B}"]
    def dma_list(tag=None, first=False):
        L = [f"s_mov_b32 m0, s{sRK}", f"s_add_u32 s{sMK}, s{sRK}, 16384"]
        for p in range(4):
            ln = f"buffer_load_dwordx4 {v(vKoff+p)}, s[{SK}:{SK+3}], s{sOFF} offen offset:{p*1024}{POLK} lds"
            L.append((ln, tag) if tag else ln)
        L += [f"s_cmp_ge_u32 s{sMK}, s{sLIM}", f"s_cselect_b32 s{sRK}, s{sM0B}, s{sMK}", f"s_add_u32 m0, s{sRK}, {VRING}", "s_nop 0"]
        for p in range(0 if first else 4):
            ln = f"buffer_load_dwordx4 {v(vVoff)}, s[{SV}:{SV+3}], s{sOFF} offen offset:{p*1024}{POLV} lds"
            L.append((ln, tag) if tag else ln)
        L += [f"s_add_u32 s{sOFF}, s{sOFF}, 16384"]
        return L
    def common_setup():
        L = [f"s_mov_b32 s{sC}, {f32bits(SCALE_C):#x}", f"s_mov_b32 s{sTHR}, {f32bits(THR / SCALE_C):#x}",
             f"s_mov_b32 s{sSELL}, 0x05040100", f"s_mov_b32 s{sSELH}, 0x07060302", f"s_mov_b32 s{sK16}, 16384",
             f"s_mov_b32 s{sWIN}, 0x1000000", f"s_mov_b32 s{sWIN+1}, 0"]
        L += [f"v_and_b32 {v(vT)}, 31, {v(vLane)}",
              f"v_lshlrev_b32 {v(vT)}, 8, {v(vT)}",
              f"v_mov_b32 {v(vT+1)}, s{sKH}",
              f"v_lshl_add_u32 {v(vT)}, {v(vT+1)}, 13, {v(vT)}",
              f"v_lshrrev_b32 {v(vT+2)}, 5, {v(vLane)}",
              f"v_xor_b32 {v(vT+2)}, {v(vT+2)}, {v(vN)}"]
        for s_ in range(8):
            L += [f"v_xor_b32 {v(vT+3)}, {2*s_}, {v(vT+2)}",
                  f"v_lshl_add_u32 {v(vKa+s_)}, {v(vT+3)}, 4, {v(vT)}"]
        L += [f"v_lshrrev_b32 {v(vT+2)}, 2, {v(vN)}",
              f"v_lshrrev_b32 {v(vT)}, 5, {v(vLane)}",
              f"v_lshl_add_u32 {v(vT)}, {v(vT)}, 2, {v(vT+2)}",
              f"v_lshlrev_b32 {v(vT)}, 8, {v(vT)}",
              f"v_lshl_add_u32 {v(vT)}, {v(vT+1)}, 13, {v(vT)}",
              f"v_and_b32 {v(vT+3)}, 3, {v(vN)}",
              f"v_lshl_add_u32 {v(vT)}, {v(vT+3)}, 3, {v(vT)}",
              f"v_and_b32 {v(vT+3)}, 1, {v(vG)}",
              f"v_lshl_add_u32 {v(vT)}, {v(vT+3)}, 5, {v(vT)}",
              f"v_add_u32 {v(vT)}, {QIMG}, {v(vT)}",
              f"v_lshlrev_b32 {v(vT+1)}, 1, {v(vT+1)}",
              f"v_xor_b32 {v(vT+2)}, {v(vT+2)}, {v(vT+1)}"]
        for D in range(4):
            L += [f"v_xor_b32 {v(vT+3)}, {D}, {v(vT+2)}",
                  f"v_lshl_add_u32 {v(vVa+D)}, {v(vT+3)}, 6, {v(vT)}"]
        L += [f"v_lshrrev_b32 {v(vT)}, 2, {v(vN)}",
              f"v_xor_b32 {v(vT)}, {v(vT)}, {v(vG)}",
              f"v_and_b32 {v(vT)}, 1, {v(vT)}",
              f"v_add_u32 {v(vT)}, -1, {v(vT)}",
              f"v_and_b32 {v(vSel)}, 0x3f803f80, {v(vT)}",
              f"v_mov_b32 {v(vSel+1)}, {v(vSel)}", f"v_mov_b32 {v(vSel+2)}, {v(vSel)}", f"v_mov_b32 {v(vSel+3)}, {v(vSel)}"]
        return L
    def init_list():
        L = [f"v_mov_b32 {v(vO+k)}, 0" for k in range(64)] + [f"v_mov_b32 {v(vLa+k)}, 0" for k in range(4)]
        L += [f"v_mov_b32 {v(vM)}, 0xff800000", f"v_mov_b32 {v(vMc)}, 0"] + [f"v_mov_b32 {v(vSn+k)}, 0xff800000" for k in range(16)]
        L += [f"s_mov_b32 s{sSLOT}, 1", f"s_mov_b32 s{sIT}, 0", f"s_mov_b32 s{sDK}, 16384"]
        return L
    def q_image(vC, mid=()):
        A(f"v_lshlrev_b32 {v(vT+2)}, 4, {v(vN)}")
        A(f"v_lshl_add_u32 {v(vT+2)}, {v(vG)}, 11, {v(vT+2)}")
        A(f"s_lshr_b32 s{sT1}, s{sW}, 1")
        A(f"s_lshl_b32 s{sT1}, s{sT1}, 13")
        A(f"s_add_u32 s{sT1}, s{sT1}, {QIMG}")
        A(f"s_lshl_b32 s{sT2}, s{sKH}, 8")
        A(f"s_add_u32 s{sT2}, s{sT2}, s{sT1}")
        A(f"v_add_u32 {v(vT+2)}, s{sT2}, {v(vT+2)}")
        for i in range(4):
            A(f"ds_write_b128 {v(vT+2)}, {v(vC+4*i,4)} offset:{(i>>1)*1024 + (i&1)*512}")
        A(f"v_add_u32 {v(vT+3)}, s{sT1}, {v(vL16)}")
        emit(mid)
        A("s_waitcnt lgkmcnt(0)")
        A("s_barrier")
        for s_ in range(8):
            A(f"ds_read_b128 {v(vQf+4*s_,4)}, {v(vT+3)} offset:{s_*1024}")

    def pretouch(g1):
        if not PT:
            return
        A(f"v_mul_u32_u24 {v(vT)}, 36864, {v(vN)}")
        A(f"s_mul_i32 s{sT0}, s{sB}, {16*36864}")
        A(f"s_mul_i32 s{sT1}, s{sW}, 9216")
        A(f"s_add_u32 s{sT0}, s{sT0}, s{sT1}")
        A(f"s_add_u32 s{sT0}, s{sT0}, {PY}")
        A(f"v_add_u32 {v(vT)}, s{sT0}, {v(vT)}")
        A(f"s_lshl_b32 s{sT0}, s{sPR}, 2")
        A(f"s_add_u32 s{sT0}, s{sT0}, s{sW}")
        A(f"s_mul_i32 s{sT0}, s{sT0}, 9216")
        A(f"s_add_u32 s{sT0}, s{sT0}, {OB}")
        A(f"v_writelane_b32 {v(vT)}, s{sT0}, 16")
        A(f"s_add_u32 s{sT0}, s{sT0}, 8192")
        A(f"v_writelane_b32 {v(vT)}, s{sT0}, 17")
        A(f"s_lshl_b32 s{sT0}, s{sB}, 13")
        A(f"s_add_u32 s{sT0}, s{sT0}, {FY}")
        A(f"v_writelane_b32 {v(vT)}, s{sT0}, 18")
        A(f"s_add_u32 s{sT0}, s{sT0}, 4096")
        A(f"v_writelane_b32 {v(vT)}, s{sT0}, 19")
        A.vmem(f"buffer_load_dword {v(vX+18)}, {v(vT)}, s[{SWS}:{SWS+3}], 0 offen sc1", "pt")
        if not g1:
            A(f"v_lshlrev_b32 {v(vT)}, 12, {v(vN)}")
            A(f"s_mul_i32 s{sT0}, s{sB}, 36864")
            A.vmem(f"buffer_load_dword {v(vX+19)}, {v(vT)}, s[{SX}:{SX+3}], s{sT0} offen", "pt")

    SDB = KA + 12
    def epoch_register(lab):
        A(f"s_and_b32 s{SDB+1}, s{SDB+1}, 0xffff")
        A(f"s_mov_b32 s{SDB+2}, 256")
        A(f"s_mov_b32 s{SDB+3}, 0x20000")
        if not EPOCH:
            return
        A(f"s_cmp_eq_u32 s{sW}, 3")
        A(f"s_cbranch_scc0 L_noep{lab}")
        A(f"s_not_b64 s[{sT0}:{sT0+1}], s[{sTIM}:{sTIM+1}]")
        A(f"v_mov_b32 {v(vT)}, s{sT0}")
        A(f"v_mov_b32 {v(vT+1)}, s{sT1}")
        A(f"s_lshl_b32 s{sT0}, s{sB}, 5")
        A("s_mov_b64 exec, 1")
        A(f"buffer_atomic_umax_x2 {v(vT,2)}, off, s[{SDB}:{SDB+3}], s{sT0} sc1")
        A("s_mov_b64 exec, -1")
        A.label(f"L_noep{lab}")
    def epoch_lower(lo, cnt, tmpv, lab):
        if not EPOCH:
            return
        A(f"s_and_b32 s{sM64}, s{cnt}, 63")
        A(f"s_cbranch_scc1 L_noel{lab}")
        A(f"s_lshl_b32 s{sM64}, s{sB}, 5")
        A(f"buffer_load_dwordx2 {v(tmpv,2)}, off, s[{SDB}:{SDB+3}], s{sM64} sc1")
        A("s_waitcnt vmcnt(0)")
        A(f"v_readfirstlane_b32 s{sM64}, {v(tmpv)}")
        A(f"v_readfirstlane_b32 s{sM64+1}, {v(tmpv+1)}")
        A.nop(2)
        A(f"s_not_b64 s[{sM64}:{sM64+1}], s[{sM64}:{sM64+1}]")
        A(f"s_sub_u32 s3, s{sM64}, s{lo}")
        A(f"s_subb_u32 s3, s{sM64+1}, s{lo+1}")
        A(f"s_cselect_b64 s[{lo}:{lo+1}], s[{sM64}:{sM64+1}], s[{lo}:{lo+1}]")
        A.label(f"L_noel{lab}")

    fmas = [f"v_fma_f32 {v(vSo+k)}, {v(vSn+k)}, s{sC}, -{v(vMc)}" for k in range(16)]
    def expcvt():
        L = []
        for k in range(16):
            L.append(f"v_exp_f32 {v(vSo+k)}, {v(vSo+k)}")
            if k >= 3 and k % 2 == 1:
                q = (k - 3) // 2
                L.append(f"v_cvt_pk_bf16_f32 {v(vP+q)}, {v(vSo+2*q)}, {v(vSo+2*q+1)}")
        L.append("s_nop 0")
        L.append(f"v_cvt_pk_bf16_f32 {v(vP+7)}, {v(vSo+14)}, {v(vSo+15)}")
        return L
    pvo = [(2, 0), (3, 0), (2, 1), (3, 1), (0, 0), (1, 0), (0, 1), (1, 1)]
    def vread(f):
        D, t = pvo[f]
        return [f"ds_read_b64_tr_b16 {v(vKV+4*f+2*u,2)}, {v(vVa+D)} offset:{(16*t+8*u)*256}" for u in range(2)]
    def pvm(f):
        D, t = pvo[f]
        return f"{M32} {v(vO+16*D,16)}, {v(vKV+4*f,4)}, {v(vP+4*t,4)}, {v(vO+16*D,16)}"
    def lm(t):
        return f"{M16} {v(vLa,4)}, {v(vSel,4)}, {v(vP+4*t,4)}, {v(vLa,4)}"
    def body(mem, tail_salu, lab):
        if STAMPS and PROF == 0:
            A("s_memrealtime s[96:97]")
            A("s_waitcnt lgkmcnt(0)")
            A(f"s_mov_b32 m0, s{sIT}")
            A("s_nop 0")
            A(f"v_writelane_b32 v255, s96, m0")
        emit([f"ds_read_b128 {v(vKV+4*s_,4)}, {v(vKa+s_)}" for s_ in range(8)])
        emit(mem[0])
        emit(fmas)
        A(f"s_add_u32 s{sSLOT}, s{sSLOT}, 1")
        A(f"s_cmp_ge_u32 s{sSLOT}, 5")
        A(f"s_cselect_b32 s{sDV}, {(-4*16384) & 0xffffffff:#x}, s{sK16}")
        A(f"s_cselect_b32 s{sSLOT}, 0, s{sSLOT}")
        ec = expcvt()
        per = [3, 3, 3, 3, 3, 3, 4, 3]
        for s_ in range(8):
            A(f"s_waitcnt lgkmcnt({7 + s_})")
            A(f"{M32} {v(vSn,16)}, {v(vKV+4*s_,4)}, {v(vQf+4*s_,4)}, {v(vSn,16) if s_ else 0}")
            emit(vread(s_) if s_ < 7 else [])
            for _ in range(per[s_]):
                A(ec.pop(0))
            if s_ == 3:
                emit(mem[1])
        A("s_waitcnt lgkmcnt(12)")
        emit(vread(7))
        kadds = [f"v_add_u32 {v(vKa+k)}, s{sDK}, {v(vKa+k)}" for k in range(8)]
        vadds = [f"v_add_u32 {v(vVa+k)}, s{sDV}, {v(vVa+k)}" for k in range(4)]
        mx = [f"v_max3_f32 {v(vMx)}, {v(vSn)}, {v(vSn+1)}, {v(vSn+2)}", f"v_max3_f32 {v(vT)}, {v(vSn+3)}, {v(vSn+4)}, {v(vSn+5)}",
              f"v_max3_f32 {v(vMx)}, {v(vMx)}, {v(vSn+6)}, {v(vSn+7)}", f"v_max3_f32 {v(vT)}, {v(vT)}, {v(vSn+8)}, {v(vSn+9)}",
              f"v_max3_f32 {v(vMx)}, {v(vMx)}, {v(vSn+10)}, {v(vSn+11)}", f"v_max3_f32 {v(vT)}, {v(vT)}, {v(vSn+12)}, {v(vSn+13)}",
              f"v_max3_f32 {v(vMx)}, {v(vMx)}, {v(vSn+14)}, {v(vSn+15)}", f"v_max_f32 {v(vMx)}, {v(vMx)}, {v(vT)}"]
        gaps = [
            mem[2] + kadds[:3],
            kadds[3:8],
            mem[3] + vadds[:2],
            vadds[2:] + mx[:3],
            mem[4] + mx[3:6],
            mx[6:] + [f"v_mov_b32 {v(vT)}, {v(vMx)}"] + mem[5] + [f"s_mov_b32 s{sDK}, s{sDV}"],
            [f"v_permlane32_swap_b32 {v(vMx)}, {v(vT)}"] + mem[6] + ["s_nop 0", f"v_max_f32 {v(vMx)}, {v(vMx)}, {v(vT)}", f"v_sub_f32 {v(vT)}, {v(vMx)}, {v(vM)}"],
            mem[7] + [f"v_cmp_lt_f32 vcc, s{sTHR}, {v(vT)}"],
        ]
        for f in range(8):
            if f in (1, 3, 5, 7):
                A(f"s_waitcnt lgkmcnt({max(0, 16 - 2 * (f + 2))})")
            A(pvm(f))
            emit(gaps[f])
        A(lm(0)); A(lm(1))
        emit(tail_salu)
        A(f"s_cbranch_vccz L_nors{lab}")
        A(f"s_call_b64 s[{sM64}:{sM64+1}], L_rescale")
        A.label(f"L_nors{lab}")

    A(f"s_cmp_lt_u32 s2, 128")
    A("s_cbranch_scc1 L_g2")

    emit(kv_setup())
    A(f"s_mul_i32 s{sXOFF}, s{sKVH}, {256*1152}")
    A(f"s_mul_i32 s{sT0}, s{sB}, 36864")
    A(f"s_mul_i32 s{sT1}, s{sW}, 9216")
    A(f"s_add_u32 s{sT0}, s{sT0}, s{sT1}")
    A(f"s_add_u32 s{sT0}, s{sT0}, s{sXOFF}")
    A(f"v_lshlrev_b32 {v(vT)}, 7, {v(vLane)}")
    A("s_waitcnt lgkmcnt(0)")
    srd(A, SWT, KA+8, KA+9, 576 * 4096 * 2)
    A.vmem(f"buffer_load_dword {v(vAl)}, {v(vT)}, s[{SWT}:{SWT+3}], s{sT0} offen", "pw")
    A.vmem(f"buffer_load_dword {v(vBe)}, {v(vT)}, s[{SWT}:{SWT+3}], s{sT0} offen offset:1024", "pw")
    emit(kv_srds())
    emit(dma_list("G", first=True))
    emit(dma_list("G"))
    srd(A, SWS, KA+14, KA+15, 1 << 30)
    epoch_register("a")
    emit(common_setup())
    if CODEWARM == 1:
        A(f"s_cmp_eq_u32 s{sB}, 0")
        A("s_cbranch_scc0 L_nocw")
        for x in [f"s_getpc_b64 s[{sT0}:{sT0+1}]", "L_pc:", f"s_sub_u32 s{sT0}, s{sT0}, L_pc-{NAME}", f"s_subb_u32 s{sT1}, s{sT1}, 0",
                  f"v_mov_b32 {v(vT+1)}, s{sW}", f"v_lshlrev_b32 {v(vT+1)}, 13, {v(vT+1)}", f"v_lshl_add_u32 {v(vT+1)}, {v(vLane)}, 7, {v(vT+1)}",
                  f"v_min_u32 {v(vT+1)}, L_code_end-{NAME}-4, {v(vT+1)}",
                  f"global_load_dword {v(vMx)}, {v(vT+1)}, s[{sT0}:{sT0+1}]"]:
            A(x)
        A.label("L_nocw")
    vWm, vTmp = 68, 72
    A(f"v_lshrrev_b32 {v(vT)}, 1, {v(vG)}")
    A(f"v_lshlrev_b32 {v(vT)}, 2, {v(vT)}")
    A(f"v_and_b32 {v(vT+1)}, 1, {v(vG)}")
    A(f"v_add_u32 {v(vT)}, {v(vT)}, {v(vT+1)}")
    A(f"v_mul_u32_u24 {v(vT)}, {4*1152}, {v(vT)}")
    A(f"s_lshl_b32 s{sT0}, s{sW}, 8")
    A(f"v_lshl_add_u32 {v(vWm)}, {v(vN)}, 4, {v(vT)}")
    A(f"v_add_u32 {v(vWm)}, s{sT0}, {v(vWm)}")
    A(f"v_add_u32 {v(vWm+1)}, {8*1152}, {v(vWm)}")
    for g_ in range(2, 5):
        emit(dma_list("G"))
    stamp(0)
    rawat = [88 + 32 * (k % 5) for k in range(8)]
    def wo_issue(k):
        T = rawat[k]
        L = [f"s_add_u32 s{sT2}, s{sXOFF}, {k*32*1152}"]
        for e in range(8):
            L.append((f"buffer_load_dwordx4 {v(T+4*e,4)}, {v(vWm+(e>>2))}, s[{SWT}:{SWT+3}], s{sT2} offen offset:{(e&3)*1152}", f"w{k}"))
        return L
    def wo_transpose(k):
        T = rawat[k]
        L = []; cnt = 0
        for j in range(8):
            for t in range(4):
                tmp = vTmp + (cnt % 8); cnt += 1
                L.append(f"v_perm_b32 {v(tmp)}, {v(T+4*(2*t+1)+j//2)}, {v(T+4*(2*t)+j//2)}, s{sSELH if (j & 1) else sSELL}")
                L.append(f"v_accvgpr_write_b32 {a(32*k+4*j+t)}, {v(tmp)}")
        return L
    A(f"s_lshl_b32 s{sT0}, s{sPR}, 2")
    A(f"s_add_u32 s{sT0}, s{sT0}, s{sW}")
    A(f"s_mul_i32 s{sST}, s{sT0}, 6144")
    A(f"s_add_u32 s{sQOFF}, s{sST}, 4096")
    A(f"s_sub_u32 s{sA0}, s{sTIM}, 500")
    A(f"s_subb_u32 s{sA1}, s{sTIM+1}, 0")
    vQL = 36
    def q_batch(ks=range(6)):
        L = []
        for k in ks:
            L.append((f"buffer_load_dwordx4 {v(vQL+4*k,4)}, {v(vL16)}, s[{SWS}:{SWS+3}], s{sST if k < 4 else sQOFF} offen offset:{(k%4)*1024} sc1", "qb"))
        return L
    emit(wo_issue(0))
    emit(wo_issue(1))
    A("s_waitcnt vmcnt(40)"); A.retired = len(A.vm) - 40
    emit(wo_issue(2))
    emit(wo_issue(3))
    for k in range(8):
        A.wait_vm(f"w{k}")
        stamp(k, 2)
        nx = wo_issue(k + 4) if k + 4 < 8 else []
        emit(spread(wo_transpose(k), nx))
    stamp(1)
    def stamp_check(extra):
        A(f"v_subrev_co_u32 {v(vT+2)}, vcc, s{sA0}, {v(vQL+23)}")
        A(f"v_subb_co_u32 {v(vT+3)}, vcc, {v(vQL+slot3(16))}, {v(vT+3)}, vcc")
        if extra is not None:
            A(f"v_or_b32 {v(vT+3)}, {v(vT+3)}, {v(extra)}")
        A(f"v_cmp_le_u64 vcc, s[{sWIN}:{sWIN+1}], {v(vT+2,2)}")
    A(f"s_mov_b32 s{sT2}, 0")
    if PREPOLL:
        emit(q_batch([5]))
        emit(init_list())
        A("s_branch L_prep_chk")
        A.label("L_prep")
        A(f"s_sleep {SLEEP}")
        A(q_batch([5])[0][0])
        A.label("L_prep_chk")
        A(f"v_mov_b32 {v(vT+3)}, s{sA1}")
        A("s_waitcnt vmcnt(0)")
        stamp_check(None)
        A(f"s_add_u32 s{sT2}, s{sT2}, 1")
        A("s_cbranch_vccz L_pollq_ld")
        A(f"s_cmp_lt_u32 s{sT2}, {SPIN_MAX}")
        A("s_cbranch_scc1 L_prep")
    else:
        emit(q_batch())
        emit(init_list())
        A("s_branch L_pollq_chk")
    A.label("L_pollq")
    A(f"s_sleep {SLEEP}")
    epoch_lower(sA0, sT2, vT, "q")
    A.label("L_pollq_ld")
    for x in q_batch():
        A(x[0])
    A.label("L_pollq_chk")
    A(f"v_mov_b32 {v(vT+3)}, s{sA1}")
    A("s_waitcnt vmcnt(0)")
    for k in range(5):
        A(f"v_xor_b32 {v(vQL+4*k+3)}, {v(vQL+4*k+3)}, {v(vQL+23)}")
    for k in range(16):
        A(f"v_mov_b32 {v(vKV+k)}, {v(vQL+slot3(k))}")
    A(f"v_or3_b32 {v(vQL+3)}, {v(vQL+3)}, {v(vQL+7)}, {v(vQL+11)}")
    A(f"v_or3_b32 {v(vQL+3)}, {v(vQL+3)}, {v(vQL+15)}, {v(vQL+19)}")
    stamp_check(vQL + 3)
    A(f"s_add_u32 s{sT2}, s{sT2}, 1")
    A("s_cbranch_vccz L_pollq_done")
    A(f"s_cmp_lt_u32 s{sT2}, {SPIN_MAX}")
    A("s_cbranch_scc1 L_pollq")
    A.label("L_pollq_done")
    A(f"v_readfirstlane_b32 s{sNON}, {v(vQL+23)}")
    q_image(vKV)
    pretouch(True)
    A(f"s_mov_b32 s{sST}, {N1-2-ND}")
    A("s_waitcnt lgkmcnt(0)")
    stamp(2)
    A.label("L_nodma")
    body([[] for _ in range(8)], [], "f")
    if MAGREE and SK_IT:
        A(f"s_cmp_eq_u32 s{sIT}, 0")
        A("s_cbranch_scc1 L_loop_end")
        A(f"v_lshrrev_b32 {v(vT+2)}, 2, {v(vL16)}")
        A(f"v_add_u32 {v(vT+2)}, s{sRK}, {v(vT+2)}")
        A(f"ds_write_b32 {v(vT+2)}, {v(vM)}")
        A(f"v_xor_b32 {v(vT+1)}, 4096, {v(vT+2)}")
        A("s_waitcnt lgkmcnt(0)")
        A("s_barrier")
        A(f"ds_read_b32 {v(vMx)}, {v(vT+1)}")
        A("s_waitcnt lgkmcnt(0)")
        A(f"s_call_b64 s[{sM64}:{sM64+1}], L_rescale")
    A("s_branch L_loop_end")

    A.label("L_g2")
    A.vm = []; A.retired = 0
    NB = 5
    vRaw = [88 + 32 * i for i in range(NB)]
    vFr = 36
    vWoff = 68; vXoff = 76
    aXf = [64 + 8 * i for i in range(9)]
    A(f"v_lshlrev_b32 {v(vT)}, 16, {v(vG)}")
    A(f"v_lshl_add_u32 {v(vT)}, {v(vN)}, 4, {v(vT)}")
    for r in range(8):
        A(f"v_add_u32 {v(vWoff+r)}, {r*8192}, {v(vT)}")
    A(f"s_mov_b32 s{sST}, s{sB}")
    A(f"s_mul_i32 s{sQOFF}, s{sKH}, {288*8192}")
    A(f"s_lshl_b32 s{sT1}, s{sKVH}, 9")
    A(f"s_add_u32 s{sQOFF}, s{sQOFF}, s{sT1}")
    A(f"s_lshr_b32 s{sT1}, s{sW}, 1")
    A(f"s_lshl_b32 s{sT1}, s{sT1}, 8")
    A(f"s_add_u32 s{sQOFF}, s{sQOFF}, s{sT1}")
    A(f"s_mul_i32 s{sXOFF}, s{sB}, 36864")
    A(f"s_mul_i32 s{sT1}, s{sW}, 9216")
    A(f"s_add_u32 s{sXOFF}, s{sXOFF}, s{sT1}")
    A(f"s_add_u32 s{sT1}, s{sT1}, {XL}")
    A("s_waitcnt lgkmcnt(0)")
    srd(A, SX, KA+0, KA+1, 8 * 32 * 576 * 2)
    for k in range(9):
        if k % 4 == 0:
            A(f"s_mov_b32 m0, s{sT1}")
            A(f"s_add_u32 s{sT1}, s{sT1}, 4096")
        A.vmem(f"buffer_load_dwordx4 {v(vL16)}, s[{SX}:{SX+3}], s{sXOFF} offen offset:{(k%4)*1024} lds", "x")
        if k % 4 == 3:
            A(f"s_add_u32 s{sXOFF}, s{sXOFF}, 4096")
    srd(A, SWT, KA+6, KA+7, 576 * 4096 * 2)
    def qload(step):
        rb = vRaw[step % NB]
        L = [f"s_lshl_b32 s{sT0}, s{sST}, 18", f"s_add_u32 s{sT0}, s{sT0}, s{sQOFF}"]
        for r in range(8):
            L.append((f"buffer_load_dwordx4 {v(rb+4*r,4)}, {v(vWoff+r)}, s[{SWT}:{SWT+3}], s{sT0} offen", f"q{step}"))
        L += [f"s_add_u32 s{sST}, s{sST}, 1", f"s_cmp_eq_u32 s{sST}, 9", f"s_cselect_b32 s{sST}, 0, s{sST}"]
        return L
    emit(qload(0))
    emit(kv_srds())
    srd(A, SWS, KA+14, KA+15, 1 << 30)
    stamp(0)
    xa = [f"v_mul_u32_u24 {v(vT)}, 1152, {v(vN)}",
          f"v_lshl_add_u32 {v(vT)}, {v(vG)}, 4, {v(vT)}",
          f"v_mov_b32 {v(vT+1)}, s{sKH}",
          f"v_mul_u32_u24 {v(vT+2)}, {16*1152 + 576}, {v(vT+1)}",
          f"v_add3_u32 {v(vXoff)}, {v(vT)}, {v(vT+2)}, s{sK16}",
          f"v_mul_u32_u24 {v(vT+2)}, {16*1152 - 576}, {v(vT+1)}",
          f"v_sub_u32 {v(vXoff+1)}, {v(vT)}, {v(vT+2)}",
          f"v_add_u32 {v(vXoff+1)}, {16*1152 + 16384}, {v(vXoff+1)}"]
    emit(spread(kv_setup() + common_setup() + xa, qload(1) + qload(2)))
    A.wait_vm("x")
    A("s_barrier")
    A(f"s_mov_b32 s{sT1}, s{sB}")
    for step in range(9):
        A(f"s_lshl_b32 s{sT2}, s{sT1}, 6")
        for u in range(2):
            A(f"v_add_u32 {v(vT+u)}, s{sT2}, {v(vXoff+u)}")
            A(f"ds_read_b128 {a(aXf[step]+4*u,4)}, {v(vT+u)} offset:{XL - 16384}")
        A(f"s_add_u32 s{sT1}, s{sT1}, 1"); A(f"s_cmp_eq_u32 s{sT1}, 9"); A(f"s_cselect_b32 s{sT1}, 0, s{sT1}")
        if step == 5:
            A("s_waitcnt lgkmcnt(4)")
    emit(qload(3))
    A("s_waitcnt lgkmcnt(0)")
    A("s_barrier")
    ng = 0
    for step in range(9):
        rb = vRaw[step % NB]
        A.wait_vm(f"q{step}")
        stamp(step, 2)
        comp = []
        for j in range(8):
            for t in range(4):
                sel = sSELH if (j & 1) else sSELL
                comp.append(f"v_perm_b32 {v(vFr+4*j+t)}, {v(rb+4*(2*t+1)+j//2)}, {v(rb+4*(2*t)+j//2)}, s{sel}")
        comp.append("s_nop 1")
        for j in range(8):
            for u in range(2):
                acc = a((u * 8 + j) * 4, 4)
                comp.append(f"{M16} {acc}, {v(vFr+4*j,4)}, {a(aXf[step]+4*u,4)}, {acc if step else 0}")
        nx = []
        if step + 4 < 9:
            nx = qload(step + 4)
        elif ng < NGB:
            nx = dma_list(f"G{ng}", first=(ng == 0)); ng += 1
        emit(spread(comp, nx))
    A(f"s_memrealtime s[{sNON}:{sNON+1}]")
    stamp(1)
    A(f"s_lshl_b32 s{sT2}, s{sW}, 13")
    A(f"s_add_u32 s{sT2}, s{sT2}, {XL}")
    A(f"s_xor_b32 s{sT0}, s{sT2}, 8192")
    A(f"v_add_u32 {v(vT+1)}, s{sT0}, {v(vL16)}")
    A(f"v_add_u32 {v(vT+2)}, s{sT2}, {v(vL16)}")
    A.nop(2)
    for j in range(8):
        A(f"ds_write_b128 {v(vT+1)}, {a((8+j)*4,4)} offset:{j*1024}")
    vDq = 184; vG8 = 216; vC = 152
    for k in range(32):
        A(f"v_accvgpr_read_b32 {v(vDq+k)}, {a(k)}")
    if GX:
        emit(dma_list(f"G{ng}")); ng += 1
    A("s_waitcnt lgkmcnt(0)")
    A("s_barrier")
    for j in range(8):
        A(f"ds_read_b128 {v(vFr+4*j,4)}, {v(vT+2)} offset:{j*1024}")
    A(f"s_lshl_b32 s{sT0}, s{sPR}, 2")
    A(f"s_add_u32 s{sT0}, s{sT0}, s{sW}")
    A(f"s_mul_i32 s{sT0}, s{sT0}, 6144")
    A(f"s_add_u32 s{sT1}, s{sT0}, 4096")
    for k in range(6):
        A(f"v_mov_b32 {v(vG8+4*k+3)}, s{sNON}")
    A(f"v_mov_b32 {v(vG8+slot3(16))}, s{sNON+1}")
    A(f"v_mov_b32 {v(vG8+slot3(17))}, 0")
    A("s_waitcnt lgkmcnt(0)")
    for k in range(0, 32, 2):
        A(f"v_pk_add_f32 {v(vDq+k,2)}, {v(vDq+k,2)}, {v(vFr+k,2)}")
    for i in range(4):
        for t in range(4):
            q = 4 * i + t
            A(f"v_cvt_pk_bf16_f32 {v(vG8+slot3(q))}, {v(vDq+4*(2*t)+i)}, {v(vDq+4*(2*t+1)+i)}")
            if q % 3 == 2 or q == 15:
                k = q // 3
                A.vmem(f"buffer_store_dwordx4 {v(vG8+4*k,4)}, {v(vL16)}, s[{SWS}:{SWS+3}], s{sT0 if k < 4 else sT1} offen offset:{(k%4)*1024} sc1", "qs")
    stamp(6)
    epoch_register("b")
    for k in range(16):
        A(f"v_mov_b32 {v(vC+k)}, {v(vG8+slot3(k))}")
    mid = []
    while ng < 3:
        mid += dma_list(f"G{ng}", first=(ng == 0)); ng += 1
    q_image(vC, mid)
    emit(spread(init_list(), dma_list("G3")))
    A(f"s_mov_b32 s{sST}, 1000")
    srd(A, SX, KA+10, KA+11, 8 * 32 * 576 * 2)
    pretouch(False)
    A("s_waitcnt lgkmcnt(0)")
    stamp(2)

    A.label("L_loop")
    if SK_IT:
        A(f"s_cmp_gt_u32 s{sIT}, {SK_IT}")
        A("s_cbranch_scc0 L_w24")
        A("s_waitcnt vmcnt(16)")
        A.label("L_w24")
    A("s_waitcnt vmcnt(24)")
    A("s_barrier")
    if SK_IT:
        A(f"s_cmp_eq_u32 s{sIT}, {SK_IT}")
        A("s_cbranch_scc1 L_nodma")
    dl = dma_list()
    body([dl[0:3], [dl[3]], [dl[4]], dl[5:9], [dl[10]], [dl[11]], [dl[12]], [dl[13]]], dl[14:], "m")
    A.label("L_loop_end")
    A(f"s_cmp_eq_u32 s{sIT}, s{sST}")
    A("s_cbranch_scc1 L_special")
    A.label("L_special_ret")
    A(f"s_add_u32 s{sIT}, s{sIT}, 1")
    A(f"s_add_u32 s{sT0}, s{sIT}, {ND}")
    A(f"s_cmp_lt_u32 s{sT0}, s{sN}")
    A("s_cbranch_scc1 L_loop")

    for p in range(4):
        A(f"v_add_u32 {v(vKoff+p)}, {128*1152 - 16384}, {v(vKoff+p)}")
    A(f"s_lshl_b32 s{sQOFF}, s{sPR}, 2")
    A(f"s_add_u32 s{sQOFF}, s{sQOFF}, s{sW}")
    A(f"s_mul_i32 s{sQOFF}, s{sQOFF}, 6144")
    A(f"s_add_u32 s{sQOFF}, s{sQOFF}, {OB}")
    A(f"s_cmp_lt_u32 s2, 128")
    A(f"s_cselect_b32 s{sST}, {OOB:#x}, s{sQOFF}")
    A(f"s_add_u32 s{sMV}, s{sST}, 4096")
    A(f"s_add_u32 s{sOFFc}, s{sST}, 8192")
    def orec1(op, k, regs):
        return f"{op} {v(vR+4*k,4)}, {v(vL16)}, s[{SWS}:{SWS+3}], s{regs[k//4]} offen offset:{(k%4)*1024} sc1"
    RL = (sST, sMV, sOFFc)
    A.vm = [f"D{g_}" for g_ in range(3 - ND, 4) for _ in range(8)]; A.retired = 0
    for d in range(3 - ND, 3):
        A.wait_vm(f"D{d}")
        A("s_barrier")
        mem = [[] for _ in range(8)]
        if d == 3 - ND:
            b8 = dma_list("b8", first=True)
            mem[0] = b8[0:3]; mem[1] = [b8[3]]; mem[2] = [b8[4]]; mem[3] = [b8[5]]
        if d == RAT:
            for k in range(6):
                mem[min(7, k)].append((orec1("buffer_load_dwordx4", k, RL), "rec"))
        body(mem, [f"s_add_u32 s{sIT}, s{sIT}, 1"], f"d{d}")

    def slot_after(dst, src):
        A(f"s_add_u32 s{dst}, s{src}, 16384")
        A(f"s_cmp_ge_u32 s{dst}, {VRING}")
        A(f"s_cselect_b32 s{dst}, 0, s{dst}")
    A(f"s_sub_u32 s{sRK}, s{sRK}, s{sM0B}")
    slot_after(sA0, sRK)
    slot_after(sA1, sA0)
    slot_after(sMK, sA1)
    slot_after(sLIM, sMK)
    A(f"s_lshl_b32 s{sT0}, s{sW}, 9")
    A(f"s_add_u32 s{sT0}, s{sT0}, s{sMK}")
    A(f"s_add_u32 s{sT0}, s{sT0}, {VRING}")
    A(f"v_lshrrev_b32 {v(vT+2)}, 2, {v(vL16)}")
    A(f"v_add_u32 {v(vT+2)}, s{sT0}, {v(vT+2)}")
    A(f"ds_write_b32 {v(vT+2)}, {v(vM)}")
    A(f"v_xor_b32 {v(vT+1)}, 512, {v(vT+2)}")
    A("s_waitcnt lgkmcnt(0)")
    A("s_barrier")
    A(f"ds_read_b32 {v(vMx)}, {v(vT+1)}")
    A(f"s_cmp_lt_u32 s{sW}, 2")
    A(f"s_cselect_b32 s{sT1}, s{sA0}, s{sA1}")
    A(f"s_lshl_b32 s{sT2}, s{sKH}, 13")
    A(f"s_add_u32 s{sT1}, s{sT1}, s{sT2}")
    A(f"s_xor_b32 s{sT2}, s{sT1}, 8192")
    A(f"v_add_u32 {v(vT+3)}, s{sT2}, {v(vL16)}")
    A(f"v_add_u32 {v(vX+2)}, s{sT1}, {v(vL16)}")
    A(f"v_and_b32 {v(vX)}, 1, {v(vG)}")
    A(f"v_lshlrev_b32 {v(vX)}, 12, {v(vX)}")
    A(f"v_lshrrev_b32 {v(vX+1)}, 1, {v(vG)}")
    A(f"v_lshl_add_u32 {v(vX)}, {v(vX+1)}, 8, {v(vX)}")
    A(f"v_lshl_add_u32 {v(vX)}, {v(vN)}, 4, {v(vX)}")
    A(f"s_lshr_b32 s{sT0}, s{sW}, 1")
    A(f"s_lshl_b32 s{sT0}, s{sT0}, 13")
    A(f"s_lshl_b32 s{sT1}, s{sKH}, 11")
    A(f"s_add_u32 s{sT0}, s{sT0}, s{sT1}")
    A(f"s_add_u32 s{sT0}, s{sT0}, s{sMK}")
    A(f"v_add_u32 {v(vX)}, s{sT0}, {v(vX)}")
    A("s_waitcnt lgkmcnt(0)")
    A(f"v_cmp_gt_f32 vcc, {v(vMx)}, {v(vM)}")
    A("s_cbranch_vccz L_magreed")
    A(f"s_call_b64 s[{sM64}:{sM64+1}], L_rescale")
    A.label("L_magreed")
    emit(fmas)
    emit(expcvt())
    A.nop(1)
    A(lm(0)); A(lm(1))
    if RAT == 3:
        for k in range(6):
            A.vmem(orec1("buffer_load_dwordx4", k, RL), "rec")
    A(f"v_lshrrev_b32 {v(vKa)}, 1, {v(vG)}")
    A(f"v_lshlrev_b32 {v(vKa)}, 2, {v(vKa)}")
    A(f"v_and_b32 {v(vKa+1)}, 1, {v(vG)}")
    A(f"v_add_u32 {v(vKa)}, {v(vKa)}, {v(vKa+1)}")
    A(f"v_lshrrev_b32 {v(vKa+1)}, 2, {v(vN)}")
    A(f"v_lshl_add_u32 {v(vKa)}, {v(vKa)}, 2, {v(vKa+1)}")
    A(f"v_and_b32 {v(vKa+1)}, 3, {v(vN)}")
    A(f"v_lshlrev_b32 {v(vKa+1)}, 3, {v(vKa+1)}")
    A(f"ds_write_b32 {v(vT+2)}, {v(vLa)} offset:256")
    A(f"v_lshl_add_u32 {v(vKa)}, {v(vKa)}, 7, {v(vKa+1)}")
    A(f"s_lshl_b32 s{sT1}, s{sW}, 5")
    A(f"s_add_u32 s{sT2}, s{sT1}, s{sRK}")
    A(f"s_add_u32 s{sT1}, s{sT1}, s{sLIM}")
    A(f"v_add_u32 {v(vKa+1)}, s{sT2}, {v(vKa)}")
    A(f"v_add_u32 {v(vKa)}, s{sT1}, {v(vKa)}")
    A(f"v_add_u32 {v(vKa+2)}, s{sMK}, {v(vL16)}")
    A(f"v_mov_b32 {v(vKa+3)}, s{sNON}")
    A(f"s_and_b32 s{sT2}, s2, 15")
    A(f"s_lshl_b32 s{sT0}, s{sB}, 4")
    A(f"s_add_u32 s{sT0}, s{sT0}, s{sT2}")
    A(f"s_mul_i32 s{sT0}, s{sT0}, 36864")
    A(f"s_mul_i32 s{sT1}, s{sW}, 9216")
    A(f"s_add_u32 s{sT0}, s{sT0}, s{sT1}")
    A(f"s_add_u32 s{sXOFF}, s{sT0}, {PY}")
    A("s_waitcnt lgkmcnt(0)")
    A.wait_vm("b8")
    A("s_barrier")
    stamp(3)
    vL1 = vX + 3
    vU = vQf
    def rec_check():
        L = [f"v_xor_b32 {v(vR+4*k+3)}, {v(vR+4*k+3)}, {v(vKa+3)}" for k in range(6)]
        L += [f"v_or3_b32 {v(vR+3)}, {v(vR+3)}, {v(vR+7)}, {v(vR+11)}",
              f"v_or3_b32 {v(vR+15)}, {v(vR+15)}, {v(vR+19)}, {v(vR+23)}",
              f"v_or_b32 {v(vR+3)}, {v(vR+3)}, {v(vR+15)}",
              f"v_cmp_ne_u32 vcc, 0, {v(vR+3)}"]
        return L
    def rec_prep():
        L = [f"v_max_f32 {v(vMx)}, {v(vM)}, {v(vR+slot3(16))}",
             f"v_mul_f32 {v(vMc)}, s{sC}, {v(vMx)}",
             f"v_fma_f32 {v(vAl)}, {v(vM)}, s{sC}, -{v(vMc)}",
             f"v_fma_f32 {v(vBe)}, {v(vR+slot3(16))}, s{sC}, -{v(vMc)}",
             f"v_exp_f32 {v(vAl)}, {v(vAl)}",
             f"v_exp_f32 {v(vBe)}, {v(vBe)}"]
        U = []
        for k in range(16):
            U += [f"v_and_b32 {v(vU+2*k+1)}, 0xffff0000, {v(vR+slot3(k))}", f"v_lshlrev_b32 {v(vU+2*k)}, 16, {v(vR+slot3(k))}"]
        L += U[:2]
        L += [f"v_mul_f32 {v(vMx)}, {v(vBe)}, {v(vR+slot3(17))}",
              f"v_fma_f32 {v(vMx)}, {v(vAl)}, {v(vL1)}, {v(vMx)}",
              f"v_rcp_f32 {v(vMx)}, {v(vMx)}"]
        L += U[2:]
        L += [f"v_mul_f32 {v(vAl)}, {v(vAl)}, {v(vMx)}", f"v_mul_f32 {v(vBe)}, {v(vBe)}, {v(vMx)}"]
        L += [f"v_mul_f32 {v(vU+k)}, {v(vU+k)}, {v(vBe)}" for k in range(32)]
        return L
    def final_pv(fillv):
        def take(n):
            for _ in range(n):
                if fillv:
                    A(fillv.pop(0))
        take(5)
        A("s_waitcnt lgkmcnt(8)")
        A(pvm(2)); take(6)
        A(pvm(3)); take(6)
        A("s_waitcnt lgkmcnt(4)")
        A(pvm(4)); take(6)
        dsw = [f"ds_write_b128 {v(vT+3)}, {v(vO+32+4*k,4)} offset:{k*1024}" for k in range(8)]
        A(pvm(5))
        A("s_waitcnt lgkmcnt(0)")
        emit(dsw[:4]); take(2)
        A(pvm(6))
        emit(dsw[4:]); take(2)
        A(pvm(7))
        take(1000)
    A(f"ds_read_b32 {v(vT)}, {v(vT+1)} offset:256")
    for f in range(7):
        emit(vread(f))
    A(f"s_cmp_lt_u32 s2, 128")
    A("s_waitcnt lgkmcnt(10)")
    A(pvm(0))
    emit(vread(7))
    A(f"v_add_f32 {v(vL1)}, {v(vLa)}, {v(vT)}")
    A(pvm(1))
    A("s_waitcnt vmcnt(0)")
    A("s_cbranch_scc1 L_g2_tail")
    final_pv(rec_check() + rec_prep())

    A("s_cbranch_vccnz L_pollo")
    A.label("L_pollo_done")
    A("s_waitcnt lgkmcnt(0)")
    A("s_barrier")
    if not DBG:
        stamp(11)
    for k in range(8):
        A(f"ds_read_b128 {v(vO+32+4*k,4)}, {v(vX+2)} offset:{k*1024}")
    for c in range(4):
        A(f"s_waitcnt lgkmcnt({6 - 2*c + c})")
        for k in range(4 * c, 4 * c + 4):
            A(f"v_pk_add_f32 {v(vO+2*k,2)}, {v(vO+2*k,2)}, {v(vO+32+2*k,2)}")
        for k in range(4 * c, 4 * c + 4):
            A(f"v_pk_fma_f32 {v(vO+2*k,2)}, {v(vO+2*k,2)}, {v(vAl,2)}, {v(vU+2*k,2)} op_sel_hi:[1,0,1]")
        for k in range(4 * c, 4 * c + 4):
            A(f"v_cvt_pk_bf16_f32 {v(vX+4+k)}, {v(vO+2*k)}, {v(vO+2*k+1)}")
        A(f"ds_write_b128 {v(vX)}, {v(vX+4+4*c,4)} offset:{(c>>1)*1024 + (c&1)*512}")
    vB8 = 216
    A(f"s_mov_b32 s{sT0}, s{sXOFF}")
    A("s_waitcnt lgkmcnt(0)")
    A("s_barrier")
    stamp(4)
    def wfr(ks, j):
        return a(32 * ks + 4 * j, 4) if j < 8 else v(vB8 + 4 * ks, 4)
    def acc(rh, j):
        return 144 + 4 * (rh * 9 + j)
    def ofr(rh, ks):
        return v(vQf + 4 * ks, 4) if rh == 0 else v(vO + 4 * ks, 4)
    vPk = 120
    b8r = [f"ds_read_b64_tr_b16 {v(vB8+4*ks+2*u,2)}, {v(vKa+(ks>>2))} offset:{(32*(ks&3)+8*u)*128}" for ks in range(8) for u in range(2)]
    o0 = [f"ds_read_b128 {ofr(0,ks)}, {v(vKa+2)} offset:{(((ks>>2)*2+0)*4+(ks&3))*1024}" for ks in range(8)]
    o1 = [f"ds_read_b128 {ofr(1,ks)}, {v(vKa+2)} offset:{(((ks>>2)*2+1)*4+(ks&3))*1024}" for ks in range(8)]
    for ks in range(4):
        A(o0[ks]); A(b8r[2*ks]); A(b8r[2*ks+1])
    for ks in range(8):
        A(f"s_waitcnt lgkmcnt({9 if ks < 5 else 9})")
        nxt = [o0[ks+4], b8r[2*(ks+4)], b8r[2*(ks+4)+1]] if ks < 4 else [o1[2*(ks-4)], o1[2*(ks-4)+1], o1[2*(ks-4)+1]]
        for j in range(9):
            d = v(acc(0, j), 4)
            A(f"{M16} {d}, {ofr(0,ks)}, {wfr(ks,j)}, {d if ks else 0}")
            if j < 3:
                A(nxt[j])
    A("s_waitcnt lgkmcnt(0)")
    def pack_store(rh):
        L = []
        for i in range(4):
            d = vPk + 4 * i
            for q in range(4):
                L.append(f"v_cvt_pk_bf16_f32 {v(d+q)}, {v(acc(rh,2*q)+i)}, {v(acc(rh,2*q+1)+i)}")
            L.append(f"buffer_store_dwordx4 {v(d,4)}, {v(vL16)}, s[{SWS}:{SWS+3}], s{sT0} offen offset:{i*1024} sc1")
        L.append(f"s_add_u32 s{sT0}, s{sT0}, 4096")
        for q in range(2):
            L.append(f"v_cvt_pk_bf16_f32 {v(136+2*rh+q)}, {v(acc(rh,8)+2*q)}, {v(acc(rh,8)+2*q+1)}")
        return L
    m1 = []
    for ks in range(8):
        for j in range(9):
            d = v(acc(1, j), 4)
            m1.append(f"{M16} {d}, {ofr(1,ks)}, {wfr(ks,j)}, {d if ks else 0}")
    misc = [f"s_lshl_b32 s{sT1}, s{sB}, 13",
            f"s_lshl_b32 s{sQOFF}, s{sW}, 7",
            f"s_add_u32 s{sT1}, s{sT1}, s{sQOFF}",
            f"s_lshl_b32 s{sQOFF}, s{sT2}, 3",
            f"s_add_u32 s{sT1}, s{sT1}, s{sQOFF}",
            f"s_add_u32 s{sT1}, s{sT1}, {FY}",
            f"v_lshlrev_b32 {v(vT)}, 9, {v(vN)}",
            f"s_memrealtime s[{sNON}:{sNON+1}]"]
    emit(m1[:10])
    emit(weave(m1[10:], pack_store(0) + misc, 1))
    stamp(5)
    A.nop(8)
    emit(pack_store(1))
    A(f"buffer_store_dwordx4 {v(136,4)}, {v(vL16)}, s[{SWS}:{SWS+3}], s{sT0} offen sc1")
    stamp(7)
    A("s_waitcnt lgkmcnt(0)")
    A(f"v_mov_b32 {v(vT+2)}, s{sNON}")
    A(f"v_mov_b32 {v(vT+3)}, s{sNON+1}")
    A("s_waitcnt vmcnt(0)")
    A("s_mov_b64 exec, 0xffff")
    A(f"buffer_store_dwordx2 {v(vT+2,2)}, {v(vT)}, s[{SWS}:{SWS+3}], s{sT1} offen sc1")
    A("s_mov_b64 exec, -1")
    stamp(8)
    A("s_branch L_fin")

    A.label("L_g2_tail")
    g2f = [f"v_mov_b32 {v(vR+4*k+3)}, s{sNON}" for k in range(6)]
    g2f += [f"v_mov_b32 {v(vR+slot3(16))}, {v(vM)}", f"v_mov_b32 {v(vR+slot3(17))}, {v(vL1)}",
            f"s_add_u32 s{sMV}, s{sQOFF}, 4096", f"s_add_u32 s{sOFFc}, s{sQOFF}, 8192", "s_nop 0", "s_nop 3", "s_nop 0", "s_nop 0", "s_nop 0", "s_nop 0", "s_nop 0", "s_nop 3"]
    final_pv(g2f)
    RS = (sQOFF, sMV, sOFFc)
    A("s_waitcnt lgkmcnt(0)")
    A("s_barrier")
    for k in range(8):
        A(f"ds_read_b128 {v(vO+32+4*k,4)}, {v(vX+2)} offset:{k*1024}")
    for k in range(8):
        A(f"s_waitcnt lgkmcnt({7-k})")
        for z in range(2):
            A(f"v_pk_add_f32 {v(vO+4*k+2*z,2)}, {v(vO+4*k+2*z,2)}, {v(vO+32+4*k+2*z,2)}")
        for z in range(2):
            q = 2 * k + z
            A(f"v_cvt_pk_bf16_f32 {v(vR+slot3(q))}, {v(vO+4*k+2*z)}, {v(vO+4*k+2*z+1)}")
            if q % 3 == 2 or q == 15:
                A(orec1("buffer_store_dwordx4", q // 3, RS))
    stamp(4)
    sJ = sST
    srd(A, SX, KA+10, KA+11, 8 * 32 * 576 * 2)
    A(f"s_and_b32 s{sJ}, s2, 15")
    vSA = vQf
    A(f"v_and_b32 {v(vT)}, 1, {v(vN)}")
    A(f"v_lshlrev_b32 {v(vT)}, 4, {v(vT)}")
    A(f"v_mov_b32 {v(vT+1)}, 0x3f80")
    A(f"v_lshlrev_b32 {v(vT+1)}, {v(vT)}, {v(vT+1)}")
    A(f"v_lshrrev_b32 {v(vT)}, 1, {v(vN)}")
    for t in range(4):
        A(f"v_cmp_eq_u32 vcc, {t}, {v(vT)}")
        A.nop(2)
        A(f"v_cndmask_b32 {v(vSA+t)}, 0, {v(vT+1)}, vcc")
    A(f"s_lshl_b32 s{sT0}, s{sB}, 4")
    A(f"s_add_u32 s{sT0}, s{sT0}, s{sJ}")
    A(f"s_lshl_b32 s{sT0}, s{sT0}, 2")
    A(f"s_add_u32 s{sT0}, s{sT0}, s{sW}")
    A(f"s_lshl_b32 s{sT0}, s{sT0}, 7")
    A(f"s_add_u32 s{sQOFF}, s{sT0}, {FY}")
    A(f"v_lshlrev_b32 {v(vT+1)}, 3, {v(vN)}")
    A(f"v_mul_u32_u24 {v(vT)}, 36864, {v(vG)}")
    A(f"v_lshl_add_u32 {v(vT)}, {v(vN)}, 4, {v(vT)}")
    A(f"s_mul_i32 s{sT0}, s{sB}, {16*36864}")
    A(f"s_mul_i32 s{sT1}, s{sW}, 9216")
    A(f"s_add_u32 s{sT0}, s{sT0}, s{sT1}")
    A(f"s_add_u32 s{sT0}, s{sT0}, {PY}")
    A(f"s_lshl_b32 s{sT1}, s{sJ}, 8")
    A(f"s_add_u32 s{sXOFF}, s{sT0}, s{sT1}")
    A(f"s_add_u32 s{sXOFF}, s{sXOFF}, 8192")
    A(f"s_lshl_b32 s{sT1}, s{sJ}, 9")
    A(f"s_add_u32 s{sT0}, s{sT0}, s{sT1}")
    A(f"s_lshr_b32 s{sT1}, s{sJ}, 3")
    A(f"s_lshl_b32 s{sT1}, s{sT1}, 4")
    A(f"s_and_b32 s{sT2}, s{sJ}, 1")
    A(f"s_lshl_b32 s{sT2}, s{sT2}, 3")
    A(f"s_add_u32 s{sT1}, s{sT1}, s{sT2}")
    A(f"s_bfe_u32 s{sT2}, s{sJ}, 0x20001")
    A(f"s_add_u32 s{sT1}, s{sT1}, s{sT2}")
    A(f"s_lshl_b32 s{sT2}, s{sB}, 5")
    A(f"s_add_u32 s{sT1}, s{sT1}, s{sT2}")
    A(f"s_mul_i32 s{sT1}, s{sT1}, 1152")
    A(f"s_lshl_b32 s{sT2}, s{sW}, 8")
    A(f"s_add_u32 s{sT1}, s{sT1}, s{sT2}")
    A(f"s_add_u32 s{sOFF}, s{sT1}, {4*1152}")
    A(f"v_lshlrev_b32 {v(vMx)}, 4, {v(vN)}")
    A(f"v_lshl_add_u32 {v(vMx)}, {v(vG)}, 3, {v(vMx)}")
    A(f"s_mov_b32 s{sT2}, 0")
    A(f"s_mov_b64 s[{sA0}:{sA1}], s[{sTIM}:{sTIM+1}]")
    A("s_branch L_polly_ld")
    A.label("L_polly")
    A(f"s_sleep {SLEEPY}")
    epoch_lower(sA0, sT2, vT + 2, "y")
    A.label("L_polly_ld")
    A(f"buffer_load_dwordx2 {v(vT+2,2)}, {v(vT+1)}, s[{SWS}:{SWS+3}], s{sQOFF} offen sc1")
    A(f"v_mov_b32 {v(vBe)}, s{sA1}")
    A("s_waitcnt vmcnt(0)")
    A(f"v_subrev_co_u32 {v(vAl)}, vcc, s{sA0}, {v(vT+2)}")
    A(f"v_subb_co_u32 {v(vBe)}, vcc, {v(vT+3)}, {v(vBe)}, vcc")
    A(f"v_cmp_le_u64 vcc, s[{sWIN}:{sWIN+1}], {v(vAl,2)}")
    A(f"s_add_u32 s{sT2}, s{sT2}, 1")
    A("s_cbranch_vccz L_polly_done")
    A(f"s_cmp_lt_u32 s{sT2}, {SPIN_MAX}")
    A("s_cbranch_scc1 L_polly")
    A.label("L_polly_done")
    stamp(9)
    vRR = vO
    for k in range(4):
        A(f"buffer_load_dwordx4 {v(vRR+4*k,4)}, {v(vT)}, s[{SWS}:{SWS+3}], s{sT0} offen sc1")
        A(f"buffer_load_dwordx4 {v(vRR+16+4*k,4)}, {v(vT)}, s[{SWS}:{SWS+3}], s{sT0} offen offset:256 sc1")
        A(f"s_add_u32 s{sT0}, s{sT0}, {4*36864}")
    A(f"s_cmp_lt_u32 s{sJ}, 4")
    A("s_cbranch_scc0 L_no_extra_ld")
    for k in range(4):
        A(f"buffer_load_dwordx4 {v(vRR+32+4*k,4)}, {v(vT)}, s[{SWS}:{SWS+3}], s{sXOFF} offen sc1")
        A(f"s_add_u32 s{sXOFF}, s{sXOFF}, {4*36864}")
    A.label("L_no_extra_ld")
    A("s_waitcnt vmcnt(0)")
    vS = vSo
    for k in range(4):
        for u in range(2):
            A(f"{M16} {v(vS+4*u,4)}, {v(vSA,4)}, {v(vRR+16*u+4*k,4)}, {v(vS+4*u,4) if k else 0}")
    A.nop(8)
    for u in range(2):
        A(f"v_cvt_pk_bf16_f32 {v(vSn+2*u)}, {v(vS+4*u)}, {v(vS+4*u+1)}")
        A(f"v_cvt_pk_bf16_f32 {v(vSn+2*u+1)}, {v(vS+4*u+2)}, {v(vS+4*u+3)}")
    A("s_mov_b32 exec_hi, 0")
    A(f"buffer_store_dwordx2 {v(vSn,2)}, {v(vMx)}, s[{SX}:{SX+3}], s{sT1} offen{POLO}")
    A(f"buffer_store_dwordx2 {v(vSn+2,2)}, {v(vMx)}, s[{SX}:{SX+3}], s{sOFF} offen{POLO}")
    A(f"s_mov_b64 exec, -1")
    A(f"s_cmp_lt_u32 s{sJ}, 4")
    A("s_cbranch_scc0 L_fin")
    for k in range(4):
        A(f"{M16} {v(vS+8,4)}, {v(vSA,4)}, {v(vRR+32+4*k,4)}, {v(vS+8,4) if k else 0}")
    A(f"s_lshl_b32 s{sT0}, s{sJ}, 2")
    A(f"s_lshl_b32 s{sT1}, s{sB}, 5")
    A(f"s_add_u32 s{sT0}, s{sT0}, s{sT1}")
    A(f"s_mul_i32 s{sT0}, s{sT0}, 1152")
    A(f"s_lshl_b32 s{sT1}, s{sW}, 5")
    A(f"s_add_u32 s{sT0}, s{sT0}, s{sT1}")
    A(f"s_add_u32 s{sT0}, s{sT0}, 1024")
    A(f"v_lshlrev_b32 {v(vT)}, 1, {v(vN)}")
    A(f"v_mul_u32_u24 {v(vT+1)}, {16*1152}, {v(vG)}")
    A(f"v_add_u32 {v(vT)}, {v(vT)}, {v(vT+1)}")
    A.nop(4)
    A(f"v_cvt_pk_bf16_f32 {v(vS+12)}, {v(vS+8)}, {v(vS+9)}")
    A(f"v_cvt_pk_bf16_f32 {v(vS+13)}, {v(vS+10)}, {v(vS+11)}")
    A("s_mov_b32 exec_hi, 0")
    A(f"buffer_store_short {v(vS+12)}, {v(vT)}, s[{SX}:{SX+3}], s{sT0} offen{POLO}")
    A(f"buffer_store_short_d16_hi {v(vS+12)}, {v(vT)}, s[{SX}:{SX+3}], s{sT0} offen offset:1152{POLO}")
    A(f"buffer_store_short {v(vS+13)}, {v(vT)}, s[{SX}:{SX+3}], s{sT0} offen offset:2304{POLO}")
    A(f"buffer_store_short_d16_hi {v(vS+13)}, {v(vT)}, s[{SX}:{SX+3}], s{sT0} offen offset:3456{POLO}")
    A(f"s_mov_b64 exec, -1")
    A.label("L_fin")
    if STAMPS:
        A("s_waitcnt vmcnt(0)")
        if not DBG:
            stamp(10)
        if DBG:
            A("s_memtime s[76:77]")
            A("s_waitcnt lgkmcnt(0)")
            A(f"s_and_b32 s{sT0}, s2, 127")
            A(f"s_lshl_b32 s{sT0}, s{sT0}, 2")
            A(f"s_add_u32 s{sT0}, s{sT0}, s{sW}")
            A(f"s_cmp_eq_u32 s{sT0}, 20")
            A("s_cbranch_scc0 L_end")
            srd(A, SX, KA+12, KA+13, 256)
            A(f"s_lshr_b32 s{sT0}, s2, 7")
            A(f"s_lshl_b32 s{sT0}, s{sT0}, 5")
            A(f"s_cmp_lt_u32 s2, 128")
            A(f"s_cselect_b32 s72, s74, s72")
            A(f"v_mov_b32 {v(vT)}, 0")
            A("s_mov_b64 exec, 1")
            A("s_memrealtime s[74:75]")
            A("s_waitcnt lgkmcnt(0)")
            for i, src in enumerate([56, 58, 60, 62, 64, 72, 74]):
                A(f"s_sub_u32 s{sT1}, s{src}, s{sTIM}")
                A(f"v_mov_b32 {v(vT+2)}, s{sT1}")
                A(f"buffer_store_dword {v(vT+2)}, {v(vT)}, s[{SX}:{SX+3}], s{sT0} offen offset:{4*i}")
                A.nop(2)
            A(f"s_sub_u32 s{sT1}, s76, s78")
            A(f"v_mov_b32 {v(vT+2)}, s{sT1}")
            A(f"buffer_store_dword {v(vT+2)}, {v(vT)}, s[{SX}:{SX+3}], s{sT0} offen offset:28")
            A("s_endpgm")
        A(f"s_lshl_b32 s{sT0}, s2, 2")
        A(f"s_add_u32 s{sT0}, s{sT0}, s{sW}")
        A(f"s_lshl_b32 s{sT1}, s{sT0}, 8")
        A(f"s_lshl_b32 s{sT0}, s{sT0}, 7")
        A(f"s_add_u32 s{sT0}, s{sT0}, {STAMP_BASE}")
        A(f"s_add_u32 s{sT1}, s{sT1}, {STAMP_BASE + (1 << 20)}")
        A(f"v_lshlrev_b32 {v(vT)}, 2, {v(vLane)}")
        A(f"buffer_store_dword v255, {v(vT)}, s[{SWS}:{SWS+3}], s{sT1} offen")
        A.nop(2)
        A(f"v_mov_b32 {v(vT)}, 0")
        A("s_mov_b64 exec, 1")
        for i in range(13):
            src = 56 + 2 * i if i < 12 else sTIM
            A(f"v_mov_b32 {v(vT+2)}, s{src}")
            A(f"v_mov_b32 {v(vT+3)}, s{src+1}")
            A(f"buffer_store_dwordx2 {v(vT+2,2)}, {v(vT)}, s[{SWS}:{SWS+3}], s{sT0} offen offset:{8*i}")
            A.nop(2)
    A.label("L_end")
    A("s_endpgm")

    A.label("L_rescale")
    A(f"v_max_f32 {v(vMx)}, {v(vMx)}, {v(vM)}")
    A(f"v_mul_f32 {v(vMc)}, s{sC}, {v(vMx)}")
    A(f"v_fma_f32 {v(vAl)}, {v(vM)}, s{sC}, -{v(vMc)}")
    A(f"v_exp_f32 {v(vAl)}, {v(vAl)}")
    A(f"v_mov_b32 {v(vM)}, {v(vMx)}")
    A.nop(8)
    for k in list(range(32, 64, 2)) + list(range(0, 32, 2)):
        A(f"v_pk_mul_f32 {v(vO+k,2)}, {v(vO+k,2)}, {v(vAl,2)} op_sel_hi:[1,0]")
    for k in range(0, 4, 2):
        A(f"v_pk_mul_f32 {v(vLa+k,2)}, {v(vLa+k,2)}, {v(vAl,2)} op_sel_hi:[1,0]")
    A(f"s_setpc_b64 s[{sM64}:{sM64+1}]")

    A.label("L_pollo")
    A(f"s_mov_b32 s{sT1}, 0")
    A.label("L_pollo2")
    for k in range(6):
        A(orec1("buffer_load_dwordx4", k, RL))
    A("s_waitcnt vmcnt(0)")
    emit(rec_check())
    A(f"s_add_u32 s{sT1}, s{sT1}, 1")
    A("s_cbranch_vccz L_pollo3")
    A(f"s_sleep {SLEEP}")
    A(f"s_cmp_lt_u32 s{sT1}, {SPIN_MAX}")
    A("s_cbranch_scc1 L_pollo2")
    A.label("L_pollo3")
    emit(rec_prep())
    A("s_branch L_pollo_done")

    A.label("L_special")
    A(f"s_add_u32 s{sT0}, s{sXOFF}, 1024")
    A(f"s_add_u32 s{SK}, s{KA+8}, s{sT0}")
    A(f"s_addc_u32 s{SK+1}, s{KA+9}, 0")
    A(f"s_sub_u32 s{SK}, s{SK}, {N1*16384}")
    A(f"s_subb_u32 s{SK+1}, s{SK+1}, 0")
    A(f"s_and_b32 s{SK+1}, s{SK+1}, 0xffff")
    A(f"s_mov_b32 s{SK+2}, {N1*16384 + 256*1152 - 1024}")
    A(f"v_lshrrev_b32 {v(vT)}, 3, {v(vLane)}")
    A(f"v_mul_u32_u24 {v(vT)}, 1152, {v(vT)}")
    A(f"v_and_b32 {v(vT+1)}, 7, {v(vLane)}")
    A(f"v_lshl_add_u32 {v(vT)}, {v(vT+1)}, 4, {v(vT)}")
    A(f"s_mul_i32 s{sT0}, s{sW}, {36864 - 4096}")
    for p in range(4):
        A(f"v_add_u32 {v(vKoff+p)}, s{sT0}, {v(vT)}")
        A(f"s_add_u32 s{sT0}, s{sT0}, {9216 - 1024}")
    A("s_branch L_special_ret")
    A.label("L_code_end")
    return A.text()

def main():
    k = gen()
    out = f"""; generated by gen17.py
; @launch grid=(256,1,1) block=(256,1,1) lds=163840
.amdgcn_target "amdgcn-amd-amdhsa--gfx950"
.text
"""
    out += kernel_head(NAME) + k
    out += '.section .rodata,"a"\n.p2align 6\n'
    out += kernel_desc(NAME, 512, 256, 102)
    open(sys.argv[1], "w").write(out)

main()
```

```python
import sys, struct
from asmlib import *

NAME = "standalone__sliding_block_cached__sampling_kernel"
OPTS = set(sys.argv[2:])
STAMPS = "stamps" in OPTS
def opt(name, default):
    for o in OPTS:
        if o.startswith(name + "="):
            return int(o.split("=")[1])
    return default
N1 = opt("n1", 17)
N2 = 32 - N1
SLEEP = opt("sleep", 1)
SLEEPY = opt("sleepy", 1)
PROF = opt("prof", 0)
THR = 8.0
POLK = " nt" if opt("polk", 1) else ""
POLV = " nt" if opt("polv", 1) else ""
XSWAP = opt("xswap", 1)
CODEWARM = opt("codewarm", 2)
MAGREE = opt("magree", 1)
GX = opt("gx", 0)
PREPOLL = opt("prepoll", 0)
DBG = opt("dbg", 0)
LATE = opt("late", -1)
EPOCH = opt("epoch", 1)
DIAG = opt("diag", -1)
POLO = {0: "", 1: " sc1", 2: " nt", 3: " sc0 sc1"}[opt("polo", 0)]
QAT = opt("qat", 8)
PT = opt("pt", 0)
CWN = opt("cwn", 256)
SK_IT = opt("skip", 6)
NGB = opt("ngb", 2)
RAT = opt("rat", 2)

ND = 2 if SK_IT else 3

def slot3(k):
    return 4 * (k // 3) + k % 3

def f32bits(x):
    return struct.unpack("<I", struct.pack("<f", x))[0]

SCALE_C = (128 ** -0.5) * 1.4426950408889634
QB = 0
OB = 4 << 20
FY = 13 << 20
PY = 16 << 20
STAMP_BASE = 64 << 20
SPIN_MAX = 1 << 20
VRING = 81920
OOB = 0x7ff00000
M32 = "v_mfma_f32_32x32x16_bf16"
M16 = "v_mfma_f32_16x16x32_bf16"

def srd(A, d, lo, hi, nbytes):
    A(f"s_mov_b32 s{d}, s{lo}")
    A(f"s_and_b32 s{d+1}, s{hi}, 0xffff")
    A(f"s_mov_b32 s{d+2}, {nbytes:#x}")
    A(f"s_mov_b32 s{d+3}, 0x20000")

def weave(main, fill, per):
    out = []; fill = list(fill)
    for m in main:
        out.append(m)
        for _ in range(per):
            if fill:
                out.append(fill.pop(0))
    return out + fill

def spread(main, fill):
    out = []; n, k = len(main), len(fill); fi = 0
    for i, m in enumerate(main):
        out.append(m)
        while fi < k and (fi + 1) * n <= (i + 1) * k:
            out.append(fill[fi]); fi += 1
    return out + list(fill[fi:])

def gen():
    A = Asm()
    def emit(lst):
        for x in lst:
            if isinstance(x, tuple):
                A.vmem(x[0], x[1])
            else:
                A(x)
    def stamp(i, mode=0):
        if STAMPS and mode == PROF:
            assert i < 12
            A(f"s_memrealtime s[{56+2*i}:{57+2*i}]")
            A("s_waitcnt lgkmcnt(0)")
    SK, SV, SX, SWT, SWS = 4, 8, 12, 16, 20
    sWIN = 24
    sA0, sA1 = 26, 27
    sNON = 28
    sTIM = 30
    (sW, sKVH, sB, sPR, sOFF, sOFFc, sRK, sMK, sMV, sC, sSELL, sSELH, sT0, sT1, sT2, sLIM, sDK,
     sQOFF, sXOFF, sM0B, sST, sN, sIT, sSLOT) = range(32, 56)
    sM64, sTHR, sK16, sDV, sKH = 96, 98, 99, 100, 101
    KA = 80
    vL16, vVoff, vM = 1, 2, 3
    vKoff, vT, vKa, vVa = 4, 8, 12, 20
    vMc, vMx, vAl, vBe = 24, 25, 26, 27
    vSel, vLa, vQf = 28, 32, 36
    vX = 68
    vO, vSo, vSn, vKV = 88, 152, 168, 184
    vR = 216
    vLane, vG, vN = 252, 253, 254
    vP = vSo
    XL = 65536
    QIMG = VRING + 16384

    A("s_cmp_ge_u32 s2, 256")
    A("s_cbranch_scc1 L_end")
    if LATE >= 0:
        A(f"s_cmp_eq_u32 s2, {LATE}")
        A("s_cbranch_scc0 L_notlate")
        for _ in range(16):
            A("s_sleep 127")
        A.label("L_notlate")
    A(f"s_load_dwordx16 s[{KA}:{KA+15}], s[0:1], 0")
    A(f"s_memrealtime s[{sTIM}:{sTIM+1}]")
    if DBG:
        A("s_memtime s[78:79]")
    if CODEWARM == 2:
        A(f"s_cmp_lt_u32 s2, {CWN}")
        A("s_cbranch_scc0 L_nocw")
        for x in [f"s_getpc_b64 s[{sT0}:{sT0+1}]", "L_pc:", f"s_sub_u32 s{sT0}, s{sT0}, L_pc-{NAME}", f"s_subb_u32 s{sT1}, s{sT1}, 0",
                  f"v_lshlrev_b32 {v(vT+1)}, 7, v0",
                  f"v_min_u32 {v(vT+1)}, L_code_end-{NAME}-4, {v(vT+1)}",
                  f"global_load_dword {v(vMx)}, {v(vT+1)}, s[{sT0}:{sT0+1}]"]:
            A(x)
        A.label("L_nocw")
    if XSWAP:
        A("s_lshr_b32 s3, s2, 7")
        A("s_xor_b32 s2, s2, s3")
    A(f"v_lshrrev_b32 {v(vT)}, 6, v0")
    A(f"v_and_b32 {v(vLane)}, 63, v0")
    A(f"v_readfirstlane_b32 s{sW}, {v(vT)}")
    A(f"v_lshrrev_b32 {v(vG)}, 4, {v(vLane)}")
    A(f"v_and_b32 {v(vN)}, 15, {v(vLane)}")
    A(f"s_and_b32 s{sKVH}, s2, 7")
    A(f"s_lshl_b32 s{sKVH}, s{sKVH}, 1")
    A(f"s_bfe_u32 s{sB}, s2, 0x10003")
    A(f"s_add_u32 s{sKVH}, s{sKVH}, s{sB}")
    A(f"s_bfe_u32 s{sB}, s2, 0x30004")
    A(f"s_and_b32 s{sPR}, s2, 127")
    A(f"s_lshl_b32 s{sT0}, s{sB}, 25")
    A(f"s_lshl_b32 s{sT1}, s{sKVH}, 21")
    A(f"s_add_u32 s{sT0}, s{sT0}, s{sT1}")
    A(f"s_add_u32 s{sT0}, s{sT0}, {6144*256}")
    A(f"s_add_u32 s{sT1}, s{sT0}, {N1*16384}")
    A(f"s_cmp_ge_u32 s2, 128")
    A(f"s_cselect_b32 s{sT2}, s{sT0}, s{sT1}")
    A(f"s_cselect_b32 s{sN}, {N1}, {N2}")
    A(f"s_lshl_b32 s{sM0B}, s{sW}, 12")
    A(f"s_add_u32 s{sLIM}, s{sM0B}, {VRING}")
    A(f"s_and_b32 s{sKH}, s{sW}, 1")
    A(f"v_lshlrev_b32 {v(vL16)}, 4, {v(vLane)}")

    def kv_setup():
        L = []
        for p in range(4):
            L += [f"v_or_b32 {v(vT)}, {4*p}, {v(vG)}", f"v_xor_b32 {v(vT)}, {v(vT)}, {v(vN)}",
                  f"v_lshlrev_b32 {v(vT)}, 4, {v(vT)}", f"v_lshl_add_u32 {v(vKoff+p)}, {v(vG)}, 8, {v(vT)}"]
        L += [f"v_lshlrev_b32 {v(vT)}, 2, {v(vG)}", f"v_xor_b32 {v(vT)}, {v(vT)}, {v(vN)}",
              f"v_lshlrev_b32 {v(vT)}, 4, {v(vT)}", f"v_lshl_add_u32 {v(vVoff)}, {v(vG)}, 8, {v(vT)}"]
        return L
    def kv_srds():
        return [f"s_add_u32 s{SK}, s{KA+2}, s{sT2}", f"s_addc_u32 s{SK+1}, s{KA+3}, 0", f"s_and_b32 s{SK+1}, s{SK+1}, 0xffff",
                f"s_lshl_b32 s{SK+2}, s{sN}, 14", f"s_mov_b32 s{SK+3}, 0x20000",
                f"s_sub_u32 s{sT2}, s{sT2}, 16384",
                f"s_add_u32 s{SV}, s{KA+4}, s{sT2}", f"s_addc_u32 s{SV+1}, s{KA+5}, 0", f"s_and_b32 s{SV+1}, s{SV+1}, 0xffff",
                f"s_add_u32 s{SV+2}, s{SK+2}, 16384", f"s_mov_b32 s{SV+3}, 0x20000",
                f"s_mov_b32 s{sOFF}, s{sM0B}", f"s_mov_b32 s{sRK}, s{sM0B}"]
    def dma_list(tag=None, first=False):
        L = [f"s_mov_b32 m0, s{sRK}", f"s_add_u32 s{sMK}, s{sRK}, 16384"]
        for p in range(4):
            ln = f"buffer_load_dwordx4 {v(vKoff+p)}, s[{SK}:{SK+3}], s{sOFF} offen offset:{p*1024}{POLK} lds"
            L.append((ln, tag) if tag else ln)
        L += [f"s_cmp_ge_u32 s{sMK}, s{sLIM}", f"s_cselect_b32 s{sRK}, s{sM0B}, s{sMK}", f"s_add_u32 m0, s{sRK}, {VRING}", "s_nop 0"]
        for p in range(0 if first else 4):
            ln = f"buffer_load_dwordx4 {v(vVoff)}, s[{SV}:{SV+3}], s{sOFF} offen offset:{p*1024}{POLV} lds"
            L.append((ln, tag) if tag else ln)
        L += [f"s_add_u32 s{sOFF}, s{sOFF}, 16384"]
        return L
    def common_setup():
        L = [f"s_mov_b32 s{sC}, {f32bits(SCALE_C):#x}", f"s_mov_b32 s{sTHR}, {f32bits(THR / SCALE_C):#x}",
             f"s_mov_b32 s{sSELL}, 0x05040100", f"s_mov_b32 s{sSELH}, 0x07060302", f"s_mov_b32 s{sK16}, 16384",
             f"s_mov_b32 s{sWIN}, 0x1000000", f"s_mov_b32 s{sWIN+1}, 0"]
        L += [f"v_and_b32 {v(vT)}, 31, {v(vLane)}",
              f"v_lshlrev_b32 {v(vT)}, 8, {v(vT)}",
              f"v_mov_b32 {v(vT+1)}, s{sKH}",
              f"v_lshl_add_u32 {v(vT)}, {v(vT+1)}, 13, {v(vT)}",
              f"v_lshrrev_b32 {v(vT+2)}, 5, {v(vLane)}",
              f"v_xor_b32 {v(vT+2)}, {v(vT+2)}, {v(vN)}"]
        for s_ in range(8):
            L += [f"v_xor_b32 {v(vT+3)}, {2*s_}, {v(vT+2)}",
                  f"v_lshl_add_u32 {v(vKa+s_)}, {v(vT+3)}, 4, {v(vT)}"]
        L += [f"v_lshrrev_b32 {v(vT+2)}, 2, {v(vN)}",
              f"v_lshrrev_b32 {v(vT)}, 5, {v(vLane)}",
              f"v_lshl_add_u32 {v(vT)}, {v(vT)}, 2, {v(vT+2)}",
              f"v_lshlrev_b32 {v(vT)}, 8, {v(vT)}",
              f"v_lshl_add_u32 {v(vT)}, {v(vT+1)}, 13, {v(vT)}",
              f"v_and_b32 {v(vT+3)}, 3, {v(vN)}",
              f"v_lshl_add_u32 {v(vT)}, {v(vT+3)}, 3, {v(vT)}",
              f"v_and_b32 {v(vT+3)}, 1, {v(vG)}",
              f"v_lshl_add_u32 {v(vT)}, {v(vT+3)}, 5, {v(vT)}",
              f"v_add_u32 {v(vT)}, {QIMG}, {v(vT)}",
              f"v_lshlrev_b32 {v(vT+1)}, 1, {v(vT+1)}",
              f"v_xor_b32 {v(vT+2)}, {v(vT+2)}, {v(vT+1)}"]
        for D in range(4):
            L += [f"v_xor_b32 {v(vT+3)}, {D}, {v(vT+2)}",
                  f"v_lshl_add_u32 {v(vVa+D)}, {v(vT+3)}, 6, {v(vT)}"]
        L += [f"v_lshrrev_b32 {v(vT)}, 2, {v(vN)}",
              f"v_xor_b32 {v(vT)}, {v(vT)}, {v(vG)}",
              f"v_and_b32 {v(vT)}, 1, {v(vT)}",
              f"v_add_u32 {v(vT)}, -1, {v(vT)}",
              f"v_and_b32 {v(vSel)}, 0x3f803f80, {v(vT)}",
              f"v_mov_b32 {v(vSel+1)}, {v(vSel)}", f"v_mov_b32 {v(vSel+2)}, {v(vSel)}", f"v_mov_b32 {v(vSel+3)}, {v(vSel)}"]
        return L
    def init_list():
        L = [f"v_mov_b32 {v(vO+k)}, 0" for k in range(64)] + [f"v_mov_b32 {v(vLa+k)}, 0" for k in range(4)]
        L += [f"v_mov_b32 {v(vM)}, 0xff800000", f"v_mov_b32 {v(vMc)}, 0"] + [f"v_mov_b32 {v(vSn+k)}, 0xff800000" for k in range(16)]
        L += [f"s_mov_b32 s{sSLOT}, 1", f"s_mov_b32 s{sIT}, 0", f"s_mov_b32 s{sDK}, 16384"]
        return L
    def q_image(vC, mid=()):
        A(f"v_lshlrev_b32 {v(vT+2)}, 4, {v(vN)}")
        A(f"v_lshl_add_u32 {v(vT+2)}, {v(vG)}, 11, {v(vT+2)}")
        A(f"s_lshr_b32 s{sT1}, s{sW}, 1")
        A(f"s_lshl_b32 s{sT1}, s{sT1}, 13")
        A(f"s_add_u32 s{sT1}, s{sT1}, {QIMG}")
        A(f"s_lshl_b32 s{sT2}, s{sKH}, 8")
        A(f"s_add_u32 s{sT2}, s{sT2}, s{sT1}")
        A(f"v_add_u32 {v(vT+2)}, s{sT2}, {v(vT+2)}")
        for i in range(4):
            A(f"ds_write_b128 {v(vT+2)}, {v(vC+4*i,4)} offset:{(i>>1)*1024 + (i&1)*512}")
        A(f"v_add_u32 {v(vT+3)}, s{sT1}, {v(vL16)}")
        emit(mid)
        A("s_waitcnt lgkmcnt(0)")
        A("s_barrier")
        for s_ in range(8):
            A(f"ds_read_b128 {v(vQf+4*s_,4)}, {v(vT+3)} offset:{s_*1024}")

    def pretouch(g1):
        if not PT:
            return
        A(f"v_mul_u32_u24 {v(vT)}, 36864, {v(vN)}")
        A(f"s_mul_i32 s{sT0}, s{sB}, {16*36864}")
        A(f"s_mul_i32 s{sT1}, s{sW}, 9216")
        A(f"s_add_u32 s{sT0}, s{sT0}, s{sT1}")
        A(f"s_add_u32 s{sT0}, s{sT0}, {PY}")
        A(f"v_add_u32 {v(vT)}, s{sT0}, {v(vT)}")
        A(f"s_lshl_b32 s{sT0}, s{sPR}, 2")
        A(f"s_add_u32 s{sT0}, s{sT0}, s{sW}")
        A(f"s_mul_i32 s{sT0}, s{sT0}, 9216")
        A(f"s_add_u32 s{sT0}, s{sT0}, {OB}")
        A(f"v_writelane_b32 {v(vT)}, s{sT0}, 16")
        A(f"s_add_u32 s{sT0}, s{sT0}, 8192")
        A(f"v_writelane_b32 {v(vT)}, s{sT0}, 17")
        A(f"s_lshl_b32 s{sT0}, s{sB}, 13")
        A(f"s_add_u32 s{sT0}, s{sT0}, {FY}")
        A(f"v_writelane_b32 {v(vT)}, s{sT0}, 18")
        A(f"s_add_u32 s{sT0}, s{sT0}, 4096")
        A(f"v_writelane_b32 {v(vT)}, s{sT0}, 19")
        A.vmem(f"buffer_load_dword {v(vX+18)}, {v(vT)}, s[{SWS}:{SWS+3}], 0 offen sc1", "pt")
        if not g1:
            A(f"v_lshlrev_b32 {v(vT)}, 12, {v(vN)}")
            A(f"s_mul_i32 s{sT0}, s{sB}, 36864")
            A.vmem(f"buffer_load_dword {v(vX+19)}, {v(vT)}, s[{SX}:{SX+3}], s{sT0} offen", "pt")

    SDB = KA + 12
    def epoch_register(lab):
        A(f"s_and_b32 s{SDB+1}, s{SDB+1}, 0xffff")
        A(f"s_mov_b32 s{SDB+2}, 256")
        A(f"s_mov_b32 s{SDB+3}, 0x20000")
        if not EPOCH:
            return
        A(f"s_cmp_eq_u32 s{sW}, 3")
        A(f"s_cbranch_scc0 L_noep{lab}")
        A(f"s_not_b64 s[{sT0}:{sT0+1}], s[{sTIM}:{sTIM+1}]")
        A(f"v_mov_b32 {v(vT)}, s{sT0}")
        A(f"v_mov_b32 {v(vT+1)}, s{sT1}")
        A(f"s_lshl_b32 s{sT0}, s{sB}, 5")
        A("s_mov_b64 exec, 1")
        A(f"buffer_atomic_umax_x2 {v(vT,2)}, off, s[{SDB}:{SDB+3}], s{sT0} sc1")
        A("s_mov_b64 exec, -1")
        A.label(f"L_noep{lab}")
    def epoch_lower(lo, cnt, tmpv, lab):
        if not EPOCH:
            return
        A(f"s_and_b32 s{sM64}, s{cnt}, 63")
        A(f"s_cbranch_scc1 L_noel{lab}")
        A(f"s_lshl_b32 s{sM64}, s{sB}, 5")
        A(f"buffer_load_dwordx2 {v(tmpv,2)}, off, s[{SDB}:{SDB+3}], s{sM64} sc1")
        A("s_waitcnt vmcnt(0)")
        A(f"v_readfirstlane_b32 s{sM64}, {v(tmpv)}")
        A(f"v_readfirstlane_b32 s{sM64+1}, {v(tmpv+1)}")
        A.nop(2)
        A(f"s_not_b64 s[{sM64}:{sM64+1}], s[{sM64}:{sM64+1}]")
        A(f"s_sub_u32 s3, s{sM64}, s{lo}")
        A(f"s_subb_u32 s3, s{sM64+1}, s{lo+1}")
        A(f"s_cselect_b64 s[{lo}:{lo+1}], s[{sM64}:{sM64+1}], s[{lo}:{lo+1}]")
        A.label(f"L_noel{lab}")

    fmas = [f"v_fma_f32 {v(vSo+k)}, {v(vSn+k)}, s{sC}, -{v(vMc)}" for k in range(16)]
    def expcvt():
        L = []
        for k in range(16):
            L.append(f"v_exp_f32 {v(vSo+k)}, {v(vSo+k)}")
            if k >= 3 and k % 2 == 1:
                q = (k - 3) // 2
                L.append(f"v_cvt_pk_bf16_f32 {v(vP+q)}, {v(vSo+2*q)}, {v(vSo+2*q+1)}")
        L.append("s_nop 0")
        L.append(f"v_cvt_pk_bf16_f32 {v(vP+7)}, {v(vSo+14)}, {v(vSo+15)}")
        return L
    pvo = [(2, 0), (3, 0), (2, 1), (3, 1), (0, 0), (1, 0), (0, 1), (1, 1)]
    def vread(f):
        D, t = pvo[f]
        return [f"ds_read_b64_tr_b16 {v(vKV+4*f+2*u,2)}, {v(vVa+D)} offset:{(16*t+8*u)*256}" for u in range(2)]
    def pvm(f):
        D, t = pvo[f]
        return f"{M32} {v(vO+16*D,16)}, {v(vKV+4*f,4)}, {v(vP+4*t,4)}, {v(vO+16*D,16)}"
    def lm(t):
        return f"{M16} {v(vLa,4)}, {v(vSel,4)}, {v(vP+4*t,4)}, {v(vLa,4)}"
    def body(mem, tail_salu, lab):
        if STAMPS and PROF == 0:
            A("s_memrealtime s[96:97]")
            A("s_waitcnt lgkmcnt(0)")
            A(f"s_mov_b32 m0, s{sIT}")
            A("s_nop 0")
            A(f"v_writelane_b32 v255, s96, m0")
        emit([f"ds_read_b128 {v(vKV+4*s_,4)}, {v(vKa+s_)}" for s_ in range(8)])
        emit(mem[0])
        emit(fmas)
        A(f"s_add_u32 s{sSLOT}, s{sSLOT}, 1")
        A(f"s_cmp_ge_u32 s{sSLOT}, 5")
        A(f"s_cselect_b32 s{sDV}, {(-4*16384) & 0xffffffff:#x}, s{sK16}")
        A(f"s_cselect_b32 s{sSLOT}, 0, s{sSLOT}")
        ec = expcvt()
        per = [3, 3, 3, 3, 3, 3, 4, 3]
        for s_ in range(8):
            A(f"s_waitcnt lgkmcnt({7 + s_})")
            A(f"{M32} {v(vSn,16)}, {v(vKV+4*s_,4)}, {v(vQf+4*s_,4)}, {v(vSn,16) if s_ else 0}")
            emit(vread(s_) if s_ < 7 else [])
            for _ in range(per[s_]):
                A(ec.pop(0))
            if s_ == 3:
                emit(mem[1])
        A("s_waitcnt lgkmcnt(12)")
        emit(vread(7))
        kadds = [f"v_add_u32 {v(vKa+k)}, s{sDK}, {v(vKa+k)}" for k in range(8)]
        vadds = [f"v_add_u32 {v(vVa+k)}, s{sDV}, {v(vVa+k)}" for k in range(4)]
        mx = [f"v_max3_f32 {v(vMx)}, {v(vSn)}, {v(vSn+1)}, {v(vSn+2)}", f"v_max3_f32 {v(vT)}, {v(vSn+3)}, {v(vSn+4)}, {v(vSn+5)}",
              f"v_max3_f32 {v(vMx)}, {v(vMx)}, {v(vSn+6)}, {v(vSn+7)}", f"v_max3_f32 {v(vT)}, {v(vT)}, {v(vSn+8)}, {v(vSn+9)}",
              f"v_max3_f32 {v(vMx)}, {v(vMx)}, {v(vSn+10)}, {v(vSn+11)}", f"v_max3_f32 {v(vT)}, {v(vT)}, {v(vSn+12)}, {v(vSn+13)}",
              f"v_max3_f32 {v(vMx)}, {v(vMx)}, {v(vSn+14)}, {v(vSn+15)}", f"v_max_f32 {v(vMx)}, {v(vMx)}, {v(vT)}"]
        gaps = [
            mem[2] + kadds[:3],
            kadds[3:8],
            mem[3] + vadds[:2],
            vadds[2:] + mx[:3],
            mem[4] + mx[3:6],
            mx[6:] + [f"v_mov_b32 {v(vT)}, {v(vMx)}"] + mem[5] + [f"s_mov_b32 s{sDK}, s{sDV}"],
            [f"v_permlane32_swap_b32 {v(vMx)}, {v(vT)}"] + mem[6] + ["s_nop 0", f"v_max_f32 {v(vMx)}, {v(vMx)}, {v(vT)}", f"v_sub_f32 {v(vT)}, {v(vMx)}, {v(vM)}"],
            mem[7] + [f"v_cmp_lt_f32 vcc, s{sTHR}, {v(vT)}"],
        ]
        for f in range(8):
            if f in (1, 3, 5, 7):
                A(f"s_waitcnt lgkmcnt({max(0, 16 - 2 * (f + 2))})")
            A(pvm(f))
            emit(gaps[f])
        A(lm(0)); A(lm(1))
        emit(tail_salu)
        A(f"s_cbranch_vccz L_nors{lab}")
        A(f"s_call_b64 s[{sM64}:{sM64+1}], L_rescale")
        A.label(f"L_nors{lab}")

    A(f"s_cmp_lt_u32 s2, 128")
    A("s_cbranch_scc1 L_g2")

    emit(kv_setup())
    A(f"s_mul_i32 s{sXOFF}, s{sKVH}, {256*1152}")
    A(f"s_mul_i32 s{sT0}, s{sB}, 36864")
    A(f"s_mul_i32 s{sT1}, s{sW}, 9216")
    A(f"s_add_u32 s{sT0}, s{sT0}, s{sT1}")
    A(f"s_add_u32 s{sT0}, s{sT0}, s{sXOFF}")
    A(f"v_lshlrev_b32 {v(vT)}, 7, {v(vLane)}")
    A("s_waitcnt lgkmcnt(0)")
    srd(A, SWT, KA+8, KA+9, 576 * 4096 * 2)
    A.vmem(f"buffer_load_dword {v(vAl)}, {v(vT)}, s[{SWT}:{SWT+3}], s{sT0} offen", "pw")
    A.vmem(f"buffer_load_dword {v(vBe)}, {v(vT)}, s[{SWT}:{SWT+3}], s{sT0} offen offset:1024", "pw")
    emit(kv_srds())
    emit(dma_list("G", first=True))
    emit(dma_list("G"))
    srd(A, SWS, KA+14, KA+15, 1 << 30)
    epoch_register("a")
    emit(common_setup())
    if CODEWARM == 1:
        A(f"s_cmp_eq_u32 s{sB}, 0")
        A("s_cbranch_scc0 L_nocw")
        for x in [f"s_getpc_b64 s[{sT0}:{sT0+1}]", "L_pc:", f"s_sub_u32 s{sT0}, s{sT0}, L_pc-{NAME}", f"s_subb_u32 s{sT1}, s{sT1}, 0",
                  f"v_mov_b32 {v(vT+1)}, s{sW}", f"v_lshlrev_b32 {v(vT+1)}, 13, {v(vT+1)}", f"v_lshl_add_u32 {v(vT+1)}, {v(vLane)}, 7, {v(vT+1)}",
                  f"v_min_u32 {v(vT+1)}, L_code_end-{NAME}-4, {v(vT+1)}",
                  f"global_load_dword {v(vMx)}, {v(vT+1)}, s[{sT0}:{sT0+1}]"]:
            A(x)
        A.label("L_nocw")
    vWm, vTmp = 68, 72
    A(f"v_lshrrev_b32 {v(vT)}, 1, {v(vG)}")
    A(f"v_lshlrev_b32 {v(vT)}, 2, {v(vT)}")
    A(f"v_and_b32 {v(vT+1)}, 1, {v(vG)}")
    A(f"v_add_u32 {v(vT)}, {v(vT)}, {v(vT+1)}")
    A(f"v_mul_u32_u24 {v(vT)}, {4*1152}, {v(vT)}")
    A(f"s_lshl_b32 s{sT0}, s{sW}, 8")
    A(f"v_lshl_add_u32 {v(vWm)}, {v(vN)}, 4, {v(vT)}")
    A(f"v_add_u32 {v(vWm)}, s{sT0}, {v(vWm)}")
    A(f"v_add_u32 {v(vWm+1)}, {8*1152}, {v(vWm)}")
    for g_ in range(2, 5):
        emit(dma_list("G"))
    stamp(0)
    rawat = [88 + 32 * (k % 5) for k in range(8)]
    def wo_issue(k):
        T = rawat[k]
        L = [f"s_add_u32 s{sT2}, s{sXOFF}, {k*32*1152}"]
        for e in range(8):
            L.append((f"buffer_load_dwordx4 {v(T+4*e,4)}, {v(vWm+(e>>2))}, s[{SWT}:{SWT+3}], s{sT2} offen offset:{(e&3)*1152}", f"w{k}"))
        return L
    def wo_transpose(k):
        T = rawat[k]
        L = []; cnt = 0
        for j in range(8):
            for t in range(4):
                tmp = vTmp + (cnt % 8); cnt += 1
                L.append(f"v_perm_b32 {v(tmp)}, {v(T+4*(2*t+1)+j//2)}, {v(T+4*(2*t)+j//2)}, s{sSELH if (j & 1) else sSELL}")
                L.append(f"v_accvgpr_write_b32 {a(32*k+4*j+t)}, {v(tmp)}")
        return L
    A(f"s_lshl_b32 s{sT0}, s{sPR}, 2")
    A(f"s_add_u32 s{sT0}, s{sT0}, s{sW}")
    A(f"s_mul_i32 s{sST}, s{sT0}, 6144")
    A(f"s_add_u32 s{sQOFF}, s{sST}, 4096")
    A(f"s_sub_u32 s{sA0}, s{sTIM}, 500")
    A(f"s_subb_u32 s{sA1}, s{sTIM+1}, 0")
    vQL = 36
    def q_batch(ks=range(6)):
        L = []
        for k in ks:
            L.append((f"buffer_load_dwordx4 {v(vQL+4*k,4)}, {v(vL16)}, s[{SWS}:{SWS+3}], s{sST if k < 4 else sQOFF} offen offset:{(k%4)*1024} sc1", "qb"))
        return L
    emit(wo_issue(0))
    emit(wo_issue(1))
    A("s_waitcnt vmcnt(40)"); A.retired = len(A.vm) - 40
    emit(wo_issue(2))
    emit(wo_issue(3))
    for k in range(8):
        A.wait_vm(f"w{k}")
        stamp(k, 2)
        nx = wo_issue(k + 4) if k + 4 < 8 else []
        emit(spread(wo_transpose(k), nx))
    stamp(1)
    def stamp_check(extra):
        A(f"v_subrev_co_u32 {v(vT+2)}, vcc, s{sA0}, {v(vQL+23)}")
        A(f"v_subb_co_u32 {v(vT+3)}, vcc, {v(vQL+slot3(16))}, {v(vT+3)}, vcc")
        if extra is not None:
            A(f"v_or_b32 {v(vT+3)}, {v(vT+3)}, {v(extra)}")
        A(f"v_cmp_le_u64 vcc, s[{sWIN}:{sWIN+1}], {v(vT+2,2)}")
    A(f"s_mov_b32 s{sT2}, 0")
    if PREPOLL:
        emit(q_batch([5]))
        emit(init_list())
        A("s_branch L_prep_chk")
        A.label("L_prep")
        A(f"s_sleep {SLEEP}")
        A(q_batch([5])[0][0])
        A.label("L_prep_chk")
        A(f"v_mov_b32 {v(vT+3)}, s{sA1}")
        A("s_waitcnt vmcnt(0)")
        stamp_check(None)
        A(f"s_add_u32 s{sT2}, s{sT2}, 1")
        A("s_cbranch_vccz L_pollq_ld")
        A(f"s_cmp_lt_u32 s{sT2}, {SPIN_MAX}")
        A("s_cbranch_scc1 L_prep")
    else:
        emit(q_batch())
        emit(init_list())
        A("s_branch L_pollq_chk")
    A.label("L_pollq")
    A(f"s_sleep {SLEEP}")
    epoch_lower(sA0, sT2, vT, "q")
    A.label("L_pollq_ld")
    for x in q_batch():
        A(x[0])
    A.label("L_pollq_chk")
    A(f"v_mov_b32 {v(vT+3)}, s{sA1}")
    A("s_waitcnt vmcnt(0)")
    for k in range(5):
        A(f"v_xor_b32 {v(vQL+4*k+3)}, {v(vQL+4*k+3)}, {v(vQL+23)}")
    for k in range(16):
        A(f"v_mov_b32 {v(vKV+k)}, {v(vQL+slot3(k))}")
    A(f"v_or3_b32 {v(vQL+3)}, {v(vQL+3)}, {v(vQL+7)}, {v(vQL+11)}")
    A(f"v_or3_b32 {v(vQL+3)}, {v(vQL+3)}, {v(vQL+15)}, {v(vQL+19)}")
    stamp_check(vQL + 3)
    A(f"s_add_u32 s{sT2}, s{sT2}, 1")
    A("s_cbranch_vccz L_pollq_done")
    A(f"s_cmp_lt_u32 s{sT2}, {SPIN_MAX}")
    A("s_cbranch_scc1 L_pollq")
    A.label("L_pollq_done")
    A(f"v_readfirstlane_b32 s{sNON}, {v(vQL+23)}")
    q_image(vKV)
    pretouch(True)
    A(f"s_mov_b32 s{sST}, {N1-2-ND}")
    A("s_waitcnt lgkmcnt(0)")
    stamp(2)
    A.label("L_nodma")
    body([[] for _ in range(8)], [], "f")
    if MAGREE and SK_IT:
        A(f"s_cmp_eq_u32 s{sIT}, 0")
        A("s_cbranch_scc1 L_loop_end")
        A(f"v_lshrrev_b32 {v(vT+2)}, 2, {v(vL16)}")
        A(f"v_add_u32 {v(vT+2)}, s{sRK}, {v(vT+2)}")
        A(f"ds_write_b32 {v(vT+2)}, {v(vM)}")
        A(f"v_xor_b32 {v(vT+1)}, 4096, {v(vT+2)}")
        A("s_waitcnt lgkmcnt(0)")
        A("s_barrier")
        A(f"ds_read_b32 {v(vMx)}, {v(vT+1)}")
        A("s_waitcnt lgkmcnt(0)")
        A(f"s_call_b64 s[{sM64}:{sM64+1}], L_rescale")
    A("s_branch L_loop_end")

    A.label("L_g2")
    A.vm = []; A.retired = 0
    NB = 5
    vRaw = [88 + 32 * i for i in range(NB)]
    vFr = 36
    vWoff = 68; vXoff = 76
    aXf = [64 + 8 * i for i in range(9)]
    A(f"v_lshlrev_b32 {v(vT)}, 16, {v(vG)}")
    A(f"v_lshl_add_u32 {v(vT)}, {v(vN)}, 4, {v(vT)}")
    for r in range(8):
        A(f"v_add_u32 {v(vWoff+r)}, {r*8192}, {v(vT)}")
    A(f"s_mov_b32 s{sST}, s{sB}")
    A(f"s_mul_i32 s{sQOFF}, s{sKH}, {288*8192}")
    A(f"s_lshl_b32 s{sT1}, s{sKVH}, 9")
    A(f"s_add_u32 s{sQOFF}, s{sQOFF}, s{sT1}")
    A(f"s_lshr_b32 s{sT1}, s{sW}, 1")
    A(f"s_lshl_b32 s{sT1}, s{sT1}, 8")
    A(f"s_add_u32 s{sQOFF}, s{sQOFF}, s{sT1}")
    A(f"s_mul_i32 s{sXOFF}, s{sB}, 36864")
    A(f"s_mul_i32 s{sT1}, s{sW}, 9216")
    A(f"s_add_u32 s{sXOFF}, s{sXOFF}, s{sT1}")
    A(f"s_add_u32 s{sT1}, s{sT1}, {XL}")
    A("s_waitcnt lgkmcnt(0)")
    srd(A, SX, KA+0, KA+1, 8 * 32 * 576 * 2)
    for k in range(9):
        if k % 4 == 0:
            A(f"s_mov_b32 m0, s{sT1}")
            A(f"s_add_u32 s{sT1}, s{sT1}, 4096")
        A.vmem(f"buffer_load_dwordx4 {v(vL16)}, s[{SX}:{SX+3}], s{sXOFF} offen offset:{(k%4)*1024} lds", "x")
        if k % 4 == 3:
            A(f"s_add_u32 s{sXOFF}, s{sXOFF}, 4096")
    srd(A, SWT, KA+6, KA+7, 576 * 4096 * 2)
    def qload(step):
        rb = vRaw[step % NB]
        L = [f"s_lshl_b32 s{sT0}, s{sST}, 18", f"s_add_u32 s{sT0}, s{sT0}, s{sQOFF}"]
        for r in range(8):
            L.append((f"buffer_load_dwordx4 {v(rb+4*r,4)}, {v(vWoff+r)}, s[{SWT}:{SWT+3}], s{sT0} offen", f"q{step}"))
        L += [f"s_add_u32 s{sST}, s{sST}, 1", f"s_cmp_eq_u32 s{sST}, 9", f"s_cselect_b32 s{sST}, 0, s{sST}"]
        return L
    emit(qload(0))
    emit(kv_srds())
    srd(A, SWS, KA+14, KA+15, 1 << 30)
    stamp(0)
    xa = [f"v_mul_u32_u24 {v(vT)}, 1152, {v(vN)}",
          f"v_lshl_add_u32 {v(vT)}, {v(vG)}, 4, {v(vT)}",
          f"v_mov_b32 {v(vT+1)}, s{sKH}",
          f"v_mul_u32_u24 {v(vT+2)}, {16*1152 + 576}, {v(vT+1)}",
          f"v_add3_u32 {v(vXoff)}, {v(vT)}, {v(vT+2)}, s{sK16}",
          f"v_mul_u32_u24 {v(vT+2)}, {16*1152 - 576}, {v(vT+1)}",
          f"v_sub_u32 {v(vXoff+1)}, {v(vT)}, {v(vT+2)}",
          f"v_add_u32 {v(vXoff+1)}, {16*1152 + 16384}, {v(vXoff+1)}"]
    emit(spread(kv_setup() + common_setup() + xa, qload(1) + qload(2)))
    A.wait_vm("x")
    A("s_barrier")
    A(f"s_mov_b32 s{sT1}, s{sB}")
    for step in range(9):
        A(f"s_lshl_b32 s{sT2}, s{sT1}, 6")
        for u in range(2):
            A(f"v_add_u32 {v(vT+u)}, s{sT2}, {v(vXoff+u)}")
            A(f"ds_read_b128 {a(aXf[step]+4*u,4)}, {v(vT+u)} offset:{XL - 16384}")
        A(f"s_add_u32 s{sT1}, s{sT1}, 1"); A(f"s_cmp_eq_u32 s{sT1}, 9"); A(f"s_cselect_b32 s{sT1}, 0, s{sT1}")
        if step == 5:
            A("s_waitcnt lgkmcnt(4)")
    emit(qload(3))
    A("s_waitcnt lgkmcnt(0)")
    A("s_barrier")
    ng = 0
    for step in range(9):
        rb = vRaw[step % NB]
        A.wait_vm(f"q{step}")
        stamp(step, 2)
        comp = []
        for j in range(8):
            for t in range(4):
                sel = sSELH if (j & 1) else sSELL
                comp.append(f"v_perm_b32 {v(vFr+4*j+t)}, {v(rb+4*(2*t+1)+j//2)}, {v(rb+4*(2*t)+j//2)}, s{sel}")
        comp.append("s_nop 1")
        for j in range(8):
            for u in range(2):
                acc = a((u * 8 + j) * 4, 4)
                comp.append(f"{M16} {acc}, {v(vFr+4*j,4)}, {a(aXf[step]+4*u,4)}, {acc if step else 0}")
        nx = []
        if step + 4 < 9:
            nx = qload(step + 4)
        elif ng < NGB:
            nx = dma_list(f"G{ng}", first=(ng == 0)); ng += 1
        emit(spread(comp, nx))
    A(f"s_memrealtime s[{sNON}:{sNON+1}]")
    stamp(1)
    A(f"s_lshl_b32 s{sT2}, s{sW}, 13")
    A(f"s_add_u32 s{sT2}, s{sT2}, {XL}")
    A(f"s_xor_b32 s{sT0}, s{sT2}, 8192")
    A(f"v_add_u32 {v(vT+1)}, s{sT0}, {v(vL16)}")
    A(f"v_add_u32 {v(vT+2)}, s{sT2}, {v(vL16)}")
    A.nop(2)
    for j in range(8):
        A(f"ds_write_b128 {v(vT+1)}, {a((8+j)*4,4)} offset:{j*1024}")
    vDq = 184; vG8 = 216; vC = 152
    for k in range(32):
        A(f"v_accvgpr_read_b32 {v(vDq+k)}, {a(k)}")
    if GX:
        emit(dma_list(f"G{ng}")); ng += 1
    A("s_waitcnt lgkmcnt(0)")
    A("s_barrier")
    for j in range(8):
        A(f"ds_read_b128 {v(vFr+4*j,4)}, {v(vT+2)} offset:{j*1024}")
    A(f"s_lshl_b32 s{sT0}, s{sPR}, 2")
    A(f"s_add_u32 s{sT0}, s{sT0}, s{sW}")
    A(f"s_mul_i32 s{sT0}, s{sT0}, 6144")
    A(f"s_add_u32 s{sT1}, s{sT0}, 4096")
    for k in range(6):
        A(f"v_mov_b32 {v(vG8+4*k+3)}, s{sNON}")
    A(f"v_mov_b32 {v(vG8+slot3(16))}, s{sNON+1}")
    A(f"v_mov_b32 {v(vG8+slot3(17))}, 0")
    A("s_waitcnt lgkmcnt(0)")
    for k in range(0, 32, 2):
        A(f"v_pk_add_f32 {v(vDq+k,2)}, {v(vDq+k,2)}, {v(vFr+k,2)}")
    for i in range(4):
        for t in range(4):
            q = 4 * i + t
            A(f"v_cvt_pk_bf16_f32 {v(vG8+slot3(q))}, {v(vDq+4*(2*t)+i)}, {v(vDq+4*(2*t+1)+i)}")
            if q % 3 == 2 or q == 15:
                k = q // 3
                A.vmem(f"buffer_store_dwordx4 {v(vG8+4*k,4)}, {v(vL16)}, s[{SWS}:{SWS+3}], s{sT0 if k < 4 else sT1} offen offset:{(k%4)*1024} sc1", "qs")
    stamp(6)
    epoch_register("b")
    for k in range(16):
        A(f"v_mov_b32 {v(vC+k)}, {v(vG8+slot3(k))}")
    mid = []
    while ng < 3:
        mid += dma_list(f"G{ng}", first=(ng == 0)); ng += 1
    q_image(vC, mid)
    emit(spread(init_list(), dma_list("G3")))
    A(f"s_mov_b32 s{sST}, 1000")
    srd(A, SX, KA+10, KA+11, 8 * 32 * 576 * 2)
    pretouch(False)
    A("s_waitcnt lgkmcnt(0)")
    stamp(2)

    A.label("L_loop")
    if SK_IT:
        A(f"s_cmp_gt_u32 s{sIT}, {SK_IT}")
        A("s_cbranch_scc0 L_w24")
        A("s_waitcnt vmcnt(16)")
        A.label("L_w24")
    A("s_waitcnt vmcnt(24)")
    A("s_barrier")
    if SK_IT:
        A(f"s_cmp_eq_u32 s{sIT}, {SK_IT}")
        A("s_cbranch_scc1 L_nodma")
    dl = dma_list()
    body([dl[0:3], [dl[3]], [dl[4]], dl[5:9], [dl[10]], [dl[11]], [dl[12]], [dl[13]]], dl[14:], "m")
    A.label("L_loop_end")
    A(f"s_cmp_eq_u32 s{sIT}, s{sST}")
    A("s_cbranch_scc1 L_special")
    A.label("L_special_ret")
    A(f"s_add_u32 s{sIT}, s{sIT}, 1")
    A(f"s_add_u32 s{sT0}, s{sIT}, {ND}")
    A(f"s_cmp_lt_u32 s{sT0}, s{sN}")
    A("s_cbranch_scc1 L_loop")

    for p in range(4):
        A(f"v_add_u32 {v(vKoff+p)}, {128*1152 - 16384}, {v(vKoff+p)}")
    A(f"s_lshl_b32 s{sQOFF}, s{sPR}, 2")
    A(f"s_add_u32 s{sQOFF}, s{sQOFF}, s{sW}")
    A(f"s_mul_i32 s{sQOFF}, s{sQOFF}, 6144")
    A(f"s_add_u32 s{sQOFF}, s{sQOFF}, {OB}")
    A(f"s_cmp_lt_u32 s2, 128")
    A(f"s_cselect_b32 s{sST}, {OOB:#x}, s{sQOFF}")
    A(f"s_add_u32 s{sMV}, s{sST}, 4096")
    A(f"s_add_u32 s{sOFFc}, s{sST}, 8192")
    def orec1(op, k, regs):
        return f"{op} {v(vR+4*k,4)}, {v(vL16)}, s[{SWS}:{SWS+3}], s{regs[k//4]} offen offset:{(k%4)*1024} sc1"
    RL = (sST, sMV, sOFFc)
    A.vm = [f"D{g_}" for g_ in range(3 - ND, 4) for _ in range(8)]; A.retired = 0
    for d in range(3 - ND, 3):
        A.wait_vm(f"D{d}")
        A("s_barrier")
        mem = [[] for _ in range(8)]
        if d == 3 - ND:
            b8 = dma_list("b8", first=True)
            mem[0] = b8[0:3]; mem[1] = [b8[3]]; mem[2] = [b8[4]]; mem[3] = [b8[5]]
        if d == RAT:
            for k in range(6):
                mem[min(7, k)].append((orec1("buffer_load_dwordx4", k, RL), "rec"))
        body(mem, [f"s_add_u32 s{sIT}, s{sIT}, 1"], f"d{d}")

    def slot_after(dst, src):
        A(f"s_add_u32 s{dst}, s{src}, 16384")
        A(f"s_cmp_ge_u32 s{dst}, {VRING}")
        A(f"s_cselect_b32 s{dst}, 0, s{dst}")
    A(f"s_sub_u32 s{sRK}, s{sRK}, s{sM0B}")
    slot_after(sA0, sRK)
    slot_after(sA1, sA0)
    slot_after(sMK, sA1)
    slot_after(sLIM, sMK)
    A(f"s_lshl_b32 s{sT0}, s{sW}, 9")
    A(f"s_add_u32 s{sT0}, s{sT0}, s{sMK}")
    A(f"s_add_u32 s{sT0}, s{sT0}, {VRING}")
    A(f"v_lshrrev_b32 {v(vT+2)}, 2, {v(vL16)}")
    A(f"v_add_u32 {v(vT+2)}, s{sT0}, {v(vT+2)}")
    A(f"ds_write_b32 {v(vT+2)}, {v(vM)}")
    A(f"v_xor_b32 {v(vT+1)}, 512, {v(vT+2)}")
    A("s_waitcnt lgkmcnt(0)")
    A("s_barrier")
    A(f"ds_read_b32 {v(vMx)}, {v(vT+1)}")
    A(f"s_cmp_lt_u32 s{sW}, 2")
    A(f"s_cselect_b32 s{sT1}, s{sA0}, s{sA1}")
    A(f"s_lshl_b32 s{sT2}, s{sKH}, 13")
    A(f"s_add_u32 s{sT1}, s{sT1}, s{sT2}")
    A(f"s_xor_b32 s{sT2}, s{sT1}, 8192")
    A(f"v_add_u32 {v(vT+3)}, s{sT2}, {v(vL16)}")
    A(f"v_add_u32 {v(vX+2)}, s{sT1}, {v(vL16)}")
    A(f"v_and_b32 {v(vX)}, 1, {v(vG)}")
    A(f"v_lshlrev_b32 {v(vX)}, 12, {v(vX)}")
    A(f"v_lshrrev_b32 {v(vX+1)}, 1, {v(vG)}")
    A(f"v_lshl_add_u32 {v(vX)}, {v(vX+1)}, 8, {v(vX)}")
    A(f"v_lshl_add_u32 {v(vX)}, {v(vN)}, 4, {v(vX)}")
    A(f"s_lshr_b32 s{sT0}, s{sW}, 1")
    A(f"s_lshl_b32 s{sT0}, s{sT0}, 13")
    A(f"s_lshl_b32 s{sT1}, s{sKH}, 11")
    A(f"s_add_u32 s{sT0}, s{sT0}, s{sT1}")
    A(f"s_add_u32 s{sT0}, s{sT0}, s{sMK}")
    A(f"v_add_u32 {v(vX)}, s{sT0}, {v(vX)}")
    A("s_waitcnt lgkmcnt(0)")
    A(f"v_cmp_gt_f32 vcc, {v(vMx)}, {v(vM)}")
    A("s_cbranch_vccz L_magreed")
    A(f"s_call_b64 s[{sM64}:{sM64+1}], L_rescale")
    A.label("L_magreed")
    emit(fmas)
    emit(expcvt())
    A.nop(1)
    A(lm(0)); A(lm(1))
    if RAT == 3:
        for k in range(6):
            A.vmem(orec1("buffer_load_dwordx4", k, RL), "rec")
    A(f"v_lshrrev_b32 {v(vKa)}, 1, {v(vG)}")
    A(f"v_lshlrev_b32 {v(vKa)}, 2, {v(vKa)}")
    A(f"v_and_b32 {v(vKa+1)}, 1, {v(vG)}")
    A(f"v_add_u32 {v(vKa)}, {v(vKa)}, {v(vKa+1)}")
    A(f"v_lshrrev_b32 {v(vKa+1)}, 2, {v(vN)}")
    A(f"v_lshl_add_u32 {v(vKa)}, {v(vKa)}, 2, {v(vKa+1)}")
    A(f"v_and_b32 {v(vKa+1)}, 3, {v(vN)}")
    A(f"v_lshlrev_b32 {v(vKa+1)}, 3, {v(vKa+1)}")
    A(f"ds_write_b32 {v(vT+2)}, {v(vLa)} offset:256")
    A(f"v_lshl_add_u32 {v(vKa)}, {v(vKa)}, 7, {v(vKa+1)}")
    A(f"s_lshl_b32 s{sT1}, s{sW}, 5")
    A(f"s_add_u32 s{sT2}, s{sT1}, s{sRK}")
    A(f"s_add_u32 s{sT1}, s{sT1}, s{sLIM}")
    A(f"v_add_u32 {v(vKa+1)}, s{sT2}, {v(vKa)}")
    A(f"v_add_u32 {v(vKa)}, s{sT1}, {v(vKa)}")
    A(f"v_add_u32 {v(vKa+2)}, s{sMK}, {v(vL16)}")
    A(f"v_mov_b32 {v(vKa+3)}, s{sNON}")
    A(f"s_and_b32 s{sT2}, s2, 15")
    A(f"s_lshl_b32 s{sT0}, s{sB}, 4")
    A(f"s_add_u32 s{sT0}, s{sT0}, s{sT2}")
    A(f"s_mul_i32 s{sT0}, s{sT0}, 36864")
    A(f"s_mul_i32 s{sT1}, s{sW}, 9216")
    A(f"s_add_u32 s{sT0}, s{sT0}, s{sT1}")
    A(f"s_add_u32 s{sXOFF}, s{sT0}, {PY}")
    A("s_waitcnt lgkmcnt(0)")
    A.wait_vm("b8")
    A("s_barrier")
    stamp(3)
    vL1 = vX + 3
    vU = vQf
    def rec_check():
        L = [f"v_xor_b32 {v(vR+4*k+3)}, {v(vR+4*k+3)}, {v(vKa+3)}" for k in range(6)]
        L += [f"v_or3_b32 {v(vR+3)}, {v(vR+3)}, {v(vR+7)}, {v(vR+11)}",
              f"v_or3_b32 {v(vR+15)}, {v(vR+15)}, {v(vR+19)}, {v(vR+23)}",
              f"v_or_b32 {v(vR+3)}, {v(vR+3)}, {v(vR+15)}",
              f"v_cmp_ne_u32 vcc, 0, {v(vR+3)}"]
        return L
    def rec_prep():
        L = [f"v_max_f32 {v(vMx)}, {v(vM)}, {v(vR+slot3(16))}",
             f"v_mul_f32 {v(vMc)}, s{sC}, {v(vMx)}",
             f"v_fma_f32 {v(vAl)}, {v(vM)}, s{sC}, -{v(vMc)}",
             f"v_fma_f32 {v(vBe)}, {v(vR+slot3(16))}, s{sC}, -{v(vMc)}",
             f"v_exp_f32 {v(vAl)}, {v(vAl)}",
             f"v_exp_f32 {v(vBe)}, {v(vBe)}"]
        U = []
        for k in range(16):
            U += [f"v_and_b32 {v(vU+2*k+1)}, 0xffff0000, {v(vR+slot3(k))}", f"v_lshlrev_b32 {v(vU+2*k)}, 16, {v(vR+slot3(k))}"]
        L += U[:2]
        L += [f"v_mul_f32 {v(vMx)}, {v(vBe)}, {v(vR+slot3(17))}",
              f"v_fma_f32 {v(vMx)}, {v(vAl)}, {v(vL1)}, {v(vMx)}",
              f"v_rcp_f32 {v(vMx)}, {v(vMx)}"]
        L += U[2:]
        L += [f"v_mul_f32 {v(vAl)}, {v(vAl)}, {v(vMx)}", f"v_mul_f32 {v(vBe)}, {v(vBe)}, {v(vMx)}"]
        L += [f"v_mul_f32 {v(vU+k)}, {v(vU+k)}, {v(vBe)}" for k in range(32)]
        return L
    def final_pv(fillv):
        def take(n):
            for _ in range(n):
                if fillv:
                    A(fillv.pop(0))
        take(5)
        A("s_waitcnt lgkmcnt(8)")
        A(pvm(2)); take(6)
        A(pvm(3)); take(6)
        A("s_waitcnt lgkmcnt(4)")
        A(pvm(4)); take(6)
        dsw = [f"ds_write_b128 {v(vT+3)}, {v(vO+32+4*k,4)} offset:{k*1024}" for k in range(8)]
        A(pvm(5))
        A("s_waitcnt lgkmcnt(0)")
        emit(dsw[:4]); take(2)
        A(pvm(6))
        emit(dsw[4:]); take(2)
        A(pvm(7))
        take(1000)
    A(f"ds_read_b32 {v(vT)}, {v(vT+1)} offset:256")
    for f in range(7):
        emit(vread(f))
    A(f"s_cmp_lt_u32 s2, 128")
    A("s_waitcnt lgkmcnt(10)")
    A(pvm(0))
    emit(vread(7))
    A(f"v_add_f32 {v(vL1)}, {v(vLa)}, {v(vT)}")
    A(pvm(1))
    A("s_waitcnt vmcnt(0)")
    A("s_cbranch_scc1 L_g2_tail")
    final_pv(rec_check() + rec_prep())

    A("s_cbranch_vccnz L_pollo")
    A.label("L_pollo_done")
    A("s_waitcnt lgkmcnt(0)")
    A("s_barrier")
    if not DBG:
        stamp(11)
    for k in range(8):
        A(f"ds_read_b128 {v(vO+32+4*k,4)}, {v(vX+2)} offset:{k*1024}")
    for c in range(4):
        A(f"s_waitcnt lgkmcnt({6 - 2*c + c})")
        for k in range(4 * c, 4 * c + 4):
            A(f"v_pk_add_f32 {v(vO+2*k,2)}, {v(vO+2*k,2)}, {v(vO+32+2*k,2)}")
        for k in range(4 * c, 4 * c + 4):
            A(f"v_pk_fma_f32 {v(vO+2*k,2)}, {v(vO+2*k,2)}, {v(vAl,2)}, {v(vU+2*k,2)} op_sel_hi:[1,0,1]")
        for k in range(4 * c, 4 * c + 4):
            A(f"v_cvt_pk_bf16_f32 {v(vX+4+k)}, {v(vO+2*k)}, {v(vO+2*k+1)}")
        A(f"ds_write_b128 {v(vX)}, {v(vX+4+4*c,4)} offset:{(c>>1)*1024 + (c&1)*512}")
    vB8 = 216
    A(f"s_mov_b32 s{sT0}, s{sXOFF}")
    A("s_waitcnt lgkmcnt(0)")
    A("s_barrier")
    stamp(4)
    def wfr(ks, j):
        return a(32 * ks + 4 * j, 4) if j < 8 else v(vB8 + 4 * ks, 4)
    def acc(rh, j):
        return 144 + 4 * (rh * 9 + j)
    def ofr(rh, ks):
        return v(vQf + 4 * ks, 4) if rh == 0 else v(vO + 4 * ks, 4)
    vPk = 120
    b8r = [f"ds_read_b64_tr_b16 {v(vB8+4*ks+2*u,2)}, {v(vKa+(ks>>2))} offset:{(32*(ks&3)+8*u)*128}" for ks in range(8) for u in range(2)]
    o0 = [f"ds_read_b128 {ofr(0,ks)}, {v(vKa+2)} offset:{(((ks>>2)*2+0)*4+(ks&3))*1024}" for ks in range(8)]
    o1 = [f"ds_read_b128 {ofr(1,ks)}, {v(vKa+2)} offset:{(((ks>>2)*2+1)*4+(ks&3))*1024}" for ks in range(8)]
    for ks in range(4):
        A(o0[ks]); A(b8r[2*ks]); A(b8r[2*ks+1])
    for ks in range(8):
        A(f"s_waitcnt lgkmcnt({9 if ks < 5 else 9})")
        nxt = [o0[ks+4], b8r[2*(ks+4)], b8r[2*(ks+4)+1]] if ks < 4 else [o1[2*(ks-4)], o1[2*(ks-4)+1], o1[2*(ks-4)+1]]
        for j in range(9):
            d = v(acc(0, j), 4)
            A(f"{M16} {d}, {ofr(0,ks)}, {wfr(ks,j)}, {d if ks else 0}")
            if j < 3:
                A(nxt[j])
    A("s_waitcnt lgkmcnt(0)")
    def pack_store(rh):
        L = []
        for i in range(4):
            d = vPk + 4 * i
            for q in range(4):
                L.append(f"v_cvt_pk_bf16_f32 {v(d+q)}, {v(acc(rh,2*q)+i)}, {v(acc(rh,2*q+1)+i)}")
            L.append(f"buffer_store_dwordx4 {v(d,4)}, {v(vL16)}, s[{SWS}:{SWS+3}], s{sT0} offen offset:{i*1024} sc1")
        L.append(f"s_add_u32 s{sT0}, s{sT0}, 4096")
        for q in range(2):
            L.append(f"v_cvt_pk_bf16_f32 {v(136+2*rh+q)}, {v(acc(rh,8)+2*q)}, {v(acc(rh,8)+2*q+1)}")
        return L
    m1 = []
    for ks in range(8):
        for j in range(9):
            d = v(acc(1, j), 4)
            m1.append(f"{M16} {d}, {ofr(1,ks)}, {wfr(ks,j)}, {d if ks else 0}")
    misc = [f"s_lshl_b32 s{sT1}, s{sB}, 13",
            f"s_lshl_b32 s{sQOFF}, s{sW}, 7",
            f"s_add_u32 s{sT1}, s{sT1}, s{sQOFF}",
            f"s_lshl_b32 s{sQOFF}, s{sT2}, 3",
            f"s_add_u32 s{sT1}, s{sT1}, s{sQOFF}",
            f"s_add_u32 s{sT1}, s{sT1}, {FY}",
            f"v_lshlrev_b32 {v(vT)}, 9, {v(vN)}",
            f"s_memrealtime s[{sNON}:{sNON+1}]"]
    emit(m1[:10])
    emit(weave(m1[10:], pack_store(0) + misc, 1))
    stamp(5)
    A.nop(8)
    emit(pack_store(1))
    A(f"buffer_store_dwordx4 {v(136,4)}, {v(vL16)}, s[{SWS}:{SWS+3}], s{sT0} offen sc1")
    stamp(7)
    A("s_waitcnt lgkmcnt(0)")
    A(f"v_mov_b32 {v(vT+2)}, s{sNON}")
    A(f"v_mov_b32 {v(vT+3)}, s{sNON+1}")
    A("s_waitcnt vmcnt(0)")
    A("s_mov_b64 exec, 0xffff")
    A(f"buffer_store_dwordx2 {v(vT+2,2)}, {v(vT)}, s[{SWS}:{SWS+3}], s{sT1} offen sc1")
    A("s_mov_b64 exec, -1")
    stamp(8)
    A("s_branch L_fin")

    A.label("L_g2_tail")
    g2f = [f"v_mov_b32 {v(vR+4*k+3)}, s{sNON}" for k in range(6)]
    g2f += [f"v_mov_b32 {v(vR+slot3(16))}, {v(vM)}", f"v_mov_b32 {v(vR+slot3(17))}, {v(vL1)}",
            f"s_add_u32 s{sMV}, s{sQOFF}, 4096", f"s_add_u32 s{sOFFc}, s{sQOFF}, 8192", "s_nop 0", "s_nop 3", "s_nop 0", "s_nop 0", "s_nop 0", "s_nop 0", "s_nop 0", "s_nop 3"]
    final_pv(g2f)
    RS = (sQOFF, sMV, sOFFc)
    A("s_waitcnt lgkmcnt(0)")
    A("s_barrier")
    for k in range(8):
        A(f"ds_read_b128 {v(vO+32+4*k,4)}, {v(vX+2)} offset:{k*1024}")
    for k in range(8):
        A(f"s_waitcnt lgkmcnt({7-k})")
        for z in range(2):
            A(f"v_pk_add_f32 {v(vO+4*k+2*z,2)}, {v(vO+4*k+2*z,2)}, {v(vO+32+4*k+2*z,2)}")
        for z in range(2):
            q = 2 * k + z
            A(f"v_cvt_pk_bf16_f32 {v(vR+slot3(q))}, {v(vO+4*k+2*z)}, {v(vO+4*k+2*z+1)}")
            if q % 3 == 2 or q == 15:
                A(orec1("buffer_store_dwordx4", q // 3, RS))
    stamp(4)
    sJ = sST
    srd(A, SX, KA+10, KA+11, 8 * 32 * 576 * 2)
    A(f"s_and_b32 s{sJ}, s2, 15")
    vSA = vQf
    A(f"v_and_b32 {v(vT)}, 1, {v(vN)}")
    A(f"v_lshlrev_b32 {v(vT)}, 4, {v(vT)}")
    A(f"v_mov_b32 {v(vT+1)}, 0x3f80")
    A(f"v_lshlrev_b32 {v(vT+1)}, {v(vT)}, {v(vT+1)}")
    A(f"v_lshrrev_b32 {v(vT)}, 1, {v(vN)}")
    for t in range(4):
        A(f"v_cmp_eq_u32 vcc, {t}, {v(vT)}")
        A.nop(2)
        A(f"v_cndmask_b32 {v(vSA+t)}, 0, {v(vT+1)}, vcc")
    A(f"s_lshl_b32 s{sT0}, s{sB}, 4")
    A(f"s_add_u32 s{sT0}, s{sT0}, s{sJ}")
    A(f"s_lshl_b32 s{sT0}, s{sT0}, 2")
    A(f"s_add_u32 s{sT0}, s{sT0}, s{sW}")
    A(f"s_lshl_b32 s{sT0}, s{sT0}, 7")
    A(f"s_add_u32 s{sQOFF}, s{sT0}, {FY}")
    A(f"v_lshlrev_b32 {v(vT+1)}, 3, {v(vN)}")
    A(f"v_mul_u32_u24 {v(vT)}, 36864, {v(vG)}")
    A(f"v_lshl_add_u32 {v(vT)}, {v(vN)}, 4, {v(vT)}")
    A(f"s_mul_i32 s{sT0}, s{sB}, {16*36864}")
    A(f"s_mul_i32 s{sT1}, s{sW}, 9216")
    A(f"s_add_u32 s{sT0}, s{sT0}, s{sT1}")
    A(f"s_add_u32 s{sT0}, s{sT0}, {PY}")
    A(f"s_lshl_b32 s{sT1}, s{sJ}, 8")
    A(f"s_add_u32 s{sXOFF}, s{sT0}, s{sT1}")
    A(f"s_add_u32 s{sXOFF}, s{sXOFF}, 8192")
    A(f"s_lshl_b32 s{sT1}, s{sJ}, 9")
    A(f"s_add_u32 s{sT0}, s{sT0}, s{sT1}")
    A(f"s_lshr_b32 s{sT1}, s{sJ}, 3")
    A(f"s_lshl_b32 s{sT1}, s{sT1}, 4")
    A(f"s_and_b32 s{sT2}, s{sJ}, 1")
    A(f"s_lshl_b32 s{sT2}, s{sT2}, 3")
    A(f"s_add_u32 s{sT1}, s{sT1}, s{sT2}")
    A(f"s_bfe_u32 s{sT2}, s{sJ}, 0x20001")
    A(f"s_add_u32 s{sT1}, s{sT1}, s{sT2}")
    A(f"s_lshl_b32 s{sT2}, s{sB}, 5")
    A(f"s_add_u32 s{sT1}, s{sT1}, s{sT2}")
    A(f"s_mul_i32 s{sT1}, s{sT1}, 1152")
    A(f"s_lshl_b32 s{sT2}, s{sW}, 8")
    A(f"s_add_u32 s{sT1}, s{sT1}, s{sT2}")
    A(f"s_add_u32 s{sOFF}, s{sT1}, {4*1152}")
    A(f"v_lshlrev_b32 {v(vMx)}, 4, {v(vN)}")
    A(f"v_lshl_add_u32 {v(vMx)}, {v(vG)}, 3, {v(vMx)}")
    A(f"s_mov_b32 s{sT2}, 0")
    A(f"s_mov_b64 s[{sA0}:{sA1}], s[{sTIM}:{sTIM+1}]")
    A("s_branch L_polly_ld")
    A.label("L_polly")
    A(f"s_sleep {SLEEPY}")
    epoch_lower(sA0, sT2, vT + 2, "y")
    A.label("L_polly_ld")
    A(f"buffer_load_dwordx2 {v(vT+2,2)}, {v(vT+1)}, s[{SWS}:{SWS+3}], s{sQOFF} offen sc1")
    A(f"v_mov_b32 {v(vBe)}, s{sA1}")
    A("s_waitcnt vmcnt(0)")
    A(f"v_subrev_co_u32 {v(vAl)}, vcc, s{sA0}, {v(vT+2)}")
    A(f"v_subb_co_u32 {v(vBe)}, vcc, {v(vT+3)}, {v(vBe)}, vcc")
    A(f"v_cmp_le_u64 vcc, s[{sWIN}:{sWIN+1}], {v(vAl,2)}")
    A(f"s_add_u32 s{sT2}, s{sT2}, 1")
    A("s_cbranch_vccz L_polly_done")
    A(f"s_cmp_lt_u32 s{sT2}, {SPIN_MAX}")
    A("s_cbranch_scc1 L_polly")
    A.label("L_polly_done")
    stamp(9)
    vRR = vO
    for k in range(4):
        A(f"buffer_load_dwordx4 {v(vRR+4*k,4)}, {v(vT)}, s[{SWS}:{SWS+3}], s{sT0} offen sc1")
        A(f"buffer_load_dwordx4 {v(vRR+16+4*k,4)}, {v(vT)}, s[{SWS}:{SWS+3}], s{sT0} offen offset:256 sc1")
        A(f"s_add_u32 s{sT0}, s{sT0}, {4*36864}")
    A(f"s_cmp_lt_u32 s{sJ}, 4")
    A("s_cbranch_scc0 L_no_extra_ld")
    for k in range(4):
        A(f"buffer_load_dwordx4 {v(vRR+32+4*k,4)}, {v(vT)}, s[{SWS}:{SWS+3}], s{sXOFF} offen sc1")
        A(f"s_add_u32 s{sXOFF}, s{sXOFF}, {4*36864}")
    A.label("L_no_extra_ld")
    A("s_waitcnt vmcnt(0)")
    vS = vSo
    for k in range(4):
        for u in range(2):
            A(f"{M16} {v(vS+4*u,4)}, {v(vSA,4)}, {v(vRR+16*u+4*k,4)}, {v(vS+4*u,4) if k else 0}")
    A.nop(8)
    for u in range(2):
        A(f"v_cvt_pk_bf16_f32 {v(vSn+2*u)}, {v(vS+4*u)}, {v(vS+4*u+1)}")
        A(f"v_cvt_pk_bf16_f32 {v(vSn+2*u+1)}, {v(vS+4*u+2)}, {v(vS+4*u+3)}")
    A("s_mov_b32 exec_hi, 0")
    A(f"buffer_store_dwordx2 {v(vSn,2)}, {v(vMx)}, s[{SX}:{SX+3}], s{sT1} offen{POLO}")
    A(f"buffer_store_dwordx2 {v(vSn+2,2)}, {v(vMx)}, s[{SX}:{SX+3}], s{sOFF} offen{POLO}")
    A(f"s_mov_b64 exec, -1")
    A(f"s_cmp_lt_u32 s{sJ}, 4")
    A("s_cbranch_scc0 L_fin")
    for k in range(4):
        A(f"{M16} {v(vS+8,4)}, {v(vSA,4)}, {v(vRR+32+4*k,4)}, {v(vS+8,4) if k else 0}")
    A(f"s_lshl_b32 s{sT0}, s{sJ}, 2")
    A(f"s_lshl_b32 s{sT1}, s{sB}, 5")
    A(f"s_add_u32 s{sT0}, s{sT0}, s{sT1}")
    A(f"s_mul_i32 s{sT0}, s{sT0}, 1152")
    A(f"s_lshl_b32 s{sT1}, s{sW}, 5")
    A(f"s_add_u32 s{sT0}, s{sT0}, s{sT1}")
    A(f"s_add_u32 s{sT0}, s{sT0}, 1024")
    A(f"v_lshlrev_b32 {v(vT)}, 1, {v(vN)}")
    A(f"v_mul_u32_u24 {v(vT+1)}, {16*1152}, {v(vG)}")
    A(f"v_add_u32 {v(vT)}, {v(vT)}, {v(vT+1)}")
    A.nop(4)
    A(f"v_cvt_pk_bf16_f32 {v(vS+12)}, {v(vS+8)}, {v(vS+9)}")
    A(f"v_cvt_pk_bf16_f32 {v(vS+13)}, {v(vS+10)}, {v(vS+11)}")
    A("s_mov_b32 exec_hi, 0")
    A(f"buffer_store_short {v(vS+12)}, {v(vT)}, s[{SX}:{SX+3}], s{sT0} offen{POLO}")
    A(f"buffer_store_short_d16_hi {v(vS+12)}, {v(vT)}, s[{SX}:{SX+3}], s{sT0} offen offset:1152{POLO}")
    A(f"buffer_store_short {v(vS+13)}, {v(vT)}, s[{SX}:{SX+3}], s{sT0} offen offset:2304{POLO}")
    A(f"buffer_store_short_d16_hi {v(vS+13)}, {v(vT)}, s[{SX}:{SX+3}], s{sT0} offen offset:3456{POLO}")
    A(f"s_mov_b64 exec, -1")
    A.label("L_fin")
    if DIAG >= 0:
        A("s_waitcnt vmcnt(0)")
        A("s_memrealtime s[76:77]")
        A("s_waitcnt lgkmcnt(0)")
        A(f"s_cmp_lt_u32 s2, 128")
        A("s_cbranch_scc0 L_end")
        A(f"s_sub_u32 s{sT0}, s{56+2*DIAG}, s{sTIM}")
        A(f"s_min_u32 s{sT0}, s{sT0}, 20000")
        A.label("L_diag")
        A("s_memrealtime s[78:79]")
        A("s_waitcnt lgkmcnt(0)")
        A(f"s_sub_u32 s{sT1}, s78, s76")
        A(f"s_cmp_lt_u32 s{sT1}, s{sT0}")
        A("s_cbranch_scc1 L_diag")
        A("s_endpgm")
    if STAMPS:
        A("s_waitcnt vmcnt(0)")
        if not DBG:
            stamp(10)
        if DBG:
            A("s_memtime s[76:77]")
            A("s_waitcnt lgkmcnt(0)")
            A(f"s_and_b32 s{sT0}, s2, 127")
            A(f"s_lshl_b32 s{sT0}, s{sT0}, 2")
            A(f"s_add_u32 s{sT0}, s{sT0}, s{sW}")
            A(f"s_cmp_eq_u32 s{sT0}, 20")
            A("s_cbranch_scc0 L_end")
            srd(A, SX, KA+12, KA+13, 256)
            A(f"s_lshr_b32 s{sT0}, s2, 7")
            A(f"s_lshl_b32 s{sT0}, s{sT0}, 5")
            A(f"s_cmp_lt_u32 s2, 128")
            A(f"s_cselect_b32 s72, s74, s72")
            A(f"v_mov_b32 {v(vT)}, 0")
            A("s_mov_b64 exec, 1")
            A("s_memrealtime s[74:75]")
            A("s_waitcnt lgkmcnt(0)")
            for i, src in enumerate([56, 58, 60, 62, 64, 72, 74]):
                A(f"s_sub_u32 s{sT1}, s{src}, s{sTIM}")
                A(f"v_mov_b32 {v(vT+2)}, s{sT1}")
                A(f"buffer_store_dword {v(vT+2)}, {v(vT)}, s[{SX}:{SX+3}], s{sT0} offen offset:{4*i}")
                A.nop(2)
            A(f"s_sub_u32 s{sT1}, s76, s78")
            A(f"v_mov_b32 {v(vT+2)}, s{sT1}")
            A(f"buffer_store_dword {v(vT+2)}, {v(vT)}, s[{SX}:{SX+3}], s{sT0} offen offset:28")
            A("s_endpgm")
        A(f"s_lshl_b32 s{sT0}, s2, 2")
        A(f"s_add_u32 s{sT0}, s{sT0}, s{sW}")
        A(f"s_lshl_b32 s{sT1}, s{sT0}, 8")
        A(f"s_lshl_b32 s{sT0}, s{sT0}, 7")
        A(f"s_add_u32 s{sT0}, s{sT0}, {STAMP_BASE}")
        A(f"s_add_u32 s{sT1}, s{sT1}, {STAMP_BASE + (1 << 20)}")
        A(f"v_lshlrev_b32 {v(vT)}, 2, {v(vLane)}")
        A(f"buffer_store_dword v255, {v(vT)}, s[{SWS}:{SWS+3}], s{sT1} offen")
        A.nop(2)
        A(f"v_mov_b32 {v(vT)}, 0")
        A("s_mov_b64 exec, 1")
        for i in range(13):
            src = 56 + 2 * i if i < 12 else sTIM
            A(f"v_mov_b32 {v(vT+2)}, s{src}")
            A(f"v_mov_b32 {v(vT+3)}, s{src+1}")
            A(f"buffer_store_dwordx2 {v(vT+2,2)}, {v(vT)}, s[{SWS}:{SWS+3}], s{sT0} offen offset:{8*i}")
            A.nop(2)
    A.label("L_end")
    A("s_endpgm")

    A.label("L_rescale")
    A(f"v_max_f32 {v(vMx)}, {v(vMx)}, {v(vM)}")
    A(f"v_mul_f32 {v(vMc)}, s{sC}, {v(vMx)}")
    A(f"v_fma_f32 {v(vAl)}, {v(vM)}, s{sC}, -{v(vMc)}")
    A(f"v_exp_f32 {v(vAl)}, {v(vAl)}")
    A(f"v_mov_b32 {v(vM)}, {v(vMx)}")
    A.nop(8)
    for k in list(range(32, 64, 2)) + list(range(0, 32, 2)):
        A(f"v_pk_mul_f32 {v(vO+k,2)}, {v(vO+k,2)}, {v(vAl,2)} op_sel_hi:[1,0]")
    for k in range(0, 4, 2):
        A(f"v_pk_mul_f32 {v(vLa+k,2)}, {v(vLa+k,2)}, {v(vAl,2)} op_sel_hi:[1,0]")
    A(f"s_setpc_b64 s[{sM64}:{sM64+1}]")

    A.label("L_pollo")
    A(f"s_mov_b32 s{sT1}, 0")
    A.label("L_pollo2")
    for k in range(6):
        A(orec1("buffer_load_dwordx4", k, RL))
    A("s_waitcnt vmcnt(0)")
    emit(rec_check())
    A(f"s_add_u32 s{sT1}, s{sT1}, 1")
    A("s_cbranch_vccz L_pollo3")
    A(f"s_sleep {SLEEP}")
    A(f"s_cmp_lt_u32 s{sT1}, {SPIN_MAX}")
    A("s_cbranch_scc1 L_pollo2")
    A.label("L_pollo3")
    emit(rec_prep())
    A("s_branch L_pollo_done")

    A.label("L_special")
    A(f"s_add_u32 s{sT0}, s{sXOFF}, 1024")
    A(f"s_add_u32 s{SK}, s{KA+8}, s{sT0}")
    A(f"s_addc_u32 s{SK+1}, s{KA+9}, 0")
    A(f"s_sub_u32 s{SK}, s{SK}, {N1*16384}")
    A(f"s_subb_u32 s{SK+1}, s{SK+1}, 0")
    A(f"s_and_b32 s{SK+1}, s{SK+1}, 0xffff")
    A(f"s_mov_b32 s{SK+2}, {N1*16384 + 256*1152 - 1024}")
    A(f"v_lshrrev_b32 {v(vT)}, 3, {v(vLane)}")
    A(f"v_mul_u32_u24 {v(vT)}, 1152, {v(vT)}")
    A(f"v_and_b32 {v(vT+1)}, 7, {v(vLane)}")
    A(f"v_lshl_add_u32 {v(vT)}, {v(vT+1)}, 4, {v(vT)}")
    A(f"s_mul_i32 s{sT0}, s{sW}, {36864 - 4096}")
    for p in range(4):
        A(f"v_add_u32 {v(vKoff+p)}, s{sT0}, {v(vT)}")
        A(f"s_add_u32 s{sT0}, s{sT0}, {9216 - 1024}")
    A("s_branch L_special_ret")
    A.label("L_code_end")
    return A.text()

def main():
    k = gen()
    out = f"""; generated by gen17.py
; @launch grid=(256,1,1) block=(256,1,1) lds=163840
.amdgcn_target "amdgcn-amd-amdhsa--gfx950"
.text
"""
    out += kernel_head(NAME) + k
    out += '.section .rodata,"a"\n.p2align 6\n'
    out += kernel_desc(NAME, 512, 256, 102)
    open(sys.argv[1], "w").write(out)

main()
```

```python
import sys, struct
from asmlib import *

NAME = "standalone__sliding_block_cached__sampling_kernel"
OPTS = set(sys.argv[2:])
STAMPS = "stamps" in OPTS
def opt(name, default):
    for o in OPTS:
        if o.startswith(name + "="):
            return int(o.split("=")[1])
    return default
N1 = opt("n1", 17)
N2 = 32 - N1
SLEEP = opt("sleep", 1)
SLEEPY = opt("sleepy", 1)
PROF = opt("prof", 0)
THR = 8.0
POLK = " nt" if opt("polk", 1) else ""
POLV = " nt" if opt("polv", 1) else ""
XSWAP = opt("xswap", 1)
CODEWARM = opt("codewarm", 3)
MAGREE = opt("magree", 1)
GX = opt("gx", 0)
PREPOLL = opt("prepoll", 0)
DBG = opt("dbg", 0)
LATE = opt("late", -1)
EPOCH = opt("epoch", 1)
SETUP1 = opt("setup1", 1)
XSWZ = opt("xswz", 1)
QPIPE = opt("qpipe", 1)
XFAST = opt("xfast", 0)
QFIRST = opt("qfirst", 0)
DIAG = opt("diag", -1)
POLO = {0: "", 1: " sc1", 2: " nt", 3: " sc0 sc1"}[opt("polo", 0)]
QAT = opt("qat", 8)
PT = opt("pt", 0)
CWN = opt("cwn", 256)
SK_IT = opt("skip", 6)
NGB = opt("ngb", 2)
RAT = opt("rat", 2)

ND = 2 if SK_IT else 3

def slot3(k):
    return 4 * (k // 3) + k % 3

def f32bits(x):
    return struct.unpack("<I", struct.pack("<f", x))[0]

SCALE_C = (128 ** -0.5) * 1.4426950408889634
QB = 0
OB = 4 << 20
FY = 13 << 20
PY = 16 << 20
STAMP_BASE = 64 << 20
SPIN_MAX = 1 << 20
VRING = 81920
OOB = 0x7ff00000
M32 = "v_mfma_f32_32x32x16_bf16"
M16 = "v_mfma_f32_16x16x32_bf16"

def srd(A, d, lo, hi, nbytes):
    A(f"s_mov_b32 s{d}, s{lo}")
    A(f"s_and_b32 s{d+1}, s{hi}, 0xffff")
    A(f"s_mov_b32 s{d+2}, {nbytes:#x}")
    A(f"s_mov_b32 s{d+3}, 0x20000")

def weave(main, fill, per):
    out = []; fill = list(fill)
    for m in main:
        out.append(m)
        for _ in range(per):
            if fill:
                out.append(fill.pop(0))
    return out + fill

def spread(main, fill):
    out = []; n, k = len(main), len(fill); fi = 0
    for i, m in enumerate(main):
        out.append(m)
        while fi < k and (fi + 1) * n <= (i + 1) * k:
            out.append(fill[fi]); fi += 1
    return out + list(fill[fi:])

def gen():
    A = Asm()
    def emit(lst):
        for x in lst:
            if isinstance(x, tuple):
                A.vmem(x[0], x[1])
            else:
                A(x)
    def stamp(i, mode=0):
        if STAMPS and mode == PROF:
            assert i < 12
            A(f"s_memrealtime s[{56+2*i}:{57+2*i}]")
            A("s_waitcnt lgkmcnt(0)")
    SK, SV, SX, SWT, SWS = 4, 8, 12, 16, 20
    sWIN = 24
    sA0, sA1 = 26, 27
    sNON = 28
    sTIM = 30
    (sW, sKVH, sB, sPR, sOFF, sOFFc, sRK, sMK, sMV, sC, sSELL, sSELH, sT0, sT1, sT2, sLIM, sDK,
     sQOFF, sXOFF, sM0B, sST, sN, sIT, sSLOT) = range(32, 56)
    sM64, sTHR, sK16, sDV, sKH = 96, 98, 99, 100, 101
    KA = 80
    vL16, vVoff, vM = 1, 2, 3
    vKoff, vT, vKa, vVa = 4, 8, 12, 20
    vMc, vMx, vAl, vBe = 24, 25, 26, 27
    vSel, vLa, vQf = 28, 32, 36
    vX = 68
    vO, vSo, vSn, vKV = 88, 152, 168, 184
    vR = 216
    vLane, vG, vN = 252, 253, 254
    vP = vSo
    XL = 65536
    QIMG = VRING + 16384

    A("s_cmp_ge_u32 s2, 256")
    A("s_cbranch_scc1 L_end")
    if LATE >= 0:
        A(f"s_cmp_eq_u32 s2, {LATE}")
        A("s_cbranch_scc0 L_notlate")
        for _ in range(16):
            A("s_sleep 127")
        A.label("L_notlate")
    A(f"s_load_dwordx16 s[{KA}:{KA+15}], s[0:1], 0")
    A(f"s_memrealtime s[{sTIM}:{sTIM+1}]")
    if DBG:
        A("s_memtime s[78:79]")
    if CODEWARM >= 2:
        if CODEWARM == 2:
            A(f"s_cmp_lt_u32 s2, {CWN}")
        else:
            A(f"s_sub_u32 s3, s2, 128")
            A(f"s_cmp_lt_u32 s3, {CWN}")
        A("s_cbranch_scc0 L_nocw")
        for x in [f"s_getpc_b64 s[{sT0}:{sT0+1}]", "L_pc:", f"s_sub_u32 s{sT0}, s{sT0}, L_pc-{NAME}", f"s_subb_u32 s{sT1}, s{sT1}, 0",
                  f"v_lshlrev_b32 {v(vT+1)}, 7, v0",
                  f"v_min_u32 {v(vT+1)}, L_code_end-{NAME}-4, {v(vT+1)}",
                  f"global_load_dword {v(vMx)}, {v(vT+1)}, s[{sT0}:{sT0+1}]"]:
            A(x)
        A.label("L_nocw")
    if XSWAP:
        A("s_lshr_b32 s3, s2, 7")
        A("s_xor_b32 s2, s2, s3")
    A(f"v_lshrrev_b32 {v(vT)}, 6, v0")
    A(f"v_and_b32 {v(vLane)}, 63, v0")
    A(f"v_readfirstlane_b32 s{sW}, {v(vT)}")
    A(f"v_lshrrev_b32 {v(vG)}, 4, {v(vLane)}")
    A(f"v_and_b32 {v(vN)}, 15, {v(vLane)}")
    A(f"s_and_b32 s{sKVH}, s2, 7")
    A(f"s_lshl_b32 s{sKVH}, s{sKVH}, 1")
    A(f"s_bfe_u32 s{sB}, s2, 0x10003")
    A(f"s_add_u32 s{sKVH}, s{sKVH}, s{sB}")
    A(f"s_bfe_u32 s{sB}, s2, 0x30004")
    A(f"s_and_b32 s{sPR}, s2, 127")
    A(f"s_lshl_b32 s{sT0}, s{sB}, 25")
    A(f"s_lshl_b32 s{sT1}, s{sKVH}, 21")
    A(f"s_add_u32 s{sT0}, s{sT0}, s{sT1}")
    A(f"s_add_u32 s{sT0}, s{sT0}, {6144*256}")
    A(f"s_add_u32 s{sT1}, s{sT0}, {N1*16384}")
    A(f"s_cmp_ge_u32 s2, 128")
    A(f"s_cselect_b32 s{sT2}, s{sT0}, s{sT1}")
    A(f"s_cselect_b32 s{sN}, {N1}, {N2}")
    A(f"s_lshl_b32 s{sM0B}, s{sW}, 12")
    A(f"s_add_u32 s{sLIM}, s{sM0B}, {VRING}")
    A(f"s_and_b32 s{sKH}, s{sW}, 1")
    A(f"v_lshlrev_b32 {v(vL16)}, 4, {v(vLane)}")

    def kv_setup():
        L = []
        for p in range(4):
            L += [f"v_or_b32 {v(vT)}, {4*p}, {v(vG)}", f"v_xor_b32 {v(vT)}, {v(vT)}, {v(vN)}",
                  f"v_lshlrev_b32 {v(vT)}, 4, {v(vT)}", f"v_lshl_add_u32 {v(vKoff+p)}, {v(vG)}, 8, {v(vT)}"]
        L += [f"v_lshlrev_b32 {v(vT)}, 2, {v(vG)}", f"v_xor_b32 {v(vT)}, {v(vT)}, {v(vN)}",
              f"v_lshlrev_b32 {v(vT)}, 4, {v(vT)}", f"v_lshl_add_u32 {v(vVoff)}, {v(vG)}, 8, {v(vT)}"]
        return L
    def kv_srds():
        return [f"s_add_u32 s{SK}, s{KA+2}, s{sT2}", f"s_addc_u32 s{SK+1}, s{KA+3}, 0", f"s_and_b32 s{SK+1}, s{SK+1}, 0xffff",
                f"s_lshl_b32 s{SK+2}, s{sN}, 14", f"s_mov_b32 s{SK+3}, 0x20000",
                f"s_sub_u32 s{sT2}, s{sT2}, 16384",
                f"s_add_u32 s{SV}, s{KA+4}, s{sT2}", f"s_addc_u32 s{SV+1}, s{KA+5}, 0", f"s_and_b32 s{SV+1}, s{SV+1}, 0xffff",
                f"s_add_u32 s{SV+2}, s{SK+2}, 16384", f"s_mov_b32 s{SV+3}, 0x20000",
                f"s_mov_b32 s{sOFF}, s{sM0B}", f"s_mov_b32 s{sRK}, s{sM0B}"]
    def dma_list(tag=None, first=False):
        L = [f"s_mov_b32 m0, s{sRK}", f"s_add_u32 s{sMK}, s{sRK}, 16384"]
        for p in range(4):
            ln = f"buffer_load_dwordx4 {v(vKoff+p)}, s[{SK}:{SK+3}], s{sOFF} offen offset:{p*1024}{POLK} lds"
            L.append((ln, tag) if tag else ln)
        L += [f"s_cmp_ge_u32 s{sMK}, s{sLIM}", f"s_cselect_b32 s{sRK}, s{sM0B}, s{sMK}", f"s_add_u32 m0, s{sRK}, {VRING}", "s_nop 0"]
        for p in range(0 if first else 4):
            ln = f"buffer_load_dwordx4 {v(vVoff)}, s[{SV}:{SV+3}], s{sOFF} offen offset:{p*1024}{POLV} lds"
            L.append((ln, tag) if tag else ln)
        L += [f"s_add_u32 s{sOFF}, s{sOFF}, 16384"]
        return L
    def common_setup():
        L = [f"s_mov_b32 s{sC}, {f32bits(SCALE_C):#x}", f"s_mov_b32 s{sTHR}, {f32bits(THR / SCALE_C):#x}",
             f"s_mov_b32 s{sSELL}, 0x05040100", f"s_mov_b32 s{sSELH}, 0x07060302", f"s_mov_b32 s{sK16}, 16384",
             f"s_mov_b32 s{sWIN}, 0x1000000", f"s_mov_b32 s{sWIN+1}, 0"]
        L += [f"v_and_b32 {v(vT)}, 31, {v(vLane)}",
              f"v_lshlrev_b32 {v(vT)}, 8, {v(vT)}",
              f"v_mov_b32 {v(vT+1)}, s{sKH}",
              f"v_lshl_add_u32 {v(vT)}, {v(vT+1)}, 13, {v(vT)}",
              f"v_lshrrev_b32 {v(vT+2)}, 5, {v(vLane)}",
              f"v_xor_b32 {v(vT+2)}, {v(vT+2)}, {v(vN)}"]
        for s_ in range(8):
            L += [f"v_xor_b32 {v(vT+3)}, {2*s_}, {v(vT+2)}",
                  f"v_lshl_add_u32 {v(vKa+s_)}, {v(vT+3)}, 4, {v(vT)}"]
        L += [f"v_lshrrev_b32 {v(vT+2)}, 2, {v(vN)}",
              f"v_lshrrev_b32 {v(vT)}, 5, {v(vLane)}",
              f"v_lshl_add_u32 {v(vT)}, {v(vT)}, 2, {v(vT+2)}",
              f"v_lshlrev_b32 {v(vT)}, 8, {v(vT)}",
              f"v_lshl_add_u32 {v(vT)}, {v(vT+1)}, 13, {v(vT)}",
              f"v_and_b32 {v(vT+3)}, 3, {v(vN)}",
              f"v_lshl_add_u32 {v(vT)}, {v(vT+3)}, 3, {v(vT)}",
              f"v_and_b32 {v(vT+3)}, 1, {v(vG)}",
              f"v_lshl_add_u32 {v(vT)}, {v(vT+3)}, 5, {v(vT)}",
              f"v_add_u32 {v(vT)}, {QIMG}, {v(vT)}",
              f"v_lshlrev_b32 {v(vT+1)}, 1, {v(vT+1)}",
              f"v_xor_b32 {v(vT+2)}, {v(vT+2)}, {v(vT+1)}"]
        for D in range(4):
            L += [f"v_xor_b32 {v(vT+3)}, {D}, {v(vT+2)}",
                  f"v_lshl_add_u32 {v(vVa+D)}, {v(vT+3)}, 6, {v(vT)}"]
        L += [f"v_lshrrev_b32 {v(vT)}, 2, {v(vN)}",
              f"v_xor_b32 {v(vT)}, {v(vT)}, {v(vG)}",
              f"v_and_b32 {v(vT)}, 1, {v(vT)}",
              f"v_add_u32 {v(vT)}, -1, {v(vT)}",
              f"v_and_b32 {v(vSel)}, 0x3f803f80, {v(vT)}",
              f"v_mov_b32 {v(vSel+1)}, {v(vSel)}", f"v_mov_b32 {v(vSel+2)}, {v(vSel)}", f"v_mov_b32 {v(vSel+3)}, {v(vSel)}"]
        return L
    def init_list():
        L = [f"v_mov_b32 {v(vO+k)}, 0" for k in range(64)] + [f"v_mov_b32 {v(vLa+k)}, 0" for k in range(4)]
        L += [f"v_mov_b32 {v(vM)}, 0xff800000", f"v_mov_b32 {v(vMc)}, 0"] + [f"v_mov_b32 {v(vSn+k)}, 0xff800000" for k in range(16)]
        L += [f"s_mov_b32 s{sSLOT}, 1", f"s_mov_b32 s{sIT}, 0", f"s_mov_b32 s{sDK}, 16384"]
        return L
    def q_image(vC, mid=()):
        A(f"v_lshlrev_b32 {v(vT+2)}, 4, {v(vN)}")
        A(f"v_lshl_add_u32 {v(vT+2)}, {v(vG)}, 11, {v(vT+2)}")
        A(f"s_lshr_b32 s{sT1}, s{sW}, 1")
        A(f"s_lshl_b32 s{sT1}, s{sT1}, 13")
        A(f"s_add_u32 s{sT1}, s{sT1}, {QIMG}")
        A(f"s_lshl_b32 s{sT2}, s{sKH}, 8")
        A(f"s_add_u32 s{sT2}, s{sT2}, s{sT1}")
        A(f"v_add_u32 {v(vT+2)}, s{sT2}, {v(vT+2)}")
        for i in range(4):
            A(f"ds_write_b128 {v(vT+2)}, {v(vC+4*i,4)} offset:{(i>>1)*1024 + (i&1)*512}")
        A(f"v_add_u32 {v(vT+3)}, s{sT1}, {v(vL16)}")
        emit(mid)
        A("s_waitcnt lgkmcnt(0)")
        A("s_barrier")
        for s_ in range(8):
            A(f"ds_read_b128 {v(vQf+4*s_,4)}, {v(vT+3)} offset:{s_*1024}")

    def pretouch(g1):
        if not PT:
            return
        A(f"v_mul_u32_u24 {v(vT)}, 36864, {v(vN)}")
        A(f"s_mul_i32 s{sT0}, s{sB}, {16*36864}")
        A(f"s_mul_i32 s{sT1}, s{sW}, 9216")
        A(f"s_add_u32 s{sT0}, s{sT0}, s{sT1}")
        A(f"s_add_u32 s{sT0}, s{sT0}, {PY}")
        A(f"v_add_u32 {v(vT)}, s{sT0}, {v(vT)}")
        A(f"s_lshl_b32 s{sT0}, s{sPR}, 2")
        A(f"s_add_u32 s{sT0}, s{sT0}, s{sW}")
        A(f"s_mul_i32 s{sT0}, s{sT0}, 9216")
        A(f"s_add_u32 s{sT0}, s{sT0}, {OB}")
        A(f"v_writelane_b32 {v(vT)}, s{sT0}, 16")
        A(f"s_add_u32 s{sT0}, s{sT0}, 8192")
        A(f"v_writelane_b32 {v(vT)}, s{sT0}, 17")
        A(f"s_lshl_b32 s{sT0}, s{sB}, 13")
        A(f"s_add_u32 s{sT0}, s{sT0}, {FY}")
        A(f"v_writelane_b32 {v(vT)}, s{sT0}, 18")
        A(f"s_add_u32 s{sT0}, s{sT0}, 4096")
        A(f"v_writelane_b32 {v(vT)}, s{sT0}, 19")
        A.vmem(f"buffer_load_dword {v(vX+18)}, {v(vT)}, s[{SWS}:{SWS+3}], 0 offen sc1", "pt")
        if not g1:
            A(f"v_lshlrev_b32 {v(vT)}, 12, {v(vN)}")
            A(f"s_mul_i32 s{sT0}, s{sB}, 36864")
            A.vmem(f"buffer_load_dword {v(vX+19)}, {v(vT)}, s[{SX}:{SX+3}], s{sT0} offen", "pt")

    SDB = KA + 12
    def epoch_register(lab):
        A(f"s_and_b32 s{SDB+1}, s{SDB+1}, 0xffff")
        A(f"s_mov_b32 s{SDB+2}, 256")
        A(f"s_mov_b32 s{SDB+3}, 0x20000")
        if not EPOCH:
            return
        A(f"s_cmp_eq_u32 s{sW}, 3")
        A(f"s_cbranch_scc0 L_noep{lab}")
        A(f"s_not_b64 s[{sT0}:{sT0+1}], s[{sTIM}:{sTIM+1}]")
        A(f"v_mov_b32 {v(vT)}, s{sT0}")
        A(f"v_mov_b32 {v(vT+1)}, s{sT1}")
        A(f"s_lshl_b32 s{sT0}, s{sB}, 5")
        A("s_mov_b64 exec, 1")
        A(f"buffer_atomic_umax_x2 {v(vT,2)}, off, s[{SDB}:{SDB+3}], s{sT0} sc1")
        A("s_mov_b64 exec, -1")
        A.label(f"L_noep{lab}")
    def epoch_lower(lo, cnt, tmpv, lab):
        if not EPOCH:
            return
        A(f"s_and_b32 s{sM64}, s{cnt}, 63")
        A(f"s_cbranch_scc1 L_noel{lab}")
        A(f"s_lshl_b32 s{sM64}, s{sB}, 5")
        A(f"buffer_load_dwordx2 {v(tmpv,2)}, off, s[{SDB}:{SDB+3}], s{sM64} sc1")
        A("s_waitcnt vmcnt(0)")
        A(f"v_readfirstlane_b32 s{sM64}, {v(tmpv)}")
        A(f"v_readfirstlane_b32 s{sM64+1}, {v(tmpv+1)}")
        A.nop(2)
        A(f"s_not_b64 s[{sM64}:{sM64+1}], s[{sM64}:{sM64+1}]")
        A(f"s_sub_u32 s3, s{sM64}, s{lo}")
        A(f"s_subb_u32 s3, s{sM64+1}, s{lo+1}")
        A(f"s_cselect_b64 s[{lo}:{lo+1}], s[{sM64}:{sM64+1}], s[{lo}:{lo+1}]")
        A.label(f"L_noel{lab}")

    fmas = [f"v_fma_f32 {v(vSo+k)}, {v(vSn+k)}, s{sC}, -{v(vMc)}" for k in range(16)]
    def expcvt():
        L = []
        for k in range(16):
            L.append(f"v_exp_f32 {v(vSo+k)}, {v(vSo+k)}")
            if k >= 3 and k % 2 == 1:
                q = (k - 3) // 2
                L.append(f"v_cvt_pk_bf16_f32 {v(vP+q)}, {v(vSo+2*q)}, {v(vSo+2*q+1)}")
        L.append("s_nop 0")
        L.append(f"v_cvt_pk_bf16_f32 {v(vP+7)}, {v(vSo+14)}, {v(vSo+15)}")
        return L
    pvo = [(2, 0), (3, 0), (2, 1), (3, 1), (0, 0), (1, 0), (0, 1), (1, 1)]
    def vread(f):
        D, t = pvo[f]
        return [f"ds_read_b64_tr_b16 {v(vKV+4*f+2*u,2)}, {v(vVa+D)} offset:{(16*t+8*u)*256}" for u in range(2)]
    def pvm(f):
        D, t = pvo[f]
        return f"{M32} {v(vO+16*D,16)}, {v(vKV+4*f,4)}, {v(vP+4*t,4)}, {v(vO+16*D,16)}"
    def lm(t):
        return f"{M16} {v(vLa,4)}, {v(vSel,4)}, {v(vP+4*t,4)}, {v(vLa,4)}"
    def body(mem, tail_salu, lab):
        if STAMPS and PROF == 0:
            A("s_memrealtime s[96:97]")
            A("s_waitcnt lgkmcnt(0)")
            A(f"s_mov_b32 m0, s{sIT}")
            A("s_nop 0")
            A(f"v_writelane_b32 v255, s96, m0")
        emit([f"ds_read_b128 {v(vKV+4*s_,4)}, {v(vKa+s_)}" for s_ in range(8)])
        emit(mem[0])
        emit(fmas)
        A(f"s_add_u32 s{sSLOT}, s{sSLOT}, 1")
        A(f"s_cmp_ge_u32 s{sSLOT}, 5")
        A(f"s_cselect_b32 s{sDV}, {(-4*16384) & 0xffffffff:#x}, s{sK16}")
        A(f"s_cselect_b32 s{sSLOT}, 0, s{sSLOT}")
        ec = expcvt()
        per = [3, 3, 3, 3, 3, 3, 4, 3]
        for s_ in range(8):
            A(f"s_waitcnt lgkmcnt({7 + s_})")
            A(f"{M32} {v(vSn,16)}, {v(vKV+4*s_,4)}, {v(vQf+4*s_,4)}, {v(vSn,16) if s_ else 0}")
            emit(vread(s_) if s_ < 7 else [])
            for _ in range(per[s_]):
                A(ec.pop(0))
            if s_ == 3:
                emit(mem[1])
        A("s_waitcnt lgkmcnt(12)")
        emit(vread(7))
        kadds = [f"v_add_u32 {v(vKa+k)}, s{sDK}, {v(vKa+k)}" for k in range(8)]
        vadds = [f"v_add_u32 {v(vVa+k)}, s{sDV}, {v(vVa+k)}" for k in range(4)]
        mx = [f"v_max3_f32 {v(vMx)}, {v(vSn)}, {v(vSn+1)}, {v(vSn+2)}", f"v_max3_f32 {v(vT)}, {v(vSn+3)}, {v(vSn+4)}, {v(vSn+5)}",
              f"v_max3_f32 {v(vMx)}, {v(vMx)}, {v(vSn+6)}, {v(vSn+7)}", f"v_max3_f32 {v(vT)}, {v(vT)}, {v(vSn+8)}, {v(vSn+9)}",
              f"v_max3_f32 {v(vMx)}, {v(vMx)}, {v(vSn+10)}, {v(vSn+11)}", f"v_max3_f32 {v(vT)}, {v(vT)}, {v(vSn+12)}, {v(vSn+13)}",
              f"v_max3_f32 {v(vMx)}, {v(vMx)}, {v(vSn+14)}, {v(vSn+15)}", f"v_max_f32 {v(vMx)}, {v(vMx)}, {v(vT)}"]
        gaps = [
            mem[2] + kadds[:3],
            kadds[3:8],
            mem[3] + vadds[:2],
            vadds[2:] + mx[:3],
            mem[4] + mx[3:6],
            mx[6:] + [f"v_mov_b32 {v(vT)}, {v(vMx)}"] + mem[5] + [f"s_mov_b32 s{sDK}, s{sDV}"],
            [f"v_permlane32_swap_b32 {v(vMx)}, {v(vT)}"] + mem[6] + ["s_nop 0", f"v_max_f32 {v(vMx)}, {v(vMx)}, {v(vT)}", f"v_sub_f32 {v(vT)}, {v(vMx)}, {v(vM)}"],
            mem[7] + [f"v_cmp_lt_f32 vcc, s{sTHR}, {v(vT)}"],
        ]
        for f in range(8):
            if f in (1, 3, 5, 7):
                A(f"s_waitcnt lgkmcnt({max(0, 16 - 2 * (f + 2))})")
            A(pvm(f))
            emit(gaps[f])
        A(lm(0)); A(lm(1))
        emit(tail_salu)
        A(f"s_cbranch_vccz L_nors{lab}")
        A(f"s_call_b64 s[{sM64}:{sM64+1}], L_rescale")
        A.label(f"L_nors{lab}")

    A(f"s_cmp_lt_u32 s2, 128")
    A("s_cbranch_scc1 L_g2")

    emit(kv_setup())
    if SETUP1:
        emit(common_setup())
    A(f"s_mul_i32 s{sXOFF}, s{sKVH}, {256*1152}")
    A(f"s_mul_i32 s{sT0}, s{sB}, 36864")
    A(f"s_mul_i32 s{sT1}, s{sW}, 9216")
    A(f"s_add_u32 s{sT0}, s{sT0}, s{sT1}")
    A(f"s_add_u32 s{sT0}, s{sT0}, s{sXOFF}")
    A(f"v_lshlrev_b32 {v(vT)}, 7, {v(vLane)}")
    A("s_waitcnt lgkmcnt(0)")
    srd(A, SWT, KA+8, KA+9, 576 * 4096 * 2)
    A.vmem(f"buffer_load_dword {v(vAl)}, {v(vT)}, s[{SWT}:{SWT+3}], s{sT0} offen", "pw")
    A.vmem(f"buffer_load_dword {v(vBe)}, {v(vT)}, s[{SWT}:{SWT+3}], s{sT0} offen offset:1024", "pw")
    emit(kv_srds())
    emit(dma_list("G", first=True))
    emit(dma_list("G"))
    srd(A, SWS, KA+14, KA+15, 1 << 30)
    epoch_register("a")
    if not SETUP1:
        emit(common_setup())
    if CODEWARM == 1:
        A(f"s_cmp_eq_u32 s{sB}, 0")
        A("s_cbranch_scc0 L_nocw")
        for x in [f"s_getpc_b64 s[{sT0}:{sT0+1}]", "L_pc:", f"s_sub_u32 s{sT0}, s{sT0}, L_pc-{NAME}", f"s_subb_u32 s{sT1}, s{sT1}, 0",
                  f"v_mov_b32 {v(vT+1)}, s{sW}", f"v_lshlrev_b32 {v(vT+1)}, 13, {v(vT+1)}", f"v_lshl_add_u32 {v(vT+1)}, {v(vLane)}, 7, {v(vT+1)}",
                  f"v_min_u32 {v(vT+1)}, L_code_end-{NAME}-4, {v(vT+1)}",
                  f"global_load_dword {v(vMx)}, {v(vT+1)}, s[{sT0}:{sT0+1}]"]:
            A(x)
        A.label("L_nocw")
    vWm, vTmp = 68, 72
    A(f"v_lshrrev_b32 {v(vT)}, 1, {v(vG)}")
    A(f"v_lshlrev_b32 {v(vT)}, 2, {v(vT)}")
    A(f"v_and_b32 {v(vT+1)}, 1, {v(vG)}")
    A(f"v_add_u32 {v(vT)}, {v(vT)}, {v(vT+1)}")
    A(f"v_mul_u32_u24 {v(vT)}, {4*1152}, {v(vT)}")
    A(f"s_lshl_b32 s{sT0}, s{sW}, 8")
    A(f"v_lshl_add_u32 {v(vWm)}, {v(vN)}, 4, {v(vT)}")
    A(f"v_add_u32 {v(vWm)}, s{sT0}, {v(vWm)}")
    A(f"v_add_u32 {v(vWm+1)}, {8*1152}, {v(vWm)}")
    for g_ in range(2, 5):
        emit(dma_list("G"))
    stamp(0)
    rawat = [88 + 32 * (k % 5) for k in range(8)]
    def wo_issue(k):
        T = rawat[k]
        L = [f"s_add_u32 s{sT2}, s{sXOFF}, {k*32*1152}"]
        for e in range(8):
            L.append((f"buffer_load_dwordx4 {v(T+4*e,4)}, {v(vWm+(e>>2))}, s[{SWT}:{SWT+3}], s{sT2} offen offset:{(e&3)*1152}", f"w{k}"))
        return L
    def wo_transpose(k):
        T = rawat[k]
        L = []; cnt = 0
        for j in range(8):
            for t in range(4):
                tmp = vTmp + (cnt % 8); cnt += 1
                L.append(f"v_perm_b32 {v(tmp)}, {v(T+4*(2*t+1)+j//2)}, {v(T+4*(2*t)+j//2)}, s{sSELH if (j & 1) else sSELL}")
                L.append(f"v_accvgpr_write_b32 {a(32*k+4*j+t)}, {v(tmp)}")
        return L
    A(f"s_lshl_b32 s{sT0}, s{sPR}, 2")
    A(f"s_add_u32 s{sT0}, s{sT0}, s{sW}")
    A(f"s_mul_i32 s{sST}, s{sT0}, 6144")
    A(f"s_add_u32 s{sQOFF}, s{sST}, 4096")
    A(f"s_sub_u32 s{sA0}, s{sTIM}, 500")
    A(f"s_subb_u32 s{sA1}, s{sTIM+1}, 0")
    vQL = 36
    def q_batch(ks=range(6)):
        L = []
        for k in ks:
            L.append((f"buffer_load_dwordx4 {v(vQL+4*k,4)}, {v(vL16)}, s[{SWS}:{SWS+3}], s{sST if k < 4 else sQOFF} offen offset:{(k%4)*1024} sc1", "qb"))
        return L
    emit(wo_issue(0))
    emit(wo_issue(1))
    A("s_waitcnt vmcnt(40)"); A.retired = len(A.vm) - 40
    emit(wo_issue(2))
    emit(wo_issue(3))
    for k in range(8):
        A.wait_vm(f"w{k}")
        stamp(k, 2)
        nx = wo_issue(k + 4) if k + 4 < 8 else (q_batch() if k == QAT else [])
        emit(spread(wo_transpose(k), nx))
    stamp(1)
    def stamp_check(extra):
        A(f"v_subrev_co_u32 {v(vT+2)}, vcc, s{sA0}, {v(vQL+23)}")
        A(f"v_subb_co_u32 {v(vT+3)}, vcc, {v(vQL+slot3(16))}, {v(vT+3)}, vcc")
        if extra is not None:
            A(f"v_or_b32 {v(vT+3)}, {v(vT+3)}, {v(extra)}")
        A(f"v_cmp_le_u64 vcc, s[{sWIN}:{sWIN+1}], {v(vT+2,2)}")
    A(f"s_mov_b32 s{sT2}, 0")
    if PREPOLL:
        emit(q_batch([5]))
        emit(init_list())
        A("s_branch L_prep_chk")
        A.label("L_prep")
        A(f"s_sleep {SLEEP}")
        A(q_batch([5])[0][0])
        A.label("L_prep_chk")
        A(f"v_mov_b32 {v(vT+3)}, s{sA1}")
        A("s_waitcnt vmcnt(0)")
        stamp_check(None)
        A(f"s_add_u32 s{sT2}, s{sT2}, 1")
        A("s_cbranch_vccz L_pollq_ld")
        A(f"s_cmp_lt_u32 s{sT2}, {SPIN_MAX}")
        A("s_cbranch_scc1 L_prep")
    else:
        if QAT == 8:
            emit(q_batch())
        emit(init_list())
        A("s_branch L_pollq_chk")
    A.label("L_pollq")
    A(f"s_sleep {SLEEP}")
    epoch_lower(sA0, sT2, vT, "q")
    A.label("L_pollq_ld")
    for x in q_batch():
        A(x[0])
    A.label("L_pollq_chk")
    A(f"v_mov_b32 {v(vT+3)}, s{sA1}")
    A("s_waitcnt vmcnt(0)")
    for k in range(5):
        A(f"v_xor_b32 {v(vQL+4*k+3)}, {v(vQL+4*k+3)}, {v(vQL+23)}")
    for k in range(16):
        A(f"v_mov_b32 {v(vKV+k)}, {v(vQL+slot3(k))}")
    A(f"v_or3_b32 {v(vQL+3)}, {v(vQL+3)}, {v(vQL+7)}, {v(vQL+11)}")
    A(f"v_or3_b32 {v(vQL+3)}, {v(vQL+3)}, {v(vQL+15)}, {v(vQL+19)}")
    stamp_check(vQL + 3)
    A(f"s_add_u32 s{sT2}, s{sT2}, 1")
    A("s_cbranch_vccz L_pollq_done")
    A(f"s_cmp_lt_u32 s{sT2}, {SPIN_MAX}")
    A("s_cbranch_scc1 L_pollq")
    A.label("L_pollq_done")
    A(f"v_readfirstlane_b32 s{sNON}, {v(vQL+23)}")
    q_image(vKV)
    pretouch(True)
    A(f"s_mov_b32 s{sST}, {N1-2-ND}")
    A("s_waitcnt lgkmcnt(0)")
    stamp(2)
    A.label("L_nodma")
    body([[] for _ in range(8)], [], "f")
    if MAGREE and SK_IT:
        A(f"s_cmp_eq_u32 s{sIT}, 0")
        A("s_cbranch_scc1 L_loop_end")
        A(f"v_lshrrev_b32 {v(vT+2)}, 2, {v(vL16)}")
        A(f"v_add_u32 {v(vT+2)}, s{sRK}, {v(vT+2)}")
        A(f"ds_write_b32 {v(vT+2)}, {v(vM)}")
        A(f"v_xor_b32 {v(vT+1)}, 4096, {v(vT+2)}")
        A("s_waitcnt lgkmcnt(0)")
        A("s_barrier")
        A(f"ds_read_b32 {v(vMx)}, {v(vT+1)}")
        A("s_waitcnt lgkmcnt(0)")
        A(f"s_call_b64 s[{sM64}:{sM64+1}], L_rescale")
    A("s_branch L_loop_end")

    A.label("L_g2")
    A.vm = []; A.retired = 0
    NB = 5
    vRaw = [88 + 32 * i for i in range(NB)]
    vFr = 36
    vWoff = 68; vXoff = 76
    aXf = [64 + 8 * i for i in range(9)]
    A(f"v_lshlrev_b32 {v(vT)}, 16, {v(vG)}")
    A(f"v_lshl_add_u32 {v(vT)}, {v(vN)}, 4, {v(vT)}")
    for r in range(8):
        A(f"v_add_u32 {v(vWoff+r)}, {r*8192}, {v(vT)}")
    A(f"s_mov_b32 s{sST}, s{sB}")
    A(f"s_mul_i32 s{sQOFF}, s{sKH}, {288*8192}")
    A(f"s_lshl_b32 s{sT1}, s{sKVH}, 9")
    A(f"s_add_u32 s{sQOFF}, s{sQOFF}, s{sT1}")
    A(f"s_lshr_b32 s{sT1}, s{sW}, 1")
    A(f"s_lshl_b32 s{sT1}, s{sT1}, 8")
    A(f"s_add_u32 s{sQOFF}, s{sQOFF}, s{sT1}")
    A(f"s_mul_i32 s{sXOFF}, s{sB}, 36864")
    A(f"s_mul_i32 s{sT1}, s{sW}, 9216")
    A(f"s_add_u32 s{sXOFF}, s{sXOFF}, s{sT1}")
    A(f"s_add_u32 s{sT1}, s{sT1}, {XL}")
    vXs = 78
    if XSWZ:
        A(f"s_lshl_b32 s{sT0}, s{sKH}, 6")
        A(f"v_xor_b32 {v(vT+1)}, s{sT0}, {v(vL16)}")
        for k in range(9):
            A(f"v_add_u32 {v(vT)}, {4*k}, {v(vG)}")
            A(f"v_mul_u32_u24 {v(vT)}, 57, {v(vT)}")
            A(f"v_lshrrev_b32 {v(vT)}, 9, {v(vT)}")
            A(f"v_lshlrev_b32 {v(vT)}, 4, {v(vT)}")
            A(f"v_xor_b32 {v(vXs+k)}, {v(vT)}, {v(vT+1)}")
    A("s_waitcnt lgkmcnt(0)")
    srd(A, SX, KA+0, KA+1, 8 * 32 * 576 * 2)
    for k in range(9):
        if k % 4 == 0:
            A(f"s_mov_b32 m0, s{sT1}")
            A(f"s_add_u32 s{sT1}, s{sT1}, 4096")
        A.vmem(f"buffer_load_dwordx4 {v(vXs+k if XSWZ else vL16)}, s[{SX}:{SX+3}], s{sXOFF} offen offset:{(k%4)*1024} lds", "x")
        if k % 4 == 3:
            A(f"s_add_u32 s{sXOFF}, s{sXOFF}, 4096")
    srd(A, SWT, KA+6, KA+7, 576 * 4096 * 2)
    def qload(step):
        rb = vRaw[step % NB]
        L = [f"s_lshl_b32 s{sT0}, s{sST}, 18", f"s_add_u32 s{sT0}, s{sT0}, s{sQOFF}"]
        for r in range(8):
            L.append((f"buffer_load_dwordx4 {v(rb+4*r,4)}, {v(vWoff+r)}, s[{SWT}:{SWT+3}], s{sT0} offen", f"q{step}"))
        L += [f"s_add_u32 s{sST}, s{sST}, 1", f"s_cmp_eq_u32 s{sST}, 9", f"s_cselect_b32 s{sST}, 0, s{sST}"]
        return L
    emit(qload(0))
    emit(kv_srds())
    srd(A, SWS, KA+14, KA+15, 1 << 30)
    stamp(0)
    xa = [f"v_mul_u32_u24 {v(vT)}, 1152, {v(vN)}",
          f"v_mov_b32 {v(vT+1)}, s{sKH}",
          f"v_mul_u32_u24 {v(vT+2)}, {16*1152}, {v(vT+1)}",
          f"v_add3_u32 {v(vXoff)}, {v(vT)}, {v(vT+2)}, s{sK16}",
          f"v_sub_u32 {v(vXoff+1)}, {v(vT)}, {v(vT+2)}",
          f"v_add_u32 {v(vXoff+1)}, {16*1152 + 16384}, {v(vXoff+1)}",
          f"v_mul_u32_u24 {v(vLa)}, 576, {v(vT+1)}",
          f"v_lshl_add_u32 {v(vLa)}, {v(vG)}, 4, {v(vLa)}",
          f"v_lshrrev_b32 {v(vLa+1)}, 1, {v(vN)}",
          f"v_lshlrev_b32 {v(vLa+1)}, 4, {v(vLa+1)}" if XSWZ else f"v_mov_b32 {v(vLa+1)}, 0"]
    emit(spread(kv_setup() + common_setup() + xa, qload(1) + qload(2)))
    A.wait_vm("x")
    A("s_barrier")
    A(f"s_mov_b32 s{sT1}, s{sB}")
    for step in range(9):
        A(f"s_lshl_b32 s{sT2}, s{sT1}, 6")
        A(f"v_add_u32 {v(vT+2)}, s{sT2}, {v(vLa)}")
        A(f"v_xor_b32 {v(vT+2)}, {v(vT+2)}, {v(vLa+1)}")
        for u in range(2):
            A(f"v_add_u32 {v(vT+u)}, {v(vT+2)}, {v(vXoff+u)}")
            A(f"ds_read_b128 {a(aXf[step]+4*u,4)}, {v(vT+u)} offset:{XL - 16384}")
        A(f"s_add_u32 s{sT1}, s{sT1}, 1"); A(f"s_cmp_eq_u32 s{sT1}, 9"); A(f"s_cselect_b32 s{sT1}, 0, s{sT1}")
        if step == 5:
            A("s_waitcnt lgkmcnt(4)")
    emit(qload(3))
    A("s_waitcnt lgkmcnt(0)")
    A("s_barrier")
    ng = 0
    for step in range(9):
        rb = vRaw[step % NB]
        A.wait_vm(f"q{step}")
        stamp(step, 2)
        comp = []
        for j in range(8):
            for t in range(4):
                sel = sSELH if (j & 1) else sSELL
                comp.append(f"v_perm_b32 {v(vFr+4*j+t)}, {v(rb+4*(2*t+1)+j//2)}, {v(rb+4*(2*t)+j//2)}, s{sel}")
        comp.append("s_nop 1")
        for j in range(8):
            for u in range(2):
                acc = a((u * 8 + j) * 4, 4)
                comp.append(f"{M16} {acc}, {v(vFr+4*j,4)}, {a(aXf[step]+4*u,4)}, {acc if step else 0}")
        if XFAST and step == 8:
            mm = comp[33:]
            snd = mm[1::2]; kp = mm[0::2]
            pre = [f"s_lshl_b32 s{sT2}, s{sW}, 13", f"s_add_u32 s{sT2}, s{sT2}, {XL}", f"s_xor_b32 s{sT0}, s{sT2}, 8192",
                   f"v_add_u32 {v(vT+1)}, s{sT0}, {v(vL16)}", f"v_add_u32 {v(vT+2)}, s{sT2}, {v(vL16)}", f"s_memrealtime s[{sNON}:{sNON+1}]"]
            dw = [f"ds_write_b128 {v(vT+1)}, {a((8+j)*4,4)} offset:{j*1024}" for j in range(8)]
            comp = pre + comp[:8] + weave(snd, comp[8:32], 4) + weave(kp, dw, 1)
        elif QPIPE:
            comp = comp[:8] + weave(comp[33:], comp[8:32], 2)
        nx = []
        if step + 4 < 9:
            nx = qload(step + 4)
        elif ng < NGB:
            nx = dma_list(f"G{ng}", first=(ng == 0)); ng += 1
        emit(spread(comp, nx))
    if not XFAST:
        A(f"s_memrealtime s[{sNON}:{sNON+1}]")
    stamp(1)
    if not XFAST:
        A(f"s_lshl_b32 s{sT2}, s{sW}, 13")
        A(f"s_add_u32 s{sT2}, s{sT2}, {XL}")
        A(f"s_xor_b32 s{sT0}, s{sT2}, 8192")
        A(f"v_add_u32 {v(vT+1)}, s{sT0}, {v(vL16)}")
        A(f"v_add_u32 {v(vT+2)}, s{sT2}, {v(vL16)}")
        A.nop(2)
        for j in range(8):
            A(f"ds_write_b128 {v(vT+1)}, {a((8+j)*4,4)} offset:{j*1024}")
    vDq = 184; vG8 = 216; vC = 152
    for k in range(8 if XFAST else 32):
        A(f"v_accvgpr_read_b32 {v(vDq+k)}, {a(k)}")
    if GX:
        emit(dma_list(f"G{ng}")); ng += 1
    A("s_waitcnt lgkmcnt(0)")
    A("s_barrier")
    for j in range(8):
        A(f"ds_read_b128 {v(vFr+4*j,4)}, {v(vT+2)} offset:{j*1024}")
    for k in range(8 if XFAST else 32, 32):
        A(f"v_accvgpr_read_b32 {v(vDq+k)}, {a(k)}")
    A(f"s_lshl_b32 s{sT0}, s{sPR}, 2")
    A(f"s_add_u32 s{sT0}, s{sT0}, s{sW}")
    A(f"s_mul_i32 s{sT0}, s{sT0}, 6144")
    A(f"s_add_u32 s{sT1}, s{sT0}, 4096")
    for k in range(6):
        A(f"v_mov_b32 {v(vG8+4*k+3)}, s{sNON}")
    A(f"v_mov_b32 {v(vG8+slot3(16))}, s{sNON+1}")
    A(f"v_mov_b32 {v(vG8+slot3(17))}, 0")
    A("s_waitcnt lgkmcnt(0)")
    for k in range(0, 32, 2):
        A(f"v_pk_add_f32 {v(vDq+k,2)}, {v(vDq+k,2)}, {v(vFr+k,2)}")
    for i in range(4):
        for t in range(4):
            q = 4 * i + t
            A(f"v_cvt_pk_bf16_f32 {v(vG8+slot3(q))}, {v(vDq+4*(2*t)+i)}, {v(vDq+4*(2*t+1)+i)}")
            if q % 3 == 2 or q == 15:
                k = q // 3
                A.vmem(f"buffer_store_dwordx4 {v(vG8+4*k,4)}, {v(vL16)}, s[{SWS}:{SWS+3}], s{sT0 if k < 4 else sT1} offen offset:{(k%4)*1024} sc1", "qs")
    stamp(6)
    epoch_register("b")
    for k in range(16):
        A(f"v_mov_b32 {v(vC+k)}, {v(vG8+slot3(k))}")
    mid = []
    while ng < 3:
        mid += dma_list(f"G{ng}", first=(ng == 0)); ng += 1
    q_image(vC, mid)
    emit(spread(init_list(), dma_list("G3")))
    A(f"s_mov_b32 s{sST}, 1000")
    srd(A, SX, KA+10, KA+11, 8 * 32 * 576 * 2)
    pretouch(False)
    A("s_waitcnt lgkmcnt(0)")
    stamp(2)

    A.label("L_loop")
    if SK_IT:
        A(f"s_cmp_gt_u32 s{sIT}, {SK_IT}")
        A("s_cbranch_scc0 L_w24")
        A("s_waitcnt vmcnt(16)")
        A.label("L_w24")
    A("s_waitcnt vmcnt(24)")
    A("s_barrier")
    if SK_IT:
        A(f"s_cmp_eq_u32 s{sIT}, {SK_IT}")
        A("s_cbranch_scc1 L_nodma")
    dl = dma_list()
    body([dl[0:3], [dl[3]], [dl[4]], dl[5:9], [dl[10]], [dl[11]], [dl[12]], [dl[13]]], dl[14:], "m")
    A.label("L_loop_end")
    A(f"s_cmp_eq_u32 s{sIT}, s{sST}")
    A("s_cbranch_scc1 L_special")
    A.label("L_special_ret")
    A(f"s_add_u32 s{sIT}, s{sIT}, 1")
    A(f"s_add_u32 s{sT0}, s{sIT}, {ND}")
    A(f"s_cmp_lt_u32 s{sT0}, s{sN}")
    A("s_cbranch_scc1 L_loop")

    for p in range(4):
        A(f"v_add_u32 {v(vKoff+p)}, {128*1152 - 16384}, {v(vKoff+p)}")
    A(f"s_lshl_b32 s{sQOFF}, s{sPR}, 2")
    A(f"s_add_u32 s{sQOFF}, s{sQOFF}, s{sW}")
    A(f"s_mul_i32 s{sQOFF}, s{sQOFF}, 6144")
    A(f"s_add_u32 s{sQOFF}, s{sQOFF}, {OB}")
    A(f"s_cmp_lt_u32 s2, 128")
    A(f"s_cselect_b32 s{sST}, {OOB:#x}, s{sQOFF}")
    A(f"s_add_u32 s{sMV}, s{sST}, 4096")
    A(f"s_add_u32 s{sOFFc}, s{sST}, 8192")
    def orec1(op, k, regs):
        return f"{op} {v(vR+4*k,4)}, {v(vL16)}, s[{SWS}:{SWS+3}], s{regs[k//4]} offen offset:{(k%4)*1024} sc1"
    RL = (sST, sMV, sOFFc)
    A.vm = [f"D{g_}" for g_ in range(3 - ND, 4) for _ in range(8)]; A.retired = 0
    for d in range(3 - ND, 3):
        A.wait_vm(f"D{d}")
        A("s_barrier")
        mem = [[] for _ in range(8)]
        if d == 3 - ND:
            b8 = dma_list("b8", first=True)
            mem[0] = b8[0:3]; mem[1] = [b8[3]]; mem[2] = [b8[4]]; mem[3] = [b8[5]]
        if d == RAT:
            for k in range(6):
                mem[min(7, k)].append((orec1("buffer_load_dwordx4", k, RL), "rec"))
        body(mem, [f"s_add_u32 s{sIT}, s{sIT}, 1"], f"d{d}")

    def slot_after(dst, src):
        A(f"s_add_u32 s{dst}, s{src}, 16384")
        A(f"s_cmp_ge_u32 s{dst}, {VRING}")
        A(f"s_cselect_b32 s{dst}, 0, s{dst}")
    A(f"s_sub_u32 s{sRK}, s{sRK}, s{sM0B}")
    slot_after(sA0, sRK)
    slot_after(sA1, sA0)
    slot_after(sMK, sA1)
    slot_after(sLIM, sMK)
    A(f"s_lshl_b32 s{sT0}, s{sW}, 9")
    A(f"s_add_u32 s{sT0}, s{sT0}, s{sMK}")
    A(f"s_add_u32 s{sT0}, s{sT0}, {VRING}")
    A(f"v_lshrrev_b32 {v(vT+2)}, 2, {v(vL16)}")
    A(f"v_add_u32 {v(vT+2)}, s{sT0}, {v(vT+2)}")
    A(f"ds_write_b32 {v(vT+2)}, {v(vM)}")
    A(f"v_xor_b32 {v(vT+1)}, 512, {v(vT+2)}")
    A("s_waitcnt lgkmcnt(0)")
    A("s_barrier")
    A(f"ds_read_b32 {v(vMx)}, {v(vT+1)}")
    A(f"s_cmp_lt_u32 s{sW}, 2")
    A(f"s_cselect_b32 s{sT1}, s{sA0}, s{sA1}")
    A(f"s_lshl_b32 s{sT2}, s{sKH}, 13")
    A(f"s_add_u32 s{sT1}, s{sT1}, s{sT2}")
    A(f"s_xor_b32 s{sT2}, s{sT1}, 8192")
    A(f"v_add_u32 {v(vT+3)}, s{sT2}, {v(vL16)}")
    A(f"v_add_u32 {v(vX+2)}, s{sT1}, {v(vL16)}")
    A(f"v_and_b32 {v(vX)}, 1, {v(vG)}")
    A(f"v_lshlrev_b32 {v(vX)}, 12, {v(vX)}")
    A(f"v_lshrrev_b32 {v(vX+1)}, 1, {v(vG)}")
    A(f"v_lshl_add_u32 {v(vX)}, {v(vX+1)}, 8, {v(vX)}")
    A(f"v_lshl_add_u32 {v(vX)}, {v(vN)}, 4, {v(vX)}")
    A(f"s_lshr_b32 s{sT0}, s{sW}, 1")
    A(f"s_lshl_b32 s{sT0}, s{sT0}, 13")
    A(f"s_lshl_b32 s{sT1}, s{sKH}, 11")
    A(f"s_add_u32 s{sT0}, s{sT0}, s{sT1}")
    A(f"s_add_u32 s{sT0}, s{sT0}, s{sMK}")
    A(f"v_add_u32 {v(vX)}, s{sT0}, {v(vX)}")
    A("s_waitcnt lgkmcnt(0)")
    A(f"v_cmp_gt_f32 vcc, {v(vMx)}, {v(vM)}")
    A("s_cbranch_vccz L_magreed")
    A(f"s_call_b64 s[{sM64}:{sM64+1}], L_rescale")
    A.label("L_magreed")
    emit(fmas)
    emit(expcvt())
    A.nop(1)
    A(lm(0)); A(lm(1))
    if RAT == 3:
        for k in range(6):
            A.vmem(orec1("buffer_load_dwordx4", k, RL), "rec")
    A(f"v_lshrrev_b32 {v(vKa)}, 1, {v(vG)}")
    A(f"v_lshlrev_b32 {v(vKa)}, 2, {v(vKa)}")
    A(f"v_and_b32 {v(vKa+1)}, 1, {v(vG)}")
    A(f"v_add_u32 {v(vKa)}, {v(vKa)}, {v(vKa+1)}")
    A(f"v_lshrrev_b32 {v(vKa+1)}, 2, {v(vN)}")
    A(f"v_lshl_add_u32 {v(vKa)}, {v(vKa)}, 2, {v(vKa+1)}")
    A(f"v_and_b32 {v(vKa+1)}, 3, {v(vN)}")
    A(f"v_lshlrev_b32 {v(vKa+1)}, 3, {v(vKa+1)}")
    A(f"ds_write_b32 {v(vT+2)}, {v(vLa)} offset:256")
    A(f"v_lshl_add_u32 {v(vKa)}, {v(vKa)}, 7, {v(vKa+1)}")
    A(f"s_lshl_b32 s{sT1}, s{sW}, 5")
    A(f"s_add_u32 s{sT2}, s{sT1}, s{sRK}")
    A(f"s_add_u32 s{sT1}, s{sT1}, s{sLIM}")
    A(f"v_add_u32 {v(vKa+1)}, s{sT2}, {v(vKa)}")
    A(f"v_add_u32 {v(vKa)}, s{sT1}, {v(vKa)}")
    A(f"v_add_u32 {v(vKa+2)}, s{sMK}, {v(vL16)}")
    A(f"v_mov_b32 {v(vKa+3)}, s{sNON}")
    A(f"s_and_b32 s{sT2}, s2, 15")
    A(f"s_lshl_b32 s{sT0}, s{sB}, 4")
    A(f"s_add_u32 s{sT0}, s{sT0}, s{sT2}")
    A(f"s_mul_i32 s{sT0}, s{sT0}, 36864")
    A(f"s_mul_i32 s{sT1}, s{sW}, 9216")
    A(f"s_add_u32 s{sT0}, s{sT0}, s{sT1}")
    A(f"s_add_u32 s{sXOFF}, s{sT0}, {PY}")
    A("s_waitcnt lgkmcnt(0)")
    A.wait_vm("b8")
    A("s_barrier")
    stamp(3)
    vL1 = vX + 3
    vU = vQf
    def rec_check():
        L = [f"v_xor_b32 {v(vR+4*k+3)}, {v(vR+4*k+3)}, {v(vKa+3)}" for k in range(6)]
        L += [f"v_or3_b32 {v(vR+3)}, {v(vR+3)}, {v(vR+7)}, {v(vR+11)}",
              f"v_or3_b32 {v(vR+15)}, {v(vR+15)}, {v(vR+19)}, {v(vR+23)}",
              f"v_or_b32 {v(vR+3)}, {v(vR+3)}, {v(vR+15)}",
              f"v_cmp_ne_u32 vcc, 0, {v(vR+3)}"]
        return L
    def rec_prep():
        L = [f"v_max_f32 {v(vMx)}, {v(vM)}, {v(vR+slot3(16))}",
             f"v_mul_f32 {v(vMc)}, s{sC}, {v(vMx)}",
             f"v_fma_f32 {v(vAl)}, {v(vM)}, s{sC}, -{v(vMc)}",
             f"v_fma_f32 {v(vBe)}, {v(vR+slot3(16))}, s{sC}, -{v(vMc)}",
             f"v_exp_f32 {v(vAl)}, {v(vAl)}",
             f"v_exp_f32 {v(vBe)}, {v(vBe)}"]
        U = []
        for k in range(16):
            U += [f"v_and_b32 {v(vU+2*k+1)}, 0xffff0000, {v(vR+slot3(k))}", f"v_lshlrev_b32 {v(vU+2*k)}, 16, {v(vR+slot3(k))}"]
        L += U[:2]
        L += [f"v_mul_f32 {v(vMx)}, {v(vBe)}, {v(vR+slot3(17))}",
              f"v_fma_f32 {v(vMx)}, {v(vAl)}, {v(vL1)}, {v(vMx)}",
              f"v_rcp_f32 {v(vMx)}, {v(vMx)}"]
        L += U[2:]
        L += [f"v_mul_f32 {v(vAl)}, {v(vAl)}, {v(vMx)}", f"v_mul_f32 {v(vBe)}, {v(vBe)}, {v(vMx)}"]
        L += [f"v_mul_f32 {v(vU+k)}, {v(vU+k)}, {v(vBe)}" for k in range(32)]
        return L
    def final_pv(fillv):
        def take(n):
            for _ in range(n):
                if fillv:
                    A(fillv.pop(0))
        take(5)
        A("s_waitcnt lgkmcnt(8)")
        A(pvm(2)); take(6)
        A(pvm(3)); take(6)
        A("s_waitcnt lgkmcnt(4)")
        A(pvm(4)); take(6)
        dsw = [f"ds_write_b128 {v(vT+3)}, {v(vO+32+4*k,4)} offset:{k*1024}" for k in range(8)]
        A(pvm(5))
        A("s_waitcnt lgkmcnt(0)")
        emit(dsw[:4]); take(2)
        A(pvm(6))
        emit(dsw[4:]); take(2)
        A(pvm(7))
        take(1000)
    A(f"ds_read_b32 {v(vT)}, {v(vT+1)} offset:256")
    for f in range(7):
        emit(vread(f))
    A(f"s_cmp_lt_u32 s2, 128")
    A("s_waitcnt lgkmcnt(10)")
    A(pvm(0))
    emit(vread(7))
    A(f"v_add_f32 {v(vL1)}, {v(vLa)}, {v(vT)}")
    A(pvm(1))
    A("s_waitcnt vmcnt(0)")
    A("s_cbranch_scc1 L_g2_tail")
    final_pv(rec_check() + rec_prep())

    A("s_cbranch_vccnz L_pollo")
    A.label("L_pollo_done")
    A("s_waitcnt lgkmcnt(0)")
    A("s_barrier")
    if not DBG:
        stamp(11)
    for k in range(8):
        A(f"ds_read_b128 {v(vO+32+4*k,4)}, {v(vX+2)} offset:{k*1024}")
    for c in range(4):
        A(f"s_waitcnt lgkmcnt({6 - 2*c + c})")
        for k in range(4 * c, 4 * c + 4):
            A(f"v_pk_add_f32 {v(vO+2*k,2)}, {v(vO+2*k,2)}, {v(vO+32+2*k,2)}")
        for k in range(4 * c, 4 * c + 4):
            A(f"v_pk_fma_f32 {v(vO+2*k,2)}, {v(vO+2*k,2)}, {v(vAl,2)}, {v(vU+2*k,2)} op_sel_hi:[1,0,1]")
        for k in range(4 * c, 4 * c + 4):
            A(f"v_cvt_pk_bf16_f32 {v(vX+4+k)}, {v(vO+2*k)}, {v(vO+2*k+1)}")
        A(f"ds_write_b128 {v(vX)}, {v(vX+4+4*c,4)} offset:{(c>>1)*1024 + (c&1)*512}")
    vB8 = 216
    A(f"s_mov_b32 s{sT0}, s{sXOFF}")
    A("s_waitcnt lgkmcnt(0)")
    A("s_barrier")
    stamp(4)
    def wfr(ks, j):
        return a(32 * ks + 4 * j, 4) if j < 8 else v(vB8 + 4 * ks, 4)
    def acc(rh, j):
        return 144 + 4 * (rh * 9 + j)
    def ofr(rh, ks):
        return v(vQf + 4 * ks, 4) if rh == 0 else v(vO + 4 * ks, 4)
    vPk = 120
    b8r = [f"ds_read_b64_tr_b16 {v(vB8+4*ks+2*u,2)}, {v(vKa+(ks>>2))} offset:{(32*(ks&3)+8*u)*128}" for ks in range(8) for u in range(2)]
    o0 = [f"ds_read_b128 {ofr(0,ks)}, {v(vKa+2)} offset:{(((ks>>2)*2+0)*4+(ks&3))*1024}" for ks in range(8)]
    o1 = [f"ds_read_b128 {ofr(1,ks)}, {v(vKa+2)} offset:{(((ks>>2)*2+1)*4+(ks&3))*1024}" for ks in range(8)]
    for ks in range(4):
        A(o0[ks]); A(b8r[2*ks]); A(b8r[2*ks+1])
    for ks in range(8):
        A(f"s_waitcnt lgkmcnt({9 if ks < 5 else 9})")
        nxt = [o0[ks+4], b8r[2*(ks+4)], b8r[2*(ks+4)+1]] if ks < 4 else [o1[2*(ks-4)], o1[2*(ks-4)+1], o1[2*(ks-4)+1]]
        for j in range(9):
            d = v(acc(0, j), 4)
            A(f"{M16} {d}, {ofr(0,ks)}, {wfr(ks,j)}, {d if ks else 0}")
            if j < 3:
                A(nxt[j])
    A("s_waitcnt lgkmcnt(0)")
    def pack_store(rh):
        L = []
        for i in range(4):
            d = vPk + 4 * i
            for q in range(4):
                L.append(f"v_cvt_pk_bf16_f32 {v(d+q)}, {v(acc(rh,2*q)+i)}, {v(acc(rh,2*q+1)+i)}")
            L.append(f"buffer_store_dwordx4 {v(d,4)}, {v(vL16)}, s[{SWS}:{SWS+3}], s{sT0} offen offset:{i*1024} sc1")
        L.append(f"s_add_u32 s{sT0}, s{sT0}, 4096")
        for q in range(2):
            L.append(f"v_cvt_pk_bf16_f32 {v(136+2*rh+q)}, {v(acc(rh,8)+2*q)}, {v(acc(rh,8)+2*q+1)}")
        return L
    m1 = []
    for ks in range(8):
        for j in range(9):
            d = v(acc(1, j), 4)
            m1.append(f"{M16} {d}, {ofr(1,ks)}, {wfr(ks,j)}, {d if ks else 0}")
    misc = [f"s_lshl_b32 s{sT1}, s{sB}, 13",
            f"s_lshl_b32 s{sQOFF}, s{sW}, 7",
            f"s_add_u32 s{sT1}, s{sT1}, s{sQOFF}",
            f"s_lshl_b32 s{sQOFF}, s{sT2}, 3",
            f"s_add_u32 s{sT1}, s{sT1}, s{sQOFF}",
            f"s_add_u32 s{sT1}, s{sT1}, {FY}",
            f"v_lshlrev_b32 {v(vT)}, 9, {v(vN)}",
            f"s_memrealtime s[{sNON}:{sNON+1}]"]
    emit(m1[:10])
    emit(weave(m1[10:], pack_store(0) + misc, 1))
    stamp(5)
    A.nop(8)
    emit(pack_store(1))
    A(f"buffer_store_dwordx4 {v(136,4)}, {v(vL16)}, s[{SWS}:{SWS+3}], s{sT0} offen sc1")
    stamp(7)
    A("s_waitcnt lgkmcnt(0)")
    A(f"v_mov_b32 {v(vT+2)}, s{sNON}")
    A(f"v_mov_b32 {v(vT+3)}, s{sNON+1}")
    A("s_waitcnt vmcnt(0)")
    A("s_mov_b64 exec, 0xffff")
    A(f"buffer_store_dwordx2 {v(vT+2,2)}, {v(vT)}, s[{SWS}:{SWS+3}], s{sT1} offen sc1")
    A("s_mov_b64 exec, -1")
    stamp(8)
    A("s_branch L_fin")

    A.label("L_g2_tail")
    g2f = [f"v_mov_b32 {v(vR+4*k+3)}, s{sNON}" for k in range(6)]
    g2f += [f"v_mov_b32 {v(vR+slot3(16))}, {v(vM)}", f"v_mov_b32 {v(vR+slot3(17))}, {v(vL1)}",
            f"s_add_u32 s{sMV}, s{sQOFF}, 4096", f"s_add_u32 s{sOFFc}, s{sQOFF}, 8192", "s_nop 0", "s_nop 3", "s_nop 0", "s_nop 0", "s_nop 0", "s_nop 0", "s_nop 0", "s_nop 3"]
    final_pv(g2f)
    RS = (sQOFF, sMV, sOFFc)
    A("s_waitcnt lgkmcnt(0)")
    A("s_barrier")
    for k in range(8):
        A(f"ds_read_b128 {v(vO+32+4*k,4)}, {v(vX+2)} offset:{k*1024}")
    for k in range(8):
        A(f"s_waitcnt lgkmcnt({7-k})")
        for z in range(2):
            A(f"v_pk_add_f32 {v(vO+4*k+2*z,2)}, {v(vO+4*k+2*z,2)}, {v(vO+32+4*k+2*z,2)}")
        for z in range(2):
            q = 2 * k + z
            A(f"v_cvt_pk_bf16_f32 {v(vR+slot3(q))}, {v(vO+4*k+2*z)}, {v(vO+4*k+2*z+1)}")
            if q % 3 == 2 or q == 15:
                A(orec1("buffer_store_dwordx4", q // 3, RS))
    stamp(4)
    sJ = sST
    srd(A, SX, KA+10, KA+11, 8 * 32 * 576 * 2)
    A(f"s_and_b32 s{sJ}, s2, 15")
    vSA = vQf
    A(f"v_and_b32 {v(vT)}, 1, {v(vN)}")
    A(f"v_lshlrev_b32 {v(vT)}, 4, {v(vT)}")
    A(f"v_mov_b32 {v(vT+1)}, 0x3f80")
    A(f"v_lshlrev_b32 {v(vT+1)}, {v(vT)}, {v(vT+1)}")
    A(f"v_lshrrev_b32 {v(vT)}, 1, {v(vN)}")
    for t in range(4):
        A(f"v_cmp_eq_u32 vcc, {t}, {v(vT)}")
        A.nop(2)
        A(f"v_cndmask_b32 {v(vSA+t)}, 0, {v(vT+1)}, vcc")
    A(f"s_lshl_b32 s{sT0}, s{sB}, 4")
    A(f"s_add_u32 s{sT0}, s{sT0}, s{sJ}")
    A(f"s_lshl_b32 s{sT0}, s{sT0}, 2")
    A(f"s_add_u32 s{sT0}, s{sT0}, s{sW}")
    A(f"s_lshl_b32 s{sT0}, s{sT0}, 7")
    A(f"s_add_u32 s{sQOFF}, s{sT0}, {FY}")
    A(f"v_lshlrev_b32 {v(vT+1)}, 3, {v(vN)}")
    A(f"v_mul_u32_u24 {v(vT)}, 36864, {v(vG)}")
    A(f"v_lshl_add_u32 {v(vT)}, {v(vN)}, 4, {v(vT)}")
    A(f"s_mul_i32 s{sT0}, s{sB}, {16*36864}")
    A(f"s_mul_i32 s{sT1}, s{sW}, 9216")
    A(f"s_add_u32 s{sT0}, s{sT0}, s{sT1}")
    A(f"s_add_u32 s{sT0}, s{sT0}, {PY}")
    A(f"s_lshl_b32 s{sT1}, s{sJ}, 8")
    A(f"s_add_u32 s{sXOFF}, s{sT0}, s{sT1}")
    A(f"s_add_u32 s{sXOFF}, s{sXOFF}, 8192")
    A(f"s_lshl_b32 s{sT1}, s{sJ}, 9")
    A(f"s_add_u32 s{sT0}, s{sT0}, s{sT1}")
    A(f"s_lshr_b32 s{sT1}, s{sJ}, 3")
    A(f"s_lshl_b32 s{sT1}, s{sT1}, 4")
    A(f"s_and_b32 s{sT2}, s{sJ}, 1")
    A(f"s_lshl_b32 s{sT2}, s{sT2}, 3")
    A(f"s_add_u32 s{sT1}, s{sT1}, s{sT2}")
    A(f"s_bfe_u32 s{sT2}, s{sJ}, 0x20001")
    A(f"s_add_u32 s{sT1}, s{sT1}, s{sT2}")
    A(f"s_lshl_b32 s{sT2}, s{sB}, 5")
    A(f"s_add_u32 s{sT1}, s{sT1}, s{sT2}")
    A(f"s_mul_i32 s{sT1}, s{sT1}, 1152")
    A(f"s_lshl_b32 s{sT2}, s{sW}, 8")
    A(f"s_add_u32 s{sT1}, s{sT1}, s{sT2}")
    A(f"s_add_u32 s{sOFF}, s{sT1}, {4*1152}")
    A(f"v_lshlrev_b32 {v(vMx)}, 4, {v(vN)}")
    A(f"v_lshl_add_u32 {v(vMx)}, {v(vG)}, 3, {v(vMx)}")
    A(f"s_mov_b32 s{sT2}, 0")
    A(f"s_mov_b64 s[{sA0}:{sA1}], s[{sTIM}:{sTIM+1}]")
    A("s_branch L_polly_ld")
    A.label("L_polly")
    A(f"s_sleep {SLEEPY}")
    epoch_lower(sA0, sT2, vT + 2, "y")
    A.label("L_polly_ld")
    A(f"buffer_load_dwordx2 {v(vT+2,2)}, {v(vT+1)}, s[{SWS}:{SWS+3}], s{sQOFF} offen sc1")
    A(f"v_mov_b32 {v(vBe)}, s{sA1}")
    A("s_waitcnt vmcnt(0)")
    A(f"v_subrev_co_u32 {v(vAl)}, vcc, s{sA0}, {v(vT+2)}")
    A(f"v_subb_co_u32 {v(vBe)}, vcc, {v(vT+3)}, {v(vBe)}, vcc")
    A(f"v_cmp_le_u64 vcc, s[{sWIN}:{sWIN+1}], {v(vAl,2)}")
    A(f"s_add_u32 s{sT2}, s{sT2}, 1")
    A("s_cbranch_vccz L_polly_done")
    A(f"s_cmp_lt_u32 s{sT2}, {SPIN_MAX}")
    A("s_cbranch_scc1 L_polly")
    A.label("L_polly_done")
    stamp(9)
    vRR = vO
    for k in range(4):
        A(f"buffer_load_dwordx4 {v(vRR+4*k,4)}, {v(vT)}, s[{SWS}:{SWS+3}], s{sT0} offen sc1")
        A(f"buffer_load_dwordx4 {v(vRR+16+4*k,4)}, {v(vT)}, s[{SWS}:{SWS+3}], s{sT0} offen offset:256 sc1")
        A(f"s_add_u32 s{sT0}, s{sT0}, {4*36864}")
    A(f"s_cmp_lt_u32 s{sJ}, 4")
    A("s_cbranch_scc0 L_no_extra_ld")
    for k in range(4):
        A(f"buffer_load_dwordx4 {v(vRR+32+4*k,4)}, {v(vT)}, s[{SWS}:{SWS+3}], s{sXOFF} offen sc1")
        A(f"s_add_u32 s{sXOFF}, s{sXOFF}, {4*36864}")
    A.label("L_no_extra_ld")
    A("s_waitcnt vmcnt(0)")
    vS = vSo
    for k in range(4):
        for u in range(2):
            A(f"{M16} {v(vS+4*u,4)}, {v(vSA,4)}, {v(vRR+16*u+4*k,4)}, {v(vS+4*u,4) if k else 0}")
    A.nop(8)
    for u in range(2):
        A(f"v_cvt_pk_bf16_f32 {v(vSn+2*u)}, {v(vS+4*u)}, {v(vS+4*u+1)}")
        A(f"v_cvt_pk_bf16_f32 {v(vSn+2*u+1)}, {v(vS+4*u+2)}, {v(vS+4*u+3)}")
    A("s_mov_b32 exec_hi, 0")
    A(f"buffer_store_dwordx2 {v(vSn,2)}, {v(vMx)}, s[{SX}:{SX+3}], s{sT1} offen{POLO}")
    A(f"buffer_store_dwordx2 {v(vSn+2,2)}, {v(vMx)}, s[{SX}:{SX+3}], s{sOFF} offen{POLO}")
    A(f"s_mov_b64 exec, -1")
    A(f"s_cmp_lt_u32 s{sJ}, 4")
    A("s_cbranch_scc0 L_fin")
    for k in range(4):
        A(f"{M16} {v(vS+8,4)}, {v(vSA,4)}, {v(vRR+32+4*k,4)}, {v(vS+8,4) if k else 0}")
    A(f"s_lshl_b32 s{sT0}, s{sJ}, 2")
    A(f"s_lshl_b32 s{sT1}, s{sB}, 5")
    A(f"s_add_u32 s{sT0}, s{sT0}, s{sT1}")
    A(f"s_mul_i32 s{sT0}, s{sT0}, 1152")
    A(f"s_lshl_b32 s{sT1}, s{sW}, 5")
    A(f"s_add_u32 s{sT0}, s{sT0}, s{sT1}")
    A(f"s_add_u32 s{sT0}, s{sT0}, 1024")
    A(f"v_lshlrev_b32 {v(vT)}, 1, {v(vN)}")
    A(f"v_mul_u32_u24 {v(vT+1)}, {16*1152}, {v(vG)}")
    A(f"v_add_u32 {v(vT)}, {v(vT)}, {v(vT+1)}")
    A.nop(4)
    A(f"v_cvt_pk_bf16_f32 {v(vS+12)}, {v(vS+8)}, {v(vS+9)}")
    A(f"v_cvt_pk_bf16_f32 {v(vS+13)}, {v(vS+10)}, {v(vS+11)}")
    A("s_mov_b32 exec_hi, 0")
    A(f"buffer_store_short {v(vS+12)}, {v(vT)}, s[{SX}:{SX+3}], s{sT0} offen{POLO}")
    A(f"buffer_store_short_d16_hi {v(vS+12)}, {v(vT)}, s[{SX}:{SX+3}], s{sT0} offen offset:1152{POLO}")
    A(f"buffer_store_short {v(vS+13)}, {v(vT)}, s[{SX}:{SX+3}], s{sT0} offen offset:2304{POLO}")
    A(f"buffer_store_short_d16_hi {v(vS+13)}, {v(vT)}, s[{SX}:{SX+3}], s{sT0} offen offset:3456{POLO}")
    A(f"s_mov_b64 exec, -1")
    A.label("L_fin")
    if DIAG >= 0:
        A("s_waitcnt vmcnt(0)")
        A("s_memrealtime s[76:77]")
        A("s_waitcnt lgkmcnt(0)")
        A(f"s_cmp_lt_u32 s2, 128")
        A("s_cbranch_scc0 L_end")
        A(f"s_sub_u32 s{sT0}, s{56+2*DIAG}, s{sTIM}")
        A(f"s_min_u32 s{sT0}, s{sT0}, 20000")
        A.label("L_diag")
        A("s_memrealtime s[78:79]")
        A("s_waitcnt lgkmcnt(0)")
        A(f"s_sub_u32 s{sT1}, s78, s76")
        A(f"s_cmp_lt_u32 s{sT1}, s{sT0}")
        A("s_cbranch_scc1 L_diag")
        A("s_endpgm")
    if STAMPS:
        A("s_waitcnt vmcnt(0)")
        if not DBG:
            stamp(10)
        if DBG:
            A("s_memtime s[76:77]")
            A("s_waitcnt lgkmcnt(0)")
            A(f"s_and_b32 s{sT0}, s2, 127")
            A(f"s_lshl_b32 s{sT0}, s{sT0}, 2")
            A(f"s_add_u32 s{sT0}, s{sT0}, s{sW}")
            A(f"s_cmp_eq_u32 s{sT0}, 20")
            A("s_cbranch_scc0 L_end")
            srd(A, SX, KA+12, KA+13, 256)
            A(f"s_lshr_b32 s{sT0}, s2, 7")
            A(f"s_lshl_b32 s{sT0}, s{sT0}, 5")
            A(f"s_cmp_lt_u32 s2, 128")
            A(f"s_cselect_b32 s72, s74, s72")
            A(f"v_mov_b32 {v(vT)}, 0")
            A("s_mov_b64 exec, 1")
            A("s_memrealtime s[74:75]")
            A("s_waitcnt lgkmcnt(0)")
            for i, src in enumerate([56, 58, 60, 62, 64, 72, 74]):
                A(f"s_sub_u32 s{sT1}, s{src}, s{sTIM}")
                A(f"v_mov_b32 {v(vT+2)}, s{sT1}")
                A(f"buffer_store_dword {v(vT+2)}, {v(vT)}, s[{SX}:{SX+3}], s{sT0} offen offset:{4*i}")
                A.nop(2)
            A(f"s_sub_u32 s{sT1}, s76, s78")
            A(f"v_mov_b32 {v(vT+2)}, s{sT1}")
            A(f"buffer_store_dword {v(vT+2)}, {v(vT)}, s[{SX}:{SX+3}], s{sT0} offen offset:28")
            A("s_endpgm")
        A(f"s_lshl_b32 s{sT0}, s2, 2")
        A(f"s_add_u32 s{sT0}, s{sT0}, s{sW}")
        A(f"s_lshl_b32 s{sT1}, s{sT0}, 8")
        A(f"s_lshl_b32 s{sT0}, s{sT0}, 7")
        A(f"s_add_u32 s{sT0}, s{sT0}, {STAMP_BASE}")
        A(f"s_add_u32 s{sT1}, s{sT1}, {STAMP_BASE + (1 << 20)}")
        A(f"v_lshlrev_b32 {v(vT)}, 2, {v(vLane)}")
        A(f"buffer_store_dword v255, {v(vT)}, s[{SWS}:{SWS+3}], s{sT1} offen")
        A.nop(2)
        A(f"v_mov_b32 {v(vT)}, 0")
        A("s_mov_b64 exec, 1")
        for i in range(13):
            src = 56 + 2 * i if i < 12 else sTIM
            A(f"v_mov_b32 {v(vT+2)}, s{src}")
            A(f"v_mov_b32 {v(vT+3)}, s{src+1}")
            A(f"buffer_store_dwordx2 {v(vT+2,2)}, {v(vT)}, s[{SWS}:{SWS+3}], s{sT0} offen offset:{8*i}")
            A.nop(2)
    A.label("L_end")
    A("s_endpgm")

    A.label("L_rescale")
    A(f"v_max_f32 {v(vMx)}, {v(vMx)}, {v(vM)}")
    A(f"v_mul_f32 {v(vMc)}, s{sC}, {v(vMx)}")
    A(f"v_fma_f32 {v(vAl)}, {v(vM)}, s{sC}, -{v(vMc)}")
    A(f"v_exp_f32 {v(vAl)}, {v(vAl)}")
    A(f"v_mov_b32 {v(vM)}, {v(vMx)}")
    A.nop(8)
    for k in list(range(32, 64, 2)) + list(range(0, 32, 2)):
        A(f"v_pk_mul_f32 {v(vO+k,2)}, {v(vO+k,2)}, {v(vAl,2)} op_sel_hi:[1,0]")
    for k in range(0, 4, 2):
        A(f"v_pk_mul_f32 {v(vLa+k,2)}, {v(vLa+k,2)}, {v(vAl,2)} op_sel_hi:[1,0]")
    A(f"s_setpc_b64 s[{sM64}:{sM64+1}]")

    A.label("L_pollo")
    A(f"s_mov_b32 s{sT1}, 0")
    A.label("L_pollo2")
    for k in range(6):
        A(orec1("buffer_load_dwordx4", k, RL))
    A("s_waitcnt vmcnt(0)")
    emit(rec_check())
    A(f"s_add_u32 s{sT1}, s{sT1}, 1")
    A("s_cbranch_vccz L_pollo3")
    A(f"s_sleep {SLEEP}")
    A(f"s_cmp_lt_u32 s{sT1}, {SPIN_MAX}")
    A("s_cbranch_scc1 L_pollo2")
    A.label("L_pollo3")
    emit(rec_prep())
    A("s_branch L_pollo_done")

    A.label("L_special")
    A(f"s_add_u32 s{sT0}, s{sXOFF}, 1024")
    A(f"s_add_u32 s{SK}, s{KA+8}, s{sT0}")
    A(f"s_addc_u32 s{SK+1}, s{KA+9}, 0")
    A(f"s_sub_u32 s{SK}, s{SK}, {N1*16384}")
    A(f"s_subb_u32 s{SK+1}, s{SK+1}, 0")
    A(f"s_and_b32 s{SK+1}, s{SK+1}, 0xffff")
    A(f"s_mov_b32 s{SK+2}, {N1*16384 + 256*1152 - 1024}")
    A(f"v_lshrrev_b32 {v(vT)}, 3, {v(vLane)}")
    A(f"v_mul_u32_u24 {v(vT)}, 1152, {v(vT)}")
    A(f"v_and_b32 {v(vT+1)}, 7, {v(vLane)}")
    A(f"v_lshl_add_u32 {v(vT)}, {v(vT+1)}, 4, {v(vT)}")
    A(f"s_mul_i32 s{sT0}, s{sW}, {36864 - 4096}")
    for p in range(4):
        A(f"v_add_u32 {v(vKoff+p)}, s{sT0}, {v(vT)}")
        A(f"s_add_u32 s{sT0}, s{sT0}, {9216 - 1024}")
    A("s_branch L_special_ret")
    A.label("L_code_end")
    return A.text()

def main():
    k = gen()
    out = f"""; Sliding-window GQA decode attention + q/o projections, one launch, 256 workgroups (one per CU), 4 waves each.
; @launch grid=(256,1,1) block=(256,1,1) lds=163840
.amdgcn_target "amdgcn-amd-amdhsa--gfx950"
.text
"""
    out += kernel_head(NAME) + k
    out += '.section .rodata,"a"\n.p2align 6\n'
    out += kernel_desc(NAME, 512, 256, 102)
    open(sys.argv[1], "w").write(out)

main()
```
